```python
import torch

def _softmax(x, axis=-1):
    return torch.softmax(x, dim=axis)
def _gelu(x):
    return torch.nn.functional.gelu(x, approximate="tanh")
def _silu(x):
    return torch.nn.functional.silu(x)
def _sigmoid(x):
    return torch.sigmoid(x)
def _layernorm(x, axis=-1, eps=1e-5):
    m = x.mean(dim=axis, keepdim=True)
    v = x.var(dim=axis, keepdim=True, unbiased=False)
    return (x - m) / torch.sqrt(v + eps)
def _scatter_add(tgt, idx, src, axis=0):
    return tgt.clone().index_add_(axis, idx, src)
def _segment_sum(src, seg, n):
    out = torch.zeros((n,) + src.shape[1:], dtype=src.dtype)
    return out.index_add_(0, seg, src)
def _pad(x, pw):
    flat = tuple(v for pair in reversed(pw) for v in pair)
    return torch.nn.functional.pad(x, flat)

kernel_name = 'sequential_preLN__mha_block__swiglu_ffn__prompt'

def setup_inputs():

    _w = (lambda a: (lambda t: t.to(torch.bfloat16) if t.is_floating_point() else t)(torch.as_tensor(a)))
    def _A_setup():
        B, S, D, H = 1, 2048, 1024, 32
        return {
            "x": _w((lambda *s: torch.randn(*s, dtype=torch.bfloat16) * 0.05)(B, S, D)),
            "wqkv": _w((lambda *s: torch.randn(*s, dtype=torch.bfloat16) * 0.05)(D, 3 * D)),
            "wo": _w((lambda *s: torch.randn(*s, dtype=torch.bfloat16) * 0.05)(D, D)),
        }
    _A_in = _A_setup()

    def _B_setup():
        B, S, D, F = 1, 2048, 1024, 3584
        return {
            "x": _w((lambda *s: torch.randn(*s, dtype=torch.bfloat16) * 0.05)(B, S, D)),
            "w_gate": _w((lambda *s: torch.randn(*s, dtype=torch.bfloat16) * 0.05)(D, F)),
            "w_up": _w((lambda *s: torch.randn(*s, dtype=torch.bfloat16) * 0.05)(D, F)),
            "w_down": _w((lambda *s: torch.randn(*s, dtype=torch.bfloat16) * 0.05)(F, D)),
        }
    _B_in = _B_setup()

    return {
        "A_x": _A_in["x"],
        "A_wqkv": _A_in["wqkv"],
        "A_wo": _A_in["wo"],
        "B_x": _B_in["x"],
        "B_w_gate": _B_in["w_gate"],
        "B_w_up": _B_in["w_up"],
        "B_w_down": _B_in["w_down"],
    }

def reference(A_x, A_wqkv, A_wo, B_x, B_w_gate, B_w_up, B_w_down):
    def _A_ref(x, wqkv, wo):
        B, S, D = x.shape
        H = 32
        Dh = D // H
        qkv = (lambda x, *d: x.permute(*d))((x @ wqkv).reshape(B, S, 3, H, Dh), 2, 0, 3, 1, 4)
        q, k, v = qkv[0], qkv[1], qkv[2]
        scores = torch.einsum("bhqd,bhkd->bhqk", q, k) * (Dh ** -0.5)
        p = _softmax(scores, axis=-1)
        o = torch.einsum("bhqk,bhkd->bhqd", p, v)
        return (lambda x, *d: x.permute(*d))(o, 0, 2, 1, 3).reshape(B, S, D) @ wo

    def _B_ref(x, w_gate, w_up, w_down):
        g = _silu(x @ w_gate)
        u = x @ w_up
        return (g * u) @ w_down

    x = A_x
    h = x + _A_ref(_layernorm(x, axis=-1), A_wqkv, A_wo)
    h2 = h + _B_ref(_layernorm(h, axis=-1), B_w_gate, B_w_up, B_w_down)
    return h2
```

```python
import re

TRANS = ("v_exp_f32", "v_log_f32", "v_rcp_f32", "v_rsq_f32", "v_sqrt_f32", "v_sin_f32", "v_cos_f32")

def vr(a, n=1):
    return f"v{a}" if n == 1 else f"v[{a}:{a+n-1}]"
def sr(a, n=1):
    return f"s{a}" if n == 1 else f"s[{a}:{a+n-1}]"

_reg_re = re.compile(r"^(-?)(abs\()?\|?([vsa])(?:(\d+)|\[(\d+):(\d+)\])\|?\)?$")
def regs_of(op):
    op = op.strip()
    if op == "vcc": return {("s", 106), ("s", 107)}
    if op == "vcc_lo": return {("s", 106)}
    if op == "vcc_hi": return {("s", 107)}
    if op == "exec": return {("s", 126), ("s", 127)}
    if op == "exec_lo": return {("s", 126)}
    if op == "exec_hi": return {("s", 127)}
    if op == "m0": return {("s", 124)}
    m = _reg_re.match(op)
    if not m: return set()
    k = m.group(3)
    if m.group(4) is not None:
        return {(k, int(m.group(4)))}
    return {(k, i) for i in range(int(m.group(5)), int(m.group(6)) + 1)}

def split_ops(rest):
    ops, depth, cur = [], 0, ""
    for ch in rest:
        if ch in "[(": depth += 1
        if ch in "])": depth -= 1
        if ch == "," and depth == 0:
            ops.append(cur.strip()); cur = ""
        else:
            cur += ch
    if cur.strip(): ops.append(cur.strip())
    return ops

class Ins:
    __slots__ = ("text", "mn", "kind", "rd", "wr", "passes", "srcA", "srcB", "srcC", "dpp", "wide_store", "lds_dma", "states", "data")
    def __init__(self, text):
        self.text = text
        t = text.split(";")[0].strip()
        self.rd = set(); self.wr = set(); self.passes = 0; self.dpp = False
        self.wide_store = False; self.lds_dma = False; self.states = 1; self.data = set()
        self.srcA = self.srcB = self.srcC = set()
        if not t or t.endswith(":") or t.startswith("."):
            self.kind = "label" if t.endswith(":") else "none"; self.mn = t; self.states = 0
            return
        parts = t.split(None, 1)
        mn = parts[0]; self.mn = mn
        rest = parts[1] if len(parts) > 1 else ""
        ops = split_ops(rest)
        mods = ""
        if ops:
            lp = ops[-1].split()
            ops[-1] = lp[0]; mods = " ".join(lp[1:])
        R = [regs_of(o) for o in ops]
        if mn == "s_nop":
            self.kind = "nop"; self.states = int(ops[0], 0) + 1
        elif mn.startswith("v_mfma"):
            self.kind = "mfma"
            self.passes = 8 if "32x32" in mn else 4
            self.wr = R[0]; self.srcA = R[1]; self.srcB = R[2]; self.srcC = R[3]
            self.rd = R[1] | R[2] | R[3]
        elif mn.startswith("v_"):
            self.kind = "trans" if mn.replace("_e32", "").replace("_e64", "") in TRANS else "valu"
            if "quad_perm" in mods or "row_" in mods or "_dpp" in mn: self.dpp = True
            if mn.startswith("v_permlane") and "swap" in mn:
                self.wr = R[0] | R[1]; self.rd = R[0] | R[1]; self.kind = "permlane"
            elif mn.startswith("v_cmp"):
                self.wr = R[0]; self.rd = set().union(*R[1:])
            elif mn.startswith("v_readfirstlane") or mn.startswith("v_readlane"):
                self.wr = R[0]; self.rd = set().union(*R[1:]); self.kind = "readlane"
            elif mn.startswith("v_add_co") or mn.startswith("v_addc_co") or mn.startswith("v_sub_co"):
                self.wr = R[0] | R[1]; self.rd = set().union(*R[2:])
            else:
                self.wr = R[0]; self.rd = set().union(*R[1:]) if len(R) > 1 else set()
                if mn.startswith("v_fmac") or mn.startswith("v_dot2c") or self.dpp or mn.startswith("v_pk_fmac"):
                    self.rd |= R[0]
                if mn.startswith("v_cndmask") and len(ops) == 3:
                    self.rd |= regs_of("vcc")
                if mn.startswith("v_dot"): self.kind = "dot"
        elif mn.startswith("buffer_") or mn.startswith("global_"):
            self.kind = "vmem"
            is_lds = " lds" in (" " + mods)
            if mn.startswith("buffer_"):
                if is_lds:
                    self.lds_dma = True; self.rd = set().union(*R) | regs_of("m0")
                elif "load" in mn:
                    self.wr = R[0]; self.rd = set().union(*R[1:])
                else:
                    self.rd = set().union(*R); self.data = R[0]
                    if "x4" in mn or "x3" in mn: self.wide_store = True
            else:
                if "load" in mn:
                    self.wr = R[0]; self.rd = set().union(*R[1:])
                else:
                    self.rd = set().union(*R); self.data = R[1]
                    if "x4" in mn or "x3" in mn: self.wide_store = True
        elif mn.startswith("ds_"):
            self.kind = "ds"
            if "read" in mn or "permute" in mn or "swizzle" in mn:
                self.wr = R[0]; self.rd = set().union(*R[1:])
            else:
                self.rd = set().union(*R)
        elif mn.startswith("s_"):
            self.kind = "salu"
            if mn.startswith("s_cmp") or mn.startswith("s_cbranch") or mn in ("s_branch", "s_barrier", "s_waitcnt", "s_endpgm", "s_setprio", "s_sleep"):
                self.rd = set().union(*R) if R else set()
            else:
                self.wr = R[0] if R else set(); self.rd = set().union(*R[1:]) if len(R) > 1 else set()
                if "saveexec" in mn: self.wr = self.wr | regs_of("exec")
        else:
            raise ValueError("unknown instr: " + text)

VALUK = ("valu", "trans", "permlane", "readlane", "dot")
def isv(s): return {r for r in s if r[0] in "va"}
def iss(s): return {r for r in s if r[0] == "s"}

def need(p, c):
    n = 0
    if p.kind in VALUK:
        pv = isv(p.wr); ps = iss(p.wr)
        if c.kind == "mfma" and pv & c.rd: n = max(n, 2)
        if p.kind == "trans" and c.kind in VALUK and c.kind != "trans" and pv & c.rd: n = max(n, 1)
        if p.kind == "trans" and c.kind == "trans" and pv & c.rd: n = max(n, 1)
        if c.kind == "readlane" and pv & c.rd: n = max(n, 1)
        if (c.kind == "permlane" or c.dpp) and pv & c.rd: n = max(n, 2)
        if ps:
            if c.kind in VALUK and ps & c.rd: n = max(n, 4 if c.kind == "readlane" else 2)
            if c.kind == "vmem" and ps & c.rd: n = max(n, 5)
            if ps & regs_of("exec"):
                if c.kind == "mfma": n = max(n, 4)
                if c.dpp: n = max(n, 5)
        if p.kind == "dot" and pv:
            if c.kind == "dot" and c.mn == p.mn:
                pass
            elif c.kind in VALUK + ("mfma", "vmem", "ds") and pv & (c.rd | c.wr): n = max(n, 3)
    if p.kind == "mfma":
        big = 12 if p.passes == 8 else 8
        if c.kind == "mfma":
            if p.wr & (c.srcA | c.srcB): n = max(n, big)
            if p.wr & c.srcC and not (p.wr == c.srcC and p.passes == c.passes):
                n = max(n, 10 if p.passes == 8 else 6)
        elif c.kind in VALUK:
            if p.wr & (c.rd | c.wr): n = max(n, big)
            if p.srcC & c.wr: n = max(n, 7 if p.passes == 8 else 3)
        elif c.kind in ("vmem", "ds"):
            if p.wr & (c.rd | c.wr): n = max(n, big)
    if p.kind == "vmem" and p.wide_store:
        if c.kind in VALUK and p.data & c.wr: n = max(n, 2)
        elif p.data & c.wr: n = max(n, 1)
    if p.kind == "salu" and (p.wr & regs_of("m0")) and c.kind == "vmem" and c.lds_dma: n = max(n, 1)
    return n

MAXD = 13
def pad_linear(lines):
    out = []
    for t in lines:
        c = Ins(t)
        if c.states:
            req = 0; dist = 0
            for p in reversed(out):
                if dist >= MAXD: break
                if p.states:
                    k = need(p, c) - dist
                    if k > req: req = k
                    dist += p.states
            while req > 0:
                n = min(req, 16)
                out.append(Ins(f"    s_nop {n-1}")); req -= n
        out.append(c)
    return out

def check_branches(ins):
    labels = {i.mn[:-1]: idx for idx, i in enumerate(ins) if i.kind == "label"}
    idx = 0
    while idx < len(ins):
        b = ins[idx]
        if b.mn.startswith("s_cbranch") or b.mn == "s_branch":
            tgt = b.text.split(";")[0].split()[-1]
            labels = {i.mn[:-1]: k for k, i in enumerate(ins) if i.kind == "label"}
            if tgt in labels:
                pre = [p for p in ins[max(0, idx - 40):idx + 1] if p.states]
                post = [p for p in ins[labels[tgt]:labels[tgt] + 40] if p.states]
                req = 0
                dpost = 0
                for c in post:
                    if dpost >= MAXD: break
                    dist = dpost
                    for p in reversed(pre):
                        if dist >= MAXD: break
                        k = need(p, c) - dist
                        if k > req: req = k
                        dist += p.states
                    dpost += c.states
                if req > 0:
                    ins.insert(idx, Ins(f"    s_nop {req-1}")); idx += 1
        idx += 1
    return ins

class K:
    def __init__(self, name, grid, block, lds):
        self.name = name; self.grid = grid; self.block = block; self.lds = lds
        self.L = []
        self.vmq = []
        self.lgq = []
        self.nv = 0; self.ns = 0
        self._v = 1; self._s = 4
        self.uid = 0
    def v(self, n=1, align=None):
        if align is None: align = 2 if n >= 2 else 1
        a = (self._v + align - 1) // align * align
        self._v = a + n
        return a
    def s(self, n=1, align=None):
        if align is None: align = 4 if n >= 4 else (2 if n == 2 else 1)
        a = (self._s + align - 1) // align * align
        self._s = a + n
        assert self._s <= 100
        return a
    def __call__(self, t):
        for line in t.split("\n"):
            line = line.strip()
            if line: self.L.append("    " + line)
    def label(self, n): self.L.append(n + ":")
    def c(self, t): self.L.append("    ; " + t)
    def vm(self, t, tag=None):
        self(t); self.vmq.append(tag)
    def ds(self, t, tag=None):
        self(t); self.lgq.append(tag)
    def _cnt(self, q, tag):
        idx = None
        for i, x in enumerate(q):
            if x == tag: idx = i
        if idx is None: return None
        return len(q) - 1 - idx, idx
    def wait(self, vm=None, lg=None):
        parts = []
        if vm is not None:
            if vm == "all":
                if self.vmq: parts.append("vmcnt(0)"); self.vmq = []
            else:
                r = self._cnt(self.vmq, vm)
                if r is not None:
                    n, idx = r
                    n2 = min(n, 63)
                    parts.append(f"vmcnt({n2})"); self.vmq = self.vmq[len(self.vmq) - n2:] if n2 else []
        if lg is not None:
            if lg == "all":
                if self.lgq: parts.append("lgkmcnt(0)"); self.lgq = []
            else:
                r = self._cnt(self.lgq, lg)
                if r is not None:
                    n, idx = r
                    n2 = min(n, 15)
                    parts.append(f"lgkmcnt({n2})"); self.lgq = self.lgq[len(self.lgq) - n2:] if n2 else []
        if parts: self("s_waitcnt " + " ".join(parts))
    def mark(self): return len(self.L)
    def srd(self, d, base, nbytes):
        self(f"s_mov_b32 s{d}, s{base}\ns_mov_b32 s{d+1}, s{base+1}\ns_mov_b32 s{d+2}, {nbytes}\ns_mov_b32 s{d+3}, 0x20000")
    def text(self):
        ins = pad_linear(self.L)
        ins = check_branches(ins)
        mx = 0
        for i in ins:
            for r in (i.rd | i.wr):
                if r[0] == "v": mx = max(mx, r[1])
        nv = mx + 1
        self.nv = nv
        acc = (nv + 3) // 4 * 4
        body = "\n".join(i.text for i in ins)
        code = f""".text
.globl {self.name}
.p2align 8
.type {self.name},@function
{self.name}:
{body}
"""
        desc = f""".section .rodata,"a"
.p2align 6
.amdhsa_kernel {self.name}
  .amdhsa_next_free_vgpr {acc}
  .amdhsa_next_free_sgpr 102
  .amdhsa_accum_offset {acc}
  .amdhsa_group_segment_fixed_size 0
  .amdhsa_kernarg_size 80
  .amdhsa_user_sgpr_count 2
  .amdhsa_user_sgpr_kernarg_segment_ptr 1
  .amdhsa_system_sgpr_workgroup_id_x 1
.end_amdhsa_kernel
"""
        return code, desc

def compress_loop(k, blocks, period, scnt, lname):
    n = len(blocks)
    best = (0, 0)
    for st in range(n):
        reps = 1
        while st + (reps + 1) * period <= n and all(blocks[st + reps * period + i] == blocks[st + i] for i in range(period)):
            reps += 1
        if reps > best[1] and st + period <= n: best = (st, reps)
    st, reps = best
    if reps < 2:
        for b in blocks: k.L.extend(b)
        return 1
    for b in blocks[:st]: k.L.extend(b)
    k(f"s_mov_b32 s{scnt}, {reps}")
    k.label(lname)
    for b in blocks[st:st + period]: k.L.extend(b)
    k(f"s_sub_u32 s{scnt}, s{scnt}, 1\ns_cmp_lg_u32 s{scnt}, 0\ns_cbranch_scc1 {lname}")
    for b in blocks[st + reps * period:]: k.L.extend(b)
    return reps
```

```python
import sys, math
from asmlib import *

NAME = "sequential_preLN__mha_block__swiglu_ffn__prompt"
MB = 1 << 20
WS_XN, WS_Q, WS_KV, WS_O, WS_H, WS_HN, WS_ACT = 0, 4*MB, 8*MB, 16*MB, 20*MB, 24*MB, 28*MB
WS_SIZE = 64*MB
P_X, P_WQKV, P_WO, P_BX, P_WG, P_WU, P_WD, P_OUT = 0, 2, 4, 6, 8, 10, 12, 14
def f32(x):
    import struct
    return "0x%08x" % struct.unpack("<I", struct.pack("<f", x))[0]

def start(k, nwg):
    k(f"s_cmp_ge_u32 s2, {nwg}\ns_cbranch_scc1 {k.name}_END")
    P = k.s(16, 4); P2 = k.s(4, 4)
    k(f"s_load_dwordx16 {sr(P,16)}, s[0:1], 0\ns_load_dwordx4 {sr(P2,4)}, s[0:1], 64")
    lane = k.v(); sw = k.s()
    k(f"v_lshrrev_b32 v{lane}, 6, v0")
    k(f"v_readfirstlane_b32 s{sw}, v{lane}")
    k(f"v_and_b32 v{lane}, 63, v0")
    k.P = P; k.PWS = P2 + 2; k.lane = lane; k.sw = sw
    k("s_waitcnt lgkmcnt(0)")
def finish(k):
    k.label(f"{k.name}_END")
    k("s_endpgm")

def gen_ln(name, in_T, src_off, dst_off):
    k = K(name, (256, 1, 1), (256, 1, 1), 1024)
    start(k, 256)
    lane, sw = k.lane, k.sw
    S_in = k.s(4); S_ws = k.s(4)
    k.srd(S_ws, k.PWS, WS_SIZE)
    if not in_T: k.srd(S_in, k.P + P_X, 4*MB)
    row = k.v(); c = k.v(); vo = k.v(); vi = k.v(); t = k.v(); t2 = k.v()
    sa = k.s(); sb = k.s(); so = [k.s() for _ in range(4)]; si = [k.s() for _ in range(4)]
    k(f"v_lshrrev_b32 v{row}, 3, v{lane}\nv_and_b32 v{c}, 7, v{lane}")
    k(f"s_lshr_b32 s{sa}, s2, 2\ns_lshl_b32 s{sa}, s{sa}, 16\ns_lshl_b32 s{sb}, s{sw}, 14\ns_add_u32 s{sa}, s{sa}, s{sb}")
    k(f"s_and_b32 s{sb}, s2, 3\ns_lshl_b32 s{sb}, s{sb}, 7\ns_add_u32 s{sa}, s{sa}, s{sb}")
    k(f"v_lshrrev_b32 v{t}, 1, v{c}\nv_lshlrev_b32 v{t}, 10, v{t}\nv_and_b32 v{t2}, 1, v{c}\nv_lshlrev_b32 v{t2}, 9, v{t2}")
    k(f"v_add_u32 v{vo}, v{t}, v{t2}\nv_lshlrev_b32 v{t}, 4, v{row}\nv_add_u32 v{vo}, v{vo}, v{t}\nv_add_u32 v{vo}, s{sa}, v{vo}")
    X = k.v(16, 4); F = k.v(32, 4)
    for i in range(4):
        k(f"s_mov_b32 s{so[i]}, {dst_off + 4096*i}")
    if in_T:
        for i in range(4):
            k(f"s_mov_b32 s{si[i]}, {src_off + 4096*i}")
        for i in range(4):
            k.vm(f"buffer_load_dwordx4 {vr(X+4*i,4)}, v{vo}, {sr(S_ws,4)}, s{si[i]} offen", i)
    else:
        k(f"s_lshl_b32 s{sa}, s2, 14\ns_lshl_b32 s{sb}, s{sw}, 9\ns_add_u32 s{sa}, s{sa}, s{sb}")
        k(f"v_lshlrev_b32 v{vi}, 11, v{row}\nv_lshlrev_b32 v{t}, 4, v{c}\nv_add_u32 v{vi}, v{vi}, v{t}\nv_add_u32 v{vi}, s{sa}, v{vi}")
        for i in range(4):
            k.vm(f"buffer_load_dwordx4 {vr(X+4*i,4)}, v{vi}, {sr(S_in,4)}, 0 offen offset:{128*i}", i)
    sm = k.v(); m2 = k.v()
    for i in range(4):
        k.wait(vm=i)
        for j in range(4):
            r = 4*i + j
            k(f"v_lshlrev_b32 v{F+2*r}, 16, v{X+r}\nv_and_b32 v{F+2*r+1}, 0xffff0000, v{X+r}")
        for j in range(8):
            e = F + 8*i + j
            if i == 0 and j == 0: continue
            if i == 0 and j == 1: k(f"v_add_f32 v{sm}, v{F}, v{F+1}")
            elif j % 2 == 0: k(f"v_add_f32 v{sm}, v{sm}, v{e}")
            else:
                if i == 0 and j == 3: k(f"v_mov_b32 v{m2}, v{e}")
                else: k(f"v_add_f32 v{m2}, v{m2}, v{e}")
    k(f"v_add_f32 v{sm}, v{sm}, v{m2}")
    def red8(r):
        k(f"v_add_f32_dpp v{r}, v{r}, v{r} quad_perm:[1,0,3,2] row_mask:0xf bank_mask:0xf")
        k(f"v_add_f32_dpp v{r}, v{r}, v{r} quad_perm:[2,3,0,1] row_mask:0xf bank_mask:0xf")
        k(f"v_add_f32_dpp v{r}, v{r}, v{r} row_half_mirror row_mask:0xf bank_mask:0xf")
    red8(sm)
    pr = k.v(2, 2)
    k(f"v_mul_f32 v{pr}, {f32(1/256)}, v{sm}")
    for e in range(32): k(f"v_sub_f32 v{F+e}, v{F+e}, v{pr}")
    k(f"v_mul_f32 v{pr+1}, v{F}, v{F}\nv_mul_f32 v{m2}, v{F+1}, v{F+1}")
    for e in range(2, 32):
        k(f"v_fmac_f32 v{pr+1 if e%2==0 else m2}, v{F+e}, v{F+e}")
    k(f"v_add_f32 v{pr+1}, v{pr+1}, v{m2}")
    red8(pr+1)
    k(f"v_lshlrev_b32 v{t}, 5, v{row}\ns_lshl_b32 s{sb}, s{sw}, 3\nv_add_u32 v{t2}, s{sb}, v{t}")
    k.ds(f"ds_write_b64 v{t2}, {vr(pr,2)}")
    k.wait(lg="all"); k("s_barrier")
    Q = X
    k.ds(f"ds_read_b128 {vr(Q,4)}, v{t}"); k.ds(f"ds_read_b128 {vr(Q+4,4)}, v{t} offset:16")
    k.wait(lg="all")
    mean = k.v(); var = k.v()
    k(f"v_add_f32 v{mean}, v{Q}, v{Q+2}\nv_add_f32 v{t}, v{Q+4}, v{Q+6}\nv_add_f32 v{mean}, v{mean}, v{t}\nv_mul_f32 v{mean}, 0.25, v{mean}".replace("0.25", f32(0.25)))
    k(f"v_add_f32 v{var}, v{Q+1}, v{Q+3}\nv_add_f32 v{t}, v{Q+5}, v{Q+7}\nv_add_f32 v{var}, v{var}, v{t}")
    k(f"v_mov_b32 v{t2}, 0")
    for j in range(4):
        k(f"v_sub_f32 v{t}, v{Q+2*j}, v{mean}\nv_fmac_f32 v{t2}, v{t}, v{t}")
    k(f"v_mul_f32 v{t2}, {f32(256.0)}, v{t2}\nv_add_f32 v{var}, v{var}, v{t2}")
    k(f"v_mul_f32 v{var}, {f32(1/1024)}, v{var}\nv_add_f32 v{var}, {f32(1e-5)}, v{var}\nv_rsq_f32 v{var}, v{var}")
    k(f"v_sub_f32 v{t}, v{pr}, v{mean}\nv_mul_f32 v{t}, v{t}, v{var}")
    for i in range(4):
        for j in range(8):
            e = F + 8*i + j
            k(f"v_fma_f32 v{e}, v{e}, v{var}, v{t}")
        for j in range(4):
            k(f"v_cvt_pk_bf16_f32 v{X+4*i+j}, v{F+8*i+2*j}, v{F+8*i+2*j+1}")
        k.vm(f"buffer_store_dwordx4 {vr(X+4*i,4)}, v{vo}, {sr(S_ws,4)}, s{so[i]} offen")
    finish(k)
    return k

def mainloop(k, NT, KPS, NST, R, DA, DW, ndma, dma, aload, wread, mfma, lname, mid=None):
    NB = DW + 1
    KS = KPS * NST
    nslots = KS * NT
    scnt = k.s()
    au = 0
    for j in range(min(R, NST)):
        for i in range(ndma): dma(j, i)
        for _ in range(KPS):
            if au < min(DA, KS): aload(au); au += 1
    while au < min(DA, KS): aload(au); au += 1
    if mid: mid()
    k.wait(vm=("dma", 0)); k("s_barrier")
    for i in range(min(DW, nslots)):
        u, t = divmod(i, NT); wread(u // KPS, u % KPS, t, i % NB, i)
    blocks = []; base = len(k.L); starts = [base]
    pend = []
    for i in range(nslots):
        u, t = divmod(i, NT)
        n = i + DW
        if n < nslots:
            un, tn = divmod(n, NT)
            if tn == 0 and un % KPS == 0:
                j = un // KPS
                starts.append(len(k.L))
                k.wait(vm=("dma", j)); k("s_barrier")
                if j >= 2 and j - 2 + R < NST:
                    pend += [(j - 2 + R, q) for q in range(ndma)]
            wread(un // KPS, un % KPS, tn, n % NB, n)
        k.wait(vm=("a", u) if t == 0 else None, lg=("w", i))
        mfma(u, t, i % NB)
        if t == NT - 1 and u + DA < KS: aload(u + DA)
        elif pend: dma(*pend.pop(0))
    assert not pend
    starts.append(len(k.L))
    blocks = [k.L[starts[i]:starts[i+1]] for i in range(len(starts) - 1)]
    del k.L[base:]
    period = R * KPS * NT
    period = math.lcm(R * KPS * NT, DA * NT, NB, 4 * NT) // (KPS * NT)
    reps = compress_loop(k, blocks, period, scnt, lname)
    return reps

class LdsBases:
    def __init__(self, k, base, maxoff):
        self.regs = [base]
        for w in range(1, maxoff // 65536 + 1):
            r = k.v(); k(f"v_add_u32 v{r}, {65536*w}, v{base}"); self.regs.append(r)
    def at(self, off):
        return f"v{self.regs[off // 65536]} offset:{off % 65536}"

def a_loader(k, S_ws, vA, Abuf, DA, base_off):
    sA = k.s()
    k(f"s_mov_b32 s{sA}, {base_off}")
    def aload(u):
        k.vm(f"buffer_load_dwordx4 {vr(Abuf + 4*(u % DA), 4)}, v{vA}, {sr(S_ws,4)}, s{sA} offen offset:{1024*(u%4)}", ("a", u))
        if u % 4 == 3: k(f"s_add_u32 s{sA}, s{sA}, 4096")
    return aload

def tr_lane_parts(k):
    lane = k.lane
    h = k.v(); g1 = k.v(); r = k.v(); cc = k.v()
    k(f"v_lshrrev_b32 v{h}, 5, v{lane}\nv_bfe_u32 v{g1}, v{lane}, 4, 1\nv_bfe_u32 v{r}, v{lane}, 2, 2\nv_and_b32 v{cc}, 3, v{lane}")
    return h, g1, r, cc

def tr_addr128(k, hrows, skh_bytes, spar):
    h, g1, r, cc = tr_lane_parts(k)
    a = k.v(); b = k.v(); t = k.v()
    k(f"v_mul_u32_u24 v{a}, {hrows}, v{h}\nv_add_u32 v{a}, v{a}, v{r}\nv_lshlrev_b32 v{a}, 7, v{a}")
    k(f"v_lshlrev_b32 v{t}, 5, v{g1}\nv_add_u32 v{a}, v{a}, v{t}")
    k(f"v_lshlrev_b32 v{t}, 3, v{cc}\nv_add_u32 v{a}, v{a}, v{t}")
    k(f"v_lshrrev_b32 v{t}, 1, v{r}\nv_lshlrev_b32 v{t}, 6, v{t}\nv_add_u32 v{a}, v{a}, v{t}")
    k(f"v_xor_b32 v{a}, s{spar}, v{a}\nv_add_u32 v{a}, s{skh_bytes}, v{a}\nv_xor_b32 v{b}, 64, v{a}")
    return a, b

def dma_voff128(k, pitch):
    lane = k.lane
    a = k.v(); t = k.v(); t2 = k.v(); sp = k.s()
    k(f"s_mov_b32 s{sp}, {pitch}")
    k(f"v_lshrrev_b32 v{t}, 3, v{lane}\nv_mul_lo_u32 v{a}, v{t}, s{sp}")
    k(f"v_and_b32 v{t}, 2, v{t}\nv_lshlrev_b32 v{t}, 1, v{t}\nv_and_b32 v{t2}, 7, v{lane}\nv_xor_b32 v{t}, v{t}, v{t2}\nv_lshlrev_b32 v{t}, 4, v{t}\nv_add_u32 v{a}, v{a}, v{t}")
    return a

def gen_qkv(name):
    R, KPS, NST, NT, DA, DW = 6, 2, 16, 6, 6, 3
    SLOT = 24576
    k = K(name, (256, 1, 1), (512, 1, 1), R * SLOT)
    start(k, 256)
    lane, sw = k.lane, k.sw
    S_w = k.s(4); S_ws = k.s(4)
    k.srd(S_w, k.P + P_WQKV, 6*MB); k.srd(S_ws, k.PWS, WS_SIZE)
    shp = k.s(); smt = k.s(); smbl = k.s(); skh = k.s(); smb = k.s(); st = k.s(); st2 = k.s()
    k(f"s_and_b32 s{shp}, s2, 7\ns_lshl_b32 s{shp}, s{shp}, 1\ns_bfe_u32 s{st}, s2, 0x10003\ns_add_u32 s{shp}, s{shp}, s{st}\ns_lshr_b32 s{smt}, s2, 4")
    k(f"s_and_b32 s{smbl}, s{sw}, 3\ns_lshr_b32 s{skh}, s{sw}, 2\ns_lshl_b32 s{smb}, s{smt}, 2\ns_add_u32 s{smb}, s{smb}, s{smbl}")
    vd = [dma_voff128(k, 6144), k.v(), k.v()]
    k(f"s_lshl_b32 s{st}, s{skh}, 9\ns_lshl_b32 s{st2}, s{smbl}, 3\ns_add_u32 s{st}, s{st}, s{st2}\ns_mul_i32 s{st}, s{st}, 6144\ns_lshl_b32 s{st2}, s{shp}, 7\ns_add_u32 s{st}, s{st}, s{st2}")
    k(f"v_add_u32 v{vd[0]}, s{st}, v{vd[0]}\nv_add_u32 v{vd[1]}, 2048, v{vd[0]}\nv_add_u32 v{vd[2]}, 4096, v{vd[0]}")
    sW = k.s(); sL = k.s()
    k(f"s_mov_b32 s{sW}, 0\ns_mul_i32 s{sL}, s{skh}, 12288\ns_lshl_b32 s{st}, s{smbl}, 10\ns_add_u32 s{sL}, s{sL}, s{st}")
    def dma(j, i):
        k(f"s_add_u32 m0, s{sL}, {(j % R)*SLOT + i*4096}")
        k.vm(f"buffer_load_dwordx4 v{vd[i]}, {sr(S_w,4)}, s{sW} offen lds", ("dma", j))
        if i == 2: k(f"s_add_u32 s{sW}, s{sW}, {32*6144}")
    vA = k.v()
    k(f"s_lshl_b32 s{st}, s{smb}, 16\ns_lshl_b32 s{st2}, s{skh}, 15\ns_add_u32 s{st}, s{st}, s{st2}\nv_lshlrev_b32 v{vA}, 4, v{lane}\nv_add_u32 v{vA}, s{st}, v{vA}")
    Abuf = k.v(4*DA, 4)
    aload = a_loader(k, S_ws, vA, Abuf, DA, WS_XN)
    skb = k.s(); spar = k.s()
    k(f"s_mul_i32 s{skb}, s{skh}, 12288\ns_lshl_b32 s{spar}, s{skh}, 6")
    ak, asend = tr_addr128(k, 8, skb, spar)
    BK = LdsBases(k, ak, R*SLOT - 1); BS = LdsBases(k, asend, R*SLOT - 1)
    Wb = k.v(4*(DW+1), 4)
    ACC = k.v(96, 4)
    def wread(j, uu, t, b, tag):
        B = BK if t < 3 else BS
        off = (j % R)*SLOT + (t % 3)*4096 + uu*2048
        k.ds(f"ds_read_b64_tr_b16 {vr(Wb+4*b,2)}, {B.at(off)}", ("w", tag))
        k.ds(f"ds_read_b64_tr_b16 {vr(Wb+4*b+2,2)}, {B.at(off+512)}", ("w", tag))
    def mfma(u, t, b):
        a = vr(Abuf + 4*(u % DA), 4); w = vr(Wb + 4*b, 4); d = vr(ACC + 16*t, 16)
        c = d if u > 0 else "0"
        if t % 3 == 2: k(f"v_mfma_f32_32x32x16_bf16 {d}, {a}, {w}, {c}")
        else: k(f"v_mfma_f32_32x32x16_bf16 {d}, {w}, {a}, {c}")
    mainloop(k, NT, KPS, NST, R, DA, DW, 3, dma, aload, wread, mfma, name + "_L")
    free = [(NST + i) % R for i in range(R - 2)]
    assert free == [4, 5, 0, 1]
    vw = k.v(); vrd = k.v()
    def region(dst, swv):
        k(f"s_mul_i32 s{dst}, s{swv}, 12288\ns_add_u32 s{dst}, s{dst}, {4*SLOT}\ns_cmp_ge_u32 s{dst}, {6*SLOT}\ns_cselect_b32 s{skb}, {6*SLOT}, 0\ns_sub_u32 s{dst}, s{dst}, s{skb}")
    region(st, sw)
    k(f"s_xor_b32 s{spar}, s{sw}, 4"); region(st2, spar)
    k(f"v_lshlrev_b32 v{vw}, 4, v{lane}\nv_add_u32 v{vrd}, s{st2}, v{vw}\nv_add_u32 v{vw}, s{st}, v{vw}")
    for i in range(12):
        k.ds(f"ds_write_b128 v{vw}, {vr(ACC+48+4*i,4)} offset:{1024*i}")
    k.wait(lg="all"); k("s_barrier")
    for i in range(12):
        k.ds(f"ds_read_b128 {vr(ACC+48+4*i,4)}, v{vrd} offset:{1024*i}", i)
    shd = k.s(); sq = k.s(); skv = k.s()
    k(f"s_lshl_b32 s{shd}, s{shp}, 1\ns_add_u32 s{shd}, s{shd}, s{skh}\ns_lshl_b32 s{shd}, s{shd}, 6\ns_add_u32 s{shd}, s{shd}, s{smb}")
    k(f"s_lshl_b32 s{sq}, s{shd}, 11\ns_add_u32 s{sq}, s{sq}, {WS_Q}\ns_lshl_b32 s{skv}, s{shd}, 12\ns_add_u32 s{skv}, s{skv}, {WS_KV}")
    k(f"v_lshlrev_b32 v{vw}, 4, v{lane}")
    sc = k.s(); k(f"s_mov_b32 s{sc}, {f32(32**-0.5 * math.log2(math.e))}")
    for tt in range(3):
        for hf in range(2):
            i0 = 16*tt + 8*hf
            k.wait(lg=i0//4 + 1)
            for e in range(8):
                k(f"v_add_f32 v{ACC+i0+e}, v{ACC+i0+e}, v{ACC+48+i0+e}")
            if tt == 0:
                for e in range(8): k(f"v_mul_f32 v{ACC+i0+e}, s{sc}, v{ACC+i0+e}")
            o = Wb + 4*((2*tt+hf) % (DW+1))
            for e in range(4):
                k(f"v_cvt_pk_bf16_f32 v{o+e}, v{ACC+i0+2*e}, v{ACC+i0+2*e+1}")
            if tt == 0: k.vm(f"buffer_store_dwordx4 {vr(o,4)}, v{vw}, {sr(S_ws,4)}, s{sq} offen offset:{1024*hf}")
            else: k.vm(f"buffer_store_dwordx4 {vr(o,4)}, v{vw}, {sr(S_ws,4)}, s{skv} offen offset:{2048*(tt-1)+1024*hf}")
    finish(k)
    return k

def gen_res(name, KTOT, wptr, a_off, is_down):
    R, KPS, NT, DA, DW = 4, 4, 2, 16, 3
    KSH = KTOT // 32
    NST = KSH // KPS
    SLOT = 16384
    k = K(name, (256, 1, 1), (512, 1, 1), R * SLOT + 32768)
    start(k, 256)
    lane, sw = k.lane, k.sw
    S_w = k.s(4); S_ws = k.s(4); S_x = k.s(4)
    k.srd(S_w, k.P + wptr, KTOT * 2048); k.srd(S_ws, k.PWS, WS_SIZE)
    k.srd(S_x, k.P + (P_OUT if is_down else P_X), 4*MB)
    smt = k.s(); snt = k.s(); smbl = k.s(); skh = k.s(); smb = k.s(); st = k.s(); st2 = k.s()
    k(f"s_and_b32 s{smt}, s2, 3\ns_lshl_b32 s{smt}, s{smt}, 2\ns_bfe_u32 s{st}, s2, 0x20003\ns_add_u32 s{smt}, s{smt}, s{st}")
    k(f"s_bfe_u32 s{snt}, s2, 0x10002\ns_lshl_b32 s{snt}, s{snt}, 3\ns_lshr_b32 s{st}, s2, 5\ns_add_u32 s{snt}, s{snt}, s{st}")
    k(f"s_and_b32 s{smbl}, s{sw}, 3\ns_lshr_b32 s{skh}, s{sw}, 2\ns_lshl_b32 s{smb}, s{smt}, 2\ns_add_u32 s{smb}, s{smb}, s{smbl}")
    vd = [dma_voff128(k, 2048), k.v()]
    k(f"s_mul_i32 s{st}, s{skh}, {KTOT//2}\ns_lshl_b32 s{st2}, s{smbl}, 4\ns_add_u32 s{st}, s{st}, s{st2}\ns_lshl_b32 s{st}, s{st}, 11\ns_lshl_b32 s{st2}, s{snt}, 7\ns_add_u32 s{st}, s{st}, s{st2}")
    k(f"v_add_u32 v{vd[0]}, s{st}, v{vd[0]}\nv_add_u32 v{vd[1]}, {8*2048}, v{vd[0]}")
    sW = k.s(); sL = k.s()
    k(f"s_mov_b32 s{sW}, 0\ns_lshl_b32 s{sL}, s{sw}, 11")
    def dma(j, i):
        k(f"s_add_u32 m0, s{sL}, {(j % R)*SLOT + i*1024}")
        k.vm(f"buffer_load_dwordx4 v{vd[i]}, {sr(S_w,4)}, s{sW} offen lds", ("dma", j))
        if i == 1: k(f"s_add_u32 s{sW}, s{sW}, {64*2048}")
    vA = k.v()
    k(f"s_mul_i32 s{st}, s{smb}, {KTOT//16*1024}\ns_mul_i32 s{st2}, s{skh}, {KSH*1024}\ns_add_u32 s{st}, s{st}, s{st2}\nv_lshlrev_b32 v{vA}, 4, v{lane}\nv_add_u32 v{vA}, s{st}, v{vA}")
    Abuf = k.v(4*DA, 4)
    aload = a_loader(k, S_ws, vA, Abuf, DA, a_off)
    skb = k.s(); spar = k.s()
    k(f"s_lshl_b32 s{skb}, s{skh}, 13\ns_lshl_b32 s{spar}, s{skh}, 6")
    ak, asend = tr_addr128(k, 4, skb, spar)
    Wb = k.v(4*(DW+1), 4)
    ACC = k.v(32, 4)
    RES = k.v(8, 4)
    vx = k.v(); vT = k.v(); sh = k.s(); t = k.v()
    k(f"s_lshl_b32 s{st}, s{smb}, 16\ns_lshl_b32 s{st2}, s{snt}, 7\ns_add_u32 s{st}, s{st}, s{st2}\ns_add_u32 s{st}, s{st}, s{spar}")
    k(f"v_and_b32 v{vx}, 31, v{lane}\nv_lshlrev_b32 v{vx}, 11, v{vx}\nv_lshrrev_b32 v{t}, 5, v{lane}\nv_lshlrev_b32 v{t}, {4 if is_down else 3}, v{t}\nv_add_u32 v{vx}, v{vx}, v{t}\nv_add_u32 v{vx}, s{st}, v{vx}")
    k(f"s_lshl_b32 s{sh}, s{smb}, 6\ns_lshl_b32 s{st2}, s{snt}, 2\ns_add_u32 s{sh}, s{sh}, s{st2}\ns_lshl_b32 s{st2}, s{skh}, 1\ns_add_u32 s{sh}, s{sh}, s{st2}\ns_lshl_b32 s{sh}, s{sh}, 10\ns_add_u32 s{sh}, s{sh}, {WS_H}")
    k(f"v_lshlrev_b32 v{vT}, 4, v{lane}")
    def mid():
        if is_down:
            for i in range(2): k.vm(f"buffer_load_dwordx4 {vr(RES+4*i,4)}, v{vT}, {sr(S_ws,4)}, s{sh} offen offset:{1024*i}", "res")
        else:
            for j in range(4): k.vm(f"buffer_load_dwordx2 {vr(RES+2*j,2)}, v{vx}, {sr(S_x,4)}, 0 offen offset:{16*j}", "res")
    def wread(j, uu, t, b, tag):
        B = ak if t == 0 else asend
        off = (j % R)*SLOT + uu*2048
        k.ds(f"ds_read_b64_tr_b16 {vr(Wb+4*b,2)}, v{B} offset:{off}", ("w", tag))
        k.ds(f"ds_read_b64_tr_b16 {vr(Wb+4*b+2,2)}, v{B} offset:{off+1024}", ("w", tag))
    def mfma(u, t, b):
        a = vr(Abuf + 4*(u % DA), 4); w = vr(Wb + 4*b, 4); d = vr(ACC + 16*t, 16)
        c = d if u > 0 else "0"
        k(f"v_mfma_f32_32x32x16_bf16 {d}, {w}, {a}, {c}")
    mainloop(k, NT, KPS, NST, R, DA, DW, 2, dma, aload, wread, mfma, name + "_L", mid)
    vw = k.v(); vrd = k.v()
    k(f"s_lshl_b32 s{st}, s{sw}, 12\ns_add_u32 s{st}, s{st}, {R*SLOT}\ns_xor_b32 s{st2}, s{st}, {4*4096}")
    assert (R*SLOT) % (8*4096) == 0
    k(f"v_add_u32 v{vw}, s{st}, v{vT}\nv_add_u32 v{vrd}, s{st2}, v{vT}")
    for i in range(4): k.ds(f"ds_write_b128 v{vw}, {vr(ACC+16+4*i,4)} offset:{1024*i}")
    k.wait(lg="all"); k("s_barrier")
    for i in range(4): k.ds(f"ds_read_b128 {vr(ACC+16+4*i,4)}, v{vrd} offset:{1024*i}", i)
    k.wait(vm="res")
    F = Abuf
    for e in range(8):
        k(f"v_lshlrev_b32 v{F+2*e}, 16, v{RES+e}\nv_and_b32 v{F+2*e+1}, 0xffff0000, v{RES+e}")
    for e in range(16): k(f"v_add_f32 v{ACC+e}, v{ACC+e}, v{F+e}")
    for hf in range(2):
        k.wait(lg=2*hf+1)
        for e in range(8): k(f"v_add_f32 v{ACC+8*hf+e}, v{ACC+8*hf+e}, v{ACC+16+8*hf+e}")
        o = Wb + 4*hf
        for e in range(4): k(f"v_cvt_pk_bf16_f32 v{o+e}, v{ACC+8*hf+2*e}, v{ACC+8*hf+2*e+1}")
        if is_down:
            k(f"v_permlane32_swap_b32 v{o}, v{o+2}\nv_permlane32_swap_b32 v{o+1}, v{o+3}")
            k.vm(f"buffer_store_dwordx4 {vr(o,4)}, v{vx}, {sr(S_x,4)}, 0 offen offset:{32*hf}")
        else:
            k.vm(f"buffer_store_dwordx4 {vr(o,4)}, v{vT}, {sr(S_ws,4)}, s{sh} offen offset:{1024*hf}")
    finish(k)
    return k

def gen_ffn1(name):
    R, KPS, NST, NT, DA, DW = 4, 4, 16, 7, 8, 3
    UPO = 14336 + 128
    SLOT = 28928
    k = K(name, (256, 1, 1), (512, 1, 1), R * SLOT)
    start(k, 256)
    lane, sw = k.lane, k.sw
    S_w = k.s(4); S_ws = k.s(4)
    smat = k.s(); swq = k.s(); snt = k.s(); smb = k.s(); st = k.s(); st2 = k.s()
    k(f"s_lshr_b32 s{smat}, s{sw}, 2\ns_and_b32 s{swq}, s{sw}, 3")
    k(f"s_cmp_eq_u32 s{smat}, 0\ns_cselect_b32 s{S_w}, s{k.P+P_WG}, s{k.P+P_WU}\ns_cselect_b32 s{S_w+1}, s{k.P+P_WG+1}, s{k.P+P_WU+1}\ns_mov_b32 s{S_w+2}, {7*MB}\ns_mov_b32 s{S_w+3}, 0x20000")
    k.srd(S_ws, k.PWS, WS_SIZE)
    k(f"s_and_b32 s{snt}, s2, 7\ns_lshl_b32 s{snt}, s{snt}, 2\ns_bfe_u32 s{st}, s2, 0x20003\ns_add_u32 s{snt}, s{snt}, s{st}")
    k(f"s_lshr_b32 s{smb}, s2, 5\ns_lshl_b32 s{smb}, s{smb}, 3\ns_add_u32 s{smb}, s{smb}, s{sw}")
    vd = [k.v() for _ in range(4)]; q = k.v(); rr = k.v(); t = k.v(); sm = k.s(); sp = k.s()
    k(f"s_mov_b32 s{sm}, 4682\ns_mov_b32 s{sp}, 7168")
    k(f"s_mul_i32 s{st}, s{swq}, {16*7168}\ns_mul_i32 s{st2}, s{snt}, 224\ns_add_u32 s{st}, s{st}, s{st2}")
    for i in range(4):
        k(f"v_add_u32 v{q}, {64*i}, v{lane}\nv_mul_lo_u32 v{rr}, v{q}, s{sm}\nv_lshrrev_b32 v{rr}, 16, v{rr}")
        k(f"v_mul_u32_u24 v{t}, 14, v{rr}\nv_sub_u32 v{t}, v{q}, v{t}\nv_lshlrev_b32 v{t}, 4, v{t}\nv_mul_lo_u32 v{rr}, v{rr}, s{sp}\nv_add3_u32 v{vd[i]}, v{rr}, v{t}, s{st}")
    for qq in range(256): assert (qq*4682) >> 16 == qq // 14
    sW = k.s(); sL = k.s()
    k(f"s_mov_b32 s{sW}, 0\ns_mul_i32 s{sL}, s{smat}, {UPO}\ns_mul_i32 s{st}, s{swq}, 3584\ns_add_u32 s{sL}, s{sL}, s{st}")
    def dma(j, i):
        k(f"s_add_u32 m0, s{sL}, {(j % R)*SLOT + i*1024}")
        if i == 3: k("s_mov_b32 exec_hi, 0")
        k.vm(f"buffer_load_dwordx4 v{vd[i]}, {sr(S_w,4)}, s{sW} offen lds", ("dma", j))
        if i == 3: k(f"s_mov_b32 exec_hi, -1\ns_add_u32 s{sW}, s{sW}, {64*7168}")
    vA = k.v()
    k(f"s_lshl_b32 s{st}, s{smb}, 16\nv_lshlrev_b32 v{vA}, 4, v{lane}\nv_add_u32 v{vA}, s{st}, v{vA}")
    Abuf = k.v(4*DA, 4)
    aload = a_loader(k, S_ws, vA, Abuf, DA, WS_HN)
    h, g1, r, cc = tr_lane_parts(k)
    a = k.v()
    k(f"v_lshl_add_u32 v{a}, v{h}, 2, v{r}\nv_mul_u32_u24 v{a}, 224, v{a}\nv_lshrrev_b32 v{t}, 1, v{cc}\nv_mul_u32_u24 v{t}, {UPO}, v{t}\nv_add_u32 v{a}, v{a}, v{t}")
    k(f"v_lshlrev_b32 v{t}, 4, v{g1}\nv_add_u32 v{a}, v{a}, v{t}\nv_and_b32 v{t}, 1, v{cc}\nv_lshlrev_b32 v{t}, 3, v{t}\nv_add_u32 v{a}, v{a}, v{t}")
    B = LdsBases(k, a, R*SLOT - 1)
    Wb = k.v(4*(DW+1), 4)
    ACC = k.v(112, 4)
    def wread(j, uu, t, b, tag):
        off = (j % R)*SLOT + uu*3584 + t*32
        k.ds(f"ds_read_b64_tr_b16 {vr(Wb+4*b,2)}, {B.at(off)}", ("w", tag))
        k.ds(f"ds_read_b64_tr_b16 {vr(Wb+4*b+2,2)}, {B.at(off+1792)}", ("w", tag))
    def mfma(u, t, b):
        aa = vr(Abuf + 4*(u % DA), 4); w = vr(Wb + 4*b, 4); d = vr(ACC + 16*t, 16)
        c = d if u > 0 else "0"
        k(f"v_mfma_f32_32x32x16_bf16 {d}, {w}, {aa}, {c}")
    mainloop(k, NT, KPS, NST, R, DA, DW, 4, dma, aload, wread, mfma, name + "_L")
    so = k.s(); sc = k.s(); vT = k.v()
    k(f"s_mul_i32 s{so}, s{smb}, 224\ns_mul_i32 s{st}, s{snt}, 7\ns_add_u32 s{so}, s{so}, s{st}\ns_lshl_b32 s{so}, s{so}, 10\ns_add_u32 s{so}, s{so}, {WS_ACT}")
    k(f"v_lshlrev_b32 v{vT}, 4, v{lane}\ns_mov_b32 s{sc}, {f32(-math.log2(math.e))}")
    E = Abuf
    for tt in range(7):
        D = ACC + 16*tt
        pairs = [(D+i, D+4+i) for i in range(4)] + [(D+8+i, D+12+i) for i in range(4)]
        for e, (g, u) in enumerate(pairs): k(f"v_mul_f32 v{E+e}, s{sc}, v{g}")
        for e in range(8): k(f"v_exp_f32 v{E+e}, v{E+e}")
        for e, (g, u) in enumerate(pairs): k(f"v_mul_f32 v{g}, v{g}, v{u}")
        for e in range(8): k(f"v_add_f32 v{E+e}, 1.0, v{E+e}")
        for e in range(8): k(f"v_rcp_f32 v{E+e}, v{E+e}")
        for e, (g, u) in enumerate(pairs): k(f"v_mul_f32 v{g}, v{g}, v{E+e}")
        o = Wb + 4*(tt % (DW+1))
        for e in range(4): k(f"v_cvt_pk_bf16_f32 v{o+e}, v{pairs[2*e][0]}, v{pairs[2*e+1][0]}")
        k.vm(f"buffer_store_dwordx4 {vr(o,4)}, v{vT}, {sr(S_ws,4)}, s{so} offen offset:{1024*(tt%4)}")
        if tt == 3: k(f"s_add_u32 s{so}, s{so}, 4096")
    finish(k)
    return k

def gen_attn(name):
    R, TPS, NST = 4, 4, 16
    SLOT = 16384
    NTILE = TPS * NST
    k = K(name, (256, 1, 1), (512, 1, 1), R * SLOT)
    start(k, 256)
    lane, sw = k.lane, k.sw
    S_ws = k.s(4); k.srd(S_ws, k.PWS, WS_SIZE)
    shd = k.s(); sqb = k.s(); st = k.s(); st2 = k.s(); sKV = k.s(); sKV0 = k.s(); sL = k.s(); scnt = k.s()
    k(f"s_and_b32 s{shd}, s2, 7\ns_lshl_b32 s{shd}, s{shd}, 2\ns_bfe_u32 s{st}, s2, 0x20003\ns_add_u32 s{shd}, s{shd}, s{st}")
    k(f"s_lshr_b32 s{sqb}, s2, 5\ns_lshl_b32 s{sqb}, s{sqb}, 3\ns_add_u32 s{sqb}, s{sqb}, s{sw}")
    vT = k.v(); vD = k.v(); t = k.v(); t2 = k.v()
    k(f"v_lshlrev_b32 v{vT}, 4, v{lane}\ns_lshl_b32 s{sL}, s{sw}, 11\nv_add_u32 v{vD}, s{sL}, v{vT}")
    k(f"s_lshl_b32 s{sKV0}, s{shd}, 18\ns_add_u32 s{sKV0}, s{sKV0}, {WS_KV}\ns_mov_b32 s{sKV}, s{sKV0}")
    def dma(j):
        k(f"s_add_u32 m0, s{sL}, {(j % R)*SLOT}")
        k.vm(f"buffer_load_dwordx4 v{vD}, {sr(S_ws,4)}, s{sKV} offen lds", ("dma", j))
        k.vm(f"buffer_load_dwordx4 v{vD}, {sr(S_ws,4)}, s{sKV} offen offset:1024 lds", ("dma", j))
        k(f"s_add_u32 s{sKV}, s{sKV}, {SLOT}")
    Q = k.v(8, 4); S = [k.v(16, 4), k.v(16, 4)]; NEG = k.v(16, 4); O = k.v(16, 4); Lr = k.v(4, 4); ONE = k.v(4, 4)
    Pf = k.v(8, 4); Kb = [k.v(8, 4), k.v(8, 4)]; Vb = [k.v(8, 4), k.v(8, 4)]
    dma(0)
    k(f"s_lshl_b32 s{st}, s{shd}, 6\ns_add_u32 s{st}, s{st}, s{sqb}\ns_lshl_b32 s{st}, s{st}, 11\ns_add_u32 s{st}, s{st}, {WS_Q}")
    for i in range(2): k.vm(f"buffer_load_dwordx4 {vr(Q+4*i,4)}, v{vT}, {sr(S_ws,4)}, s{st} offen offset:{1024*i}", "q")
    for j in range(1, R): dma(j)
    k(f"v_lshrrev_b32 v{t}, 2, v{lane}\nv_lshrrev_b32 v{t2}, 4, v{lane}\nv_xor_b32 v{t}, v{t}, v{t2}\nv_and_b32 v{t}, 1, v{t}\nv_cmp_eq_u32 vcc, 0, v{t}")
    k(f"v_mov_b32 v{t2}, 0x3f803f80")
    for e in range(4): k(f"v_cndmask_b32 v{ONE+e}, 0, v{t2}, vcc")
    def kread(T):
        off = ((T // TPS) % R)*SLOT + (T % TPS)*4096
        for i in range(2): k.ds(f"ds_read_b128 {vr(Kb[T%2]+4*i,4)}, v{vT} offset:{off+1024*i}", ("k", T))
    def vread(T):
        off = ((T // TPS) % R)*SLOT + (T % TPS)*4096 + 2048
        for i in range(2): k.ds(f"ds_read_b128 {vr(Vb[T%2]+4*i,4)}, v{vT} offset:{off+1024*i}", ("v", T))
    def qk(T, i, c=None):
        d = vr(S[T%2], 16)
        cc = (vr(NEG, 16) if c is None else c) if i == 0 else d
        k(f"v_mfma_f32_32x32x16_bf16 {d}, {vr(Kb[T%2]+4*i,4)}, {vr(Q+4*i,4)}, {cc}")
    def rowmax16(src, dst):
        k(f"v_max3_f32 v{dst}, v{src}, v{src+1}, v{src+2}")
        for e in range(3, 15, 2): k(f"v_max3_f32 v{dst}, v{dst}, v{src+e}, v{src+e+1}")
        k(f"v_max_f32 v{dst}, v{dst}, v{src+15}")
    k.wait(vm="q"); k("s_barrier")
    kread(0); kread(1); vread(0)
    k.wait(lg=("k", 0))
    qk(0, 0, "0"); qk(0, 1)
    rowmax16(S[0], t)
    k(f"v_mov_b32 v{t2}, v{t}\nv_permlane32_swap_b32 v{t}, v{t2}\nv_max_f32 v{t}, v{t}, v{t2}")
    for e in range(16): k(f"v_sub_f32 v{NEG+e}, 0, v{t}")
    for e in range(16): k(f"v_sub_f32 v{S[0]+e}, v{S[0]+e}, v{t}")
    base = len(k.L); starts = [base]
    for T in range(NTILE):
        s = S[T % 2]
        pend = None
        if T + 2 < NTILE:
            if (T + 2) % TPS == 0:
                j = (T + 2) // TPS
                starts.append(len(k.L))
                k.wait(vm=("dma", j)); k("s_barrier")
                if j >= 2 and j - 2 + R < NST: pend = j - 2 + R
            kread(T + 2)
        if T + 1 < NTILE:
            vread(T + 1)
            k.wait(lg=("k", T + 1)); qk(T + 1, 0)
        for e in range(8): k(f"v_exp_f32 v{s+e}, v{s+e}")
        if T + 1 < NTILE: qk(T + 1, 1)
        for e in range(4): k(f"v_cvt_pk_bf16_f32 v{Pf+e}, v{s+2*e}, v{s+2*e+1}")
        if pend is not None: dma(pend)
        for e in range(8, 12): k(f"v_exp_f32 v{s+e}, v{s+e}")
        k.wait(lg=("v", T))
        k(f"v_mfma_f32_32x32x16_bf16 {vr(O,16)}, {vr(Vb[T%2],4)}, {vr(Pf,4)}, {vr(O,16) if T else '0'}")
        for e in range(12, 16): k(f"v_exp_f32 v{s+e}, v{s+e}")
        k(f"v_mfma_f32_16x16x32_bf16 {vr(Lr,4)}, {vr(ONE,4)}, {vr(Pf,4)}, {vr(Lr,4) if T else '0'}")
        for e in range(4, 8): k(f"v_cvt_pk_bf16_f32 v{Pf+e}, v{s+2*e}, v{s+2*e+1}")
        k(f"v_mfma_f32_32x32x16_bf16 {vr(O,16)}, {vr(Vb[T%2]+4,4)}, {vr(Pf+4,4)}, {vr(O,16)}")
        k(f"v_mfma_f32_16x16x32_bf16 {vr(Lr,4)}, {vr(ONE,4)}, {vr(Pf+4,4)}, {vr(Lr,4)}")
    starts.append(len(k.L))
    blocks = [k.L[starts[i]:starts[i+1]] for i in range(len(starts) - 1)]
    del k.L[base:]
    compress_loop(k, blocks, R, scnt, name + "_L")
    k.label(name + "_CHK")
    k(f"v_max3_f32 v{t}, |v{O}|, |v{O+1}|, |v{O+2}|")
    for e in range(3, 15, 2): k(f"v_max3_f32 v{t}, v{t}, |v{O+e}|, |v{O+e+1}|")
    k(f"v_max_f32 v{t}, v{t}, |v{O+15}|".replace("v_max_f32", "v_max_f32_e64"))
    k(f"s_mov_b32 s{st}, {f32(2.0**100)}\ns_mov_b32 s{st2}, 0x7f7fffff")
    k(f"v_cmp_nle_f32 vcc, v{Lr}, s{st}".replace("v_cmp_nle_f32", "v_cmp_nle_f32_e64"))
    sx = k.s(2)
    k(f"v_cmp_nle_f32_e64 {sr(sx,2)}, v{t}, s{st2}")
    k(f"v_add_f32 v{t2}, v{O}, v{O+1}")
    for e in range(2, 16): k(f"v_add_f32 v{t2}, v{t2}, v{O+e}")
    sy = k.s(2)
    k(f"v_cmp_u_f32_e64 {sr(sy,2)}, v{t2}, v{t2}")
    k(f"s_or_b64 vcc, vcc, {sr(sx,2)}\ns_or_b64 vcc, vcc, {sr(sy,2)}\ns_cbranch_scc1 {name}_SLOW")
    k.label(name + "_OUT")
    k(f"v_rcp_f32 v{t}, v{Lr}")
    k(f"s_lshl_b32 s{st}, s{sqb}, 6\ns_lshl_b32 s{st2}, s{shd}, 1\ns_add_u32 s{st}, s{st}, s{st2}\ns_lshl_b32 s{st}, s{st}, 10\ns_add_u32 s{st}, s{st}, {WS_O}")
    for e in range(16): k(f"v_mul_f32 v{O+e}, v{O+e}, v{t}")
    for e in range(8): k(f"v_cvt_pk_bf16_f32 v{Pf+e}, v{O+2*e}, v{O+2*e+1}")
    for i in range(2): k.vm(f"buffer_store_dwordx4 {vr(Pf+4*i,4)}, v{vT}, {sr(S_ws,4)}, s{st} offen offset:{1024*i}")
    k("s_endpgm")
    k.vmq = []; k.lgq = []
    k.label(name + "_SLOW")
    mx = k.v()
    k(f"v_mov_b32 v{mx}, 0xff800000\ns_mov_b32 s{sKV}, s{sKV0}\ns_mov_b32 s{scnt}, {NTILE}")
    k.label(name + "_S1")
    for i in range(2): k.vm(f"buffer_load_dwordx4 {vr(Kb[0]+4*i,4)}, v{vT}, {sr(S_ws,4)}, s{sKV} offen offset:{1024*i}")
    k.wait(vm="all")
    qk(0, 0, "0"); qk(0, 1)
    rowmax16(S[0], t)
    k(f"v_max_f32 v{mx}, v{mx}, v{t}")
    k(f"s_add_u32 s{sKV}, s{sKV}, 4096\ns_sub_u32 s{scnt}, s{scnt}, 1\ns_cmp_lg_u32 s{scnt}, 0\ns_cbranch_scc1 {name}_S1")
    k(f"v_mov_b32 v{t2}, v{mx}\nv_permlane32_swap_b32 v{mx}, v{t2}\nv_max_f32 v{mx}, v{mx}, v{t2}")
    for e in range(16): k(f"v_sub_f32 v{NEG+e}, 0, v{mx}")
    for e in range(16): k(f"v_mov_b32 v{O+e}, 0")
    for e in range(4): k(f"v_mov_b32 v{Lr+e}, 0")
    k(f"s_mov_b32 s{sKV}, s{sKV0}\ns_mov_b32 s{scnt}, {NTILE}")
    k.label(name + "_S2")
    for i in range(2): k.vm(f"buffer_load_dwordx4 {vr(Kb[0]+4*i,4)}, v{vT}, {sr(S_ws,4)}, s{sKV} offen offset:{1024*i}")
    for i in range(2): k.vm(f"buffer_load_dwordx4 {vr(Vb[0]+4*i,4)}, v{vT}, {sr(S_ws,4)}, s{sKV} offen offset:{2048+1024*i}")
    k.wait(vm="all")
    qk(0, 0); qk(0, 1)
    s = S[0]
    for e in range(16): k(f"v_exp_f32 v{s+e}, v{s+e}")
    for e in range(8): k(f"v_cvt_pk_bf16_f32 v{Pf+e}, v{s+2*e}, v{s+2*e+1}")
    for i in range(2):
        k(f"v_mfma_f32_32x32x16_bf16 {vr(O,16)}, {vr(Vb[0]+4*i,4)}, {vr(Pf+4*i,4)}, {vr(O,16)}")
        k(f"v_mfma_f32_16x16x32_bf16 {vr(Lr,4)}, {vr(ONE,4)}, {vr(Pf+4*i,4)}, {vr(Lr,4)}")
    k(f"s_add_u32 s{sKV}, s{sKV}, 4096\ns_sub_u32 s{scnt}, s{scnt}, 1\ns_cmp_lg_u32 s{scnt}, 0\ns_cbranch_scc1 {name}_S2")
    k(f"s_nop 15\ns_branch {name}_OUT")
    finish(k)
    return k

def build(out):
    ks = [gen_ln("ln1_kernel", False, 0, WS_XN), gen_qkv("qkv_kernel"), gen_attn("attn_kernel"),
          gen_res("wo_kernel", 1024, P_WO, WS_O, False), gen_ln("ln2_kernel", True, WS_H, WS_HN),
          gen_ffn1("ffn1_kernel"), gen_res("ffn2_kernel", 3584, P_WD, WS_ACT, True)]
    ref = open("cdna_kernels/" + NAME + ".s.ref").read().split("\n")
    head = [l for l in ref if l.startswith(";") and not l.startswith("; @launch") and not l.startswith("; Override") and not l.startswith("; grid=")]
    txt = "\n".join(head) + "\n"
    for k in ks:
        txt += f"; @launch kernel={k.name} grid=({k.grid[0]},{k.grid[1]},{k.grid[2]}) block=({k.block[0]},{k.block[1]},{k.block[2]}) lds={k.lds}\n"
    txt += '.amdgcn_target "amdgcn-amd-amdhsa--gfx950"\n'
    descs = ""
    for k in ks:
        c, d = k.text(); txt += c; descs += d
        print(k.name, "vgpr", k.nv, "lines", c.count("\n"), "lds", k.lds, file=sys.stderr)
    txt += descs
    open(out, "w").write(txt)

if __name__ == "__main__":
    build(sys.argv[1] if len(sys.argv) > 1 else "cdna_kernels/" + NAME + ".s")
```

```python
import sys, math
from asmlib import *

NAME = "sequential_preLN__mha_block__swiglu_ffn__prompt"
MB = 1 << 20
WS_XN, WS_Q, WS_KV, WS_O, WS_H, WS_HN, WS_ACT = 0, 4*MB, 8*MB, 16*MB, 20*MB, 24*MB, 28*MB
WS_SIZE = 64*MB
P_X, P_WQKV, P_WO, P_BX, P_WG, P_WU, P_WD, P_OUT = 0, 2, 4, 6, 8, 10, 12, 14
def f32(x):
    import struct
    return "0x%08x" % struct.unpack("<I", struct.pack("<f", x))[0]

def start(k, nwg):
    k(f"s_cmp_ge_u32 s2, {nwg}\ns_cbranch_scc1 {k.name}_END")
    P = k.s(16, 4); P2 = k.s(4, 4)
    k(f"s_load_dwordx16 {sr(P,16)}, s[0:1], 0\ns_load_dwordx4 {sr(P2,4)}, s[0:1], 64")
    lane = k.v(); sw = k.s()
    k(f"v_lshrrev_b32 v{lane}, 6, v0")
    k(f"v_readfirstlane_b32 s{sw}, v{lane}")
    k(f"v_and_b32 v{lane}, 63, v0")
    k.P = P; k.PWS = P2 + 2; k.lane = lane; k.sw = sw
    tstart(k)
    k("s_waitcnt lgkmcnt(0)")
TIMING = False
WS_TIM = 60*MB
KIDX = [0]
NKERN = 7
def tstart(k):
    if not TIMING: return
    k.T = k.s(8, 4); k.kidx = KIDX[0]; KIDX[0] += 1
    k(f"s_memtime {sr(k.T,2)}\ns_memrealtime {sr(k.T+2,2)}")
def tend(k):
    if not TIMING: return
    if TIMING == 2: return dbg_end(k)
    T = k.T
    if not hasattr(k, "TV"): k.TV = k.v(4, 4); k.TA = k.v(); k.TS = k.s(4, 4)
    k(f"s_waitcnt vmcnt(0)\ns_memtime {sr(T+4,2)}\ns_memrealtime {sr(T+6,2)}\ns_waitcnt lgkmcnt(0)")
    k.srd(k.TS, k.PWS, WS_SIZE)
    k(f"v_mov_b32 v{k.TV}, s{T}\nv_mov_b32 v{k.TV+1}, s{T+4}\nv_mov_b32 v{k.TV+2}, s{T+2}\nv_mov_b32 v{k.TV+3}, s{T+6}")
    k(f"s_lshl_b32 s{T}, s2, 3\ns_add_u32 s{T}, s{T}, s{k.sw}\ns_lshl_b32 s{T}, s{T}, 4\ns_add_u32 s{T}, s{T}, {WS_TIM + k.kidx*256*8*16}")
    k(f"v_mov_b32 v{k.TA}, 0\nbuffer_store_dwordx4 {vr(k.TV,4)}, v{k.TA}, {sr(k.TS,4)}, s{T} offen")
def dbg_end(k):
    T = k.T
    if not hasattr(k, "TV"): k.TV = k.v(4, 4); k.TA = k.v(); k.TS = k.s(4, 4)
    lab = f"{k.name}_DBG{k.uid}"; k.uid += 1
    k(f"s_waitcnt vmcnt(0)\ns_memrealtime {sr(T+6,2)}\ns_and_b32 s{T}, s2, 15\ns_or_b32 s{T}, s{T}, s{k.sw}\ns_cmp_lg_u32 s{T}, 0\ns_cbranch_scc1 {lab}")
    k(f"s_add_u32 s{k.TS}, s{k.PWS-2}, {512*(NKERN-1-k.kidx)}\ns_addc_u32 s{k.TS+1}, s{k.PWS-1}, 0\ns_mov_b32 s{k.TS+2}, 256\ns_mov_b32 s{k.TS+3}, 0x20000\ns_waitcnt lgkmcnt(0)")
    k(f"s_not_b32 s{T+2}, s{T+2}\nv_mov_b32 v{k.TV}, s{T+2}\nv_mov_b32 v{k.TV+1}, s{T+6}\nv_mov_b32 v{k.TA}, {8*k.kidx}\ns_mov_b64 exec, 1")
    k(f"buffer_atomic_umax v{k.TV}, v{k.TA}, {sr(k.TS,4)}, 0 offen\nbuffer_atomic_umax v{k.TV+1}, v{k.TA}, {sr(k.TS,4)}, 0 offen offset:4")
    k.label(lab)
def finish(k, endt=True):
    if endt: tend(k)
    k.label(f"{k.name}_END")
    k("s_endpgm")

def gen_ln(name, in_T, src_off, dst_off):
    k = K(name, (256, 1, 1), (256, 1, 1), 1024)
    start(k, 256)
    lane, sw = k.lane, k.sw
    S_in = k.s(4); S_ws = k.s(4)
    k.srd(S_ws, k.PWS, WS_SIZE)
    if not in_T: k.srd(S_in, k.P + P_X, 4*MB)
    row = k.v(); c = k.v(); vo = k.v(); vi = k.v(); t = k.v(); t2 = k.v()
    sa = k.s(); sb = k.s(); so = [k.s() for _ in range(4)]; si = [k.s() for _ in range(4)]
    k(f"v_lshrrev_b32 v{row}, 3, v{lane}\nv_and_b32 v{c}, 7, v{lane}")
    k(f"s_lshr_b32 s{sa}, s2, 2\ns_lshl_b32 s{sa}, s{sa}, 16\ns_lshl_b32 s{sb}, s{sw}, 14\ns_add_u32 s{sa}, s{sa}, s{sb}")
    k(f"s_and_b32 s{sb}, s2, 3\ns_lshl_b32 s{sb}, s{sb}, 7\ns_add_u32 s{sa}, s{sa}, s{sb}")
    k(f"v_lshrrev_b32 v{t}, 1, v{c}\nv_lshlrev_b32 v{t}, 10, v{t}\nv_and_b32 v{t2}, 1, v{c}\nv_lshlrev_b32 v{t2}, 9, v{t2}")
    k(f"v_add_u32 v{vo}, v{t}, v{t2}\nv_lshlrev_b32 v{t}, 4, v{row}\nv_add_u32 v{vo}, v{vo}, v{t}\nv_add_u32 v{vo}, s{sa}, v{vo}")
    X = k.v(16, 4); F = k.v(32, 4)
    for i in range(4):
        k(f"s_mov_b32 s{so[i]}, {dst_off + 4096*i}")
    if in_T:
        for i in range(4):
            k(f"s_mov_b32 s{si[i]}, {src_off + 4096*i}")
        for i in range(4):
            k.vm(f"buffer_load_dwordx4 {vr(X+4*i,4)}, v{vo}, {sr(S_ws,4)}, s{si[i]} offen", i)
    else:
        k(f"s_lshl_b32 s{sa}, s2, 14\ns_lshl_b32 s{sb}, s{sw}, 9\ns_add_u32 s{sa}, s{sa}, s{sb}")
        k(f"v_lshlrev_b32 v{vi}, 11, v{row}\nv_lshlrev_b32 v{t}, 4, v{c}\nv_add_u32 v{vi}, v{vi}, v{t}\nv_add_u32 v{vi}, s{sa}, v{vi}")
        for i in range(4):
            k.vm(f"buffer_load_dwordx4 {vr(X+4*i,4)}, v{vi}, {sr(S_in,4)}, 0 offen offset:{128*i}", i)
    sm = k.v(); m2 = k.v()
    for i in range(4):
        k.wait(vm=i)
        for j in range(4):
            r = 4*i + j
            k(f"v_lshlrev_b32 v{F+2*r}, 16, v{X+r}\nv_and_b32 v{F+2*r+1}, 0xffff0000, v{X+r}")
        for j in range(8):
            e = F + 8*i + j
            if i == 0 and j == 0: continue
            if i == 0 and j == 1: k(f"v_add_f32 v{sm}, v{F}, v{F+1}")
            elif j % 2 == 0: k(f"v_add_f32 v{sm}, v{sm}, v{e}")
            else:
                if i == 0 and j == 3: k(f"v_mov_b32 v{m2}, v{e}")
                else: k(f"v_add_f32 v{m2}, v{m2}, v{e}")
    k(f"v_add_f32 v{sm}, v{sm}, v{m2}")
    def red8(r):
        k(f"v_add_f32_dpp v{r}, v{r}, v{r} quad_perm:[1,0,3,2] row_mask:0xf bank_mask:0xf")
        k(f"v_add_f32_dpp v{r}, v{r}, v{r} quad_perm:[2,3,0,1] row_mask:0xf bank_mask:0xf")
        k(f"v_add_f32_dpp v{r}, v{r}, v{r} row_half_mirror row_mask:0xf bank_mask:0xf")
    red8(sm)
    pr = k.v(2, 2)
    k(f"v_mul_f32 v{pr}, {f32(1/256)}, v{sm}")
    for e in range(32): k(f"v_sub_f32 v{F+e}, v{F+e}, v{pr}")
    k(f"v_mul_f32 v{pr+1}, v{F}, v{F}\nv_mul_f32 v{m2}, v{F+1}, v{F+1}")
    for e in range(2, 32):
        k(f"v_fmac_f32 v{pr+1 if e%2==0 else m2}, v{F+e}, v{F+e}")
    k(f"v_add_f32 v{pr+1}, v{pr+1}, v{m2}")
    red8(pr+1)
    k(f"v_lshlrev_b32 v{t}, 5, v{row}\ns_lshl_b32 s{sb}, s{sw}, 3\nv_add_u32 v{t2}, s{sb}, v{t}")
    k.ds(f"ds_write_b64 v{t2}, {vr(pr,2)}")
    k.wait(lg="all"); k("s_barrier")
    Q = X
    k.ds(f"ds_read_b128 {vr(Q,4)}, v{t}"); k.ds(f"ds_read_b128 {vr(Q+4,4)}, v{t} offset:16")
    k.wait(lg="all")
    mean = k.v(); var = k.v()
    k(f"v_add_f32 v{mean}, v{Q}, v{Q+2}\nv_add_f32 v{t}, v{Q+4}, v{Q+6}\nv_add_f32 v{mean}, v{mean}, v{t}\nv_mul_f32 v{mean}, 0.25, v{mean}".replace("0.25", f32(0.25)))
    k(f"v_add_f32 v{var}, v{Q+1}, v{Q+3}\nv_add_f32 v{t}, v{Q+5}, v{Q+7}\nv_add_f32 v{var}, v{var}, v{t}")
    k(f"v_mov_b32 v{t2}, 0")
    for j in range(4):
        k(f"v_sub_f32 v{t}, v{Q+2*j}, v{mean}\nv_fmac_f32 v{t2}, v{t}, v{t}")
    k(f"v_mul_f32 v{t2}, {f32(256.0)}, v{t2}\nv_add_f32 v{var}, v{var}, v{t2}")
    k(f"v_mul_f32 v{var}, {f32(1/1024)}, v{var}\nv_add_f32 v{var}, {f32(1e-5)}, v{var}\nv_rsq_f32 v{var}, v{var}")
    k(f"v_sub_f32 v{t}, v{pr}, v{mean}\nv_mul_f32 v{t}, v{t}, v{var}")
    for i in range(4):
        for j in range(8):
            e = F + 8*i + j
            k(f"v_fma_f32 v{e}, v{e}, v{var}, v{t}")
        for j in range(4):
            k(f"v_cvt_pk_bf16_f32 v{X+4*i+j}, v{F+8*i+2*j}, v{F+8*i+2*j+1}")
        k.vm(f"buffer_store_dwordx4 {vr(X+4*i,4)}, v{vo}, {sr(S_ws,4)}, s{so[i]} offen")
    finish(k)
    return k

def mainloop(k, NT, KPS, NST, R, DA, DW, ndma, dma, aload, wread, mfma, lname, mid=None):
    NB = DW + 1
    KS = KPS * NST
    nslots = KS * NT
    scnt = k.s()
    au = 0
    for j in range(min(R, NST)):
        for i in range(ndma): dma(j, i)
        for _ in range(KPS):
            if au < min(DA, KS): aload(au); au += 1
    while au < min(DA, KS): aload(au); au += 1
    if mid: mid()
    k.wait(vm=("dma", 0)); k("s_barrier")
    for i in range(min(DW, nslots)):
        u, t = divmod(i, NT); wread(u // KPS, u % KPS, t, i % NB, i)
    blocks = []; base = len(k.L); starts = [base]
    pend = []
    for i in range(nslots):
        u, t = divmod(i, NT)
        n = i + DW
        if n < nslots:
            un, tn = divmod(n, NT)
            if tn == 0 and un % KPS == 0:
                j = un // KPS
                starts.append(len(k.L))
                k.wait(vm=("dma", j)); k("s_barrier")
                if j >= 2 and j - 2 + R < NST:
                    pend += [(j - 2 + R, q) for q in range(ndma)]
            wread(un // KPS, un % KPS, tn, n % NB, n)
        k.wait(vm=("a", u) if t == 0 else None, lg=("w", i))
        mfma(u, t, i % NB)
        if t == NT - 1 and u + DA < KS: aload(u + DA)
        elif pend: dma(*pend.pop(0))
    assert not pend
    starts.append(len(k.L))
    blocks = [k.L[starts[i]:starts[i+1]] for i in range(len(starts) - 1)]
    del k.L[base:]
    period = R * KPS * NT
    period = math.lcm(R * KPS * NT, DA * NT, NB, 4 * NT) // (KPS * NT)
    reps = compress_loop(k, blocks, period, scnt, lname)
    return reps

class LdsBases:
    def __init__(self, k, base, maxoff):
        self.regs = [base]
        for w in range(1, maxoff // 65536 + 1):
            r = k.v(); k(f"v_add_u32 v{r}, {65536*w}, v{base}"); self.regs.append(r)
    def at(self, off):
        return f"v{self.regs[off // 65536]} offset:{off % 65536}"

def a_loader(k, S_ws, vA, Abuf, DA, base_off):
    sA = k.s()
    k(f"s_mov_b32 s{sA}, {base_off}")
    def aload(u):
        k.vm(f"buffer_load_dwordx4 {vr(Abuf + 4*(u % DA), 4)}, v{vA}, {sr(S_ws,4)}, s{sA} offen offset:{1024*(u%4)}", ("a", u))
        if u % 4 == 3: k(f"s_add_u32 s{sA}, s{sA}, 4096")
    return aload

def tr_lane_parts(k):
    lane = k.lane
    h = k.v(); g1 = k.v(); r = k.v(); cc = k.v()
    k(f"v_lshrrev_b32 v{h}, 5, v{lane}\nv_bfe_u32 v{g1}, v{lane}, 4, 1\nv_bfe_u32 v{r}, v{lane}, 2, 2\nv_and_b32 v{cc}, 3, v{lane}")
    return h, g1, r, cc

def tr_addr128(k, hrows, skh_bytes, spar):
    h, g1, r, cc = tr_lane_parts(k)
    a = k.v(); b = k.v(); t = k.v()
    k(f"v_mul_u32_u24 v{a}, {hrows}, v{h}\nv_add_u32 v{a}, v{a}, v{r}\nv_lshlrev_b32 v{a}, 7, v{a}")
    k(f"v_lshlrev_b32 v{t}, 5, v{g1}\nv_add_u32 v{a}, v{a}, v{t}")
    k(f"v_lshlrev_b32 v{t}, 3, v{cc}\nv_add_u32 v{a}, v{a}, v{t}")
    k(f"v_lshrrev_b32 v{t}, 1, v{r}\nv_lshlrev_b32 v{t}, 6, v{t}\nv_add_u32 v{a}, v{a}, v{t}")
    k(f"v_xor_b32 v{a}, s{spar}, v{a}\nv_add_u32 v{a}, s{skh_bytes}, v{a}\nv_xor_b32 v{b}, 64, v{a}")
    return a, b

def dma_voff128(k, pitch):
    lane = k.lane
    a = k.v(); t = k.v(); t2 = k.v(); sp = k.s()
    k(f"s_mov_b32 s{sp}, {pitch}")
    k(f"v_lshrrev_b32 v{t}, 3, v{lane}\nv_mul_lo_u32 v{a}, v{t}, s{sp}")
    k(f"v_and_b32 v{t}, 2, v{t}\nv_lshlrev_b32 v{t}, 1, v{t}\nv_and_b32 v{t2}, 7, v{lane}\nv_xor_b32 v{t}, v{t}, v{t2}\nv_lshlrev_b32 v{t}, 4, v{t}\nv_add_u32 v{a}, v{a}, v{t}")
    return a

def gen_qkv(name):
    R, KPS, NST, NT, DA, DW = 6, 2, 16, 6, 6, 3
    SLOT = 24576
    k = K(name, (256, 1, 1), (512, 1, 1), R * SLOT)
    start(k, 256)
    lane, sw = k.lane, k.sw
    S_w = k.s(4); S_ws = k.s(4)
    k.srd(S_w, k.P + P_WQKV, 6*MB); k.srd(S_ws, k.PWS, WS_SIZE)
    shp = k.s(); smt = k.s(); smbl = k.s(); skh = k.s(); smb = k.s(); st = k.s(); st2 = k.s()
    k(f"s_and_b32 s{shp}, s2, 7\ns_lshl_b32 s{shp}, s{shp}, 1\ns_bfe_u32 s{st}, s2, 0x10003\ns_add_u32 s{shp}, s{shp}, s{st}\ns_lshr_b32 s{smt}, s2, 4")
    k(f"s_and_b32 s{smbl}, s{sw}, 3\ns_lshr_b32 s{skh}, s{sw}, 2\ns_lshl_b32 s{smb}, s{smt}, 2\ns_add_u32 s{smb}, s{smb}, s{smbl}")
    vd = [dma_voff128(k, 6144), k.v(), k.v()]
    k(f"s_lshl_b32 s{st}, s{skh}, 9\ns_lshl_b32 s{st2}, s{smbl}, 3\ns_add_u32 s{st}, s{st}, s{st2}\ns_mul_i32 s{st}, s{st}, 6144\ns_lshl_b32 s{st2}, s{shp}, 7\ns_add_u32 s{st}, s{st}, s{st2}")
    k(f"v_add_u32 v{vd[0]}, s{st}, v{vd[0]}\nv_add_u32 v{vd[1]}, 2048, v{vd[0]}\nv_add_u32 v{vd[2]}, 4096, v{vd[0]}")
    sW = k.s(); sL = k.s()
    k(f"s_mov_b32 s{sW}, 0\ns_mul_i32 s{sL}, s{skh}, 12288\ns_lshl_b32 s{st}, s{smbl}, 10\ns_add_u32 s{sL}, s{sL}, s{st}")
    def dma(j, i):
        k(f"s_add_u32 m0, s{sL}, {(j % R)*SLOT + i*4096}")
        k.vm(f"buffer_load_dwordx4 v{vd[i]}, {sr(S_w,4)}, s{sW} offen lds", ("dma", j))
        if i == 2: k(f"s_add_u32 s{sW}, s{sW}, {32*6144}")
    vA = k.v()
    k(f"s_lshl_b32 s{st}, s{smb}, 16\ns_lshl_b32 s{st2}, s{skh}, 15\ns_add_u32 s{st}, s{st}, s{st2}\nv_lshlrev_b32 v{vA}, 4, v{lane}\nv_add_u32 v{vA}, s{st}, v{vA}")
    Abuf = k.v(4*DA, 4)
    aload = a_loader(k, S_ws, vA, Abuf, DA, WS_XN)
    skb = k.s(); spar = k.s()
    k(f"s_mul_i32 s{skb}, s{skh}, 12288\ns_lshl_b32 s{spar}, s{skh}, 6")
    ak, asend = tr_addr128(k, 8, skb, spar)
    BK = LdsBases(k, ak, R*SLOT - 1); BS = LdsBases(k, asend, R*SLOT - 1)
    Wb = k.v(4*(DW+1), 4)
    ACC = k.v(96, 4)
    def wread(j, uu, t, b, tag):
        B = BK if t < 3 else BS
        off = (j % R)*SLOT + (t % 3)*4096 + uu*2048
        k.ds(f"ds_read_b64_tr_b16 {vr(Wb+4*b,2)}, {B.at(off)}", ("w", tag))
        k.ds(f"ds_read_b64_tr_b16 {vr(Wb+4*b+2,2)}, {B.at(off+512)}", ("w", tag))
    def mfma(u, t, b):
        a = vr(Abuf + 4*(u % DA), 4); w = vr(Wb + 4*b, 4); d = vr(ACC + 16*t, 16)
        c = d if u > 0 else "0"
        if t % 3 == 2: k(f"v_mfma_f32_32x32x16_bf16 {d}, {a}, {w}, {c}")
        else: k(f"v_mfma_f32_32x32x16_bf16 {d}, {w}, {a}, {c}")
    mainloop(k, NT, KPS, NST, R, DA, DW, 3, dma, aload, wread, mfma, name + "_L")
    free = [(NST + i) % R for i in range(R - 2)]
    assert free == [4, 5, 0, 1]
    vw = k.v(); vrd = k.v()
    def region(dst, swv):
        k(f"s_mul_i32 s{dst}, s{swv}, 12288\ns_add_u32 s{dst}, s{dst}, {4*SLOT}\ns_cmp_ge_u32 s{dst}, {6*SLOT}\ns_cselect_b32 s{skb}, {6*SLOT}, 0\ns_sub_u32 s{dst}, s{dst}, s{skb}")
    region(st, sw)
    k(f"s_xor_b32 s{spar}, s{sw}, 4"); region(st2, spar)
    k(f"v_lshlrev_b32 v{vw}, 4, v{lane}\nv_add_u32 v{vrd}, s{st2}, v{vw}\nv_add_u32 v{vw}, s{st}, v{vw}")
    for i in range(12):
        k.ds(f"ds_write_b128 v{vw}, {vr(ACC+48+4*i,4)} offset:{1024*i}")
    k.wait(lg="all"); k("s_barrier")
    for i in range(12):
        k.ds(f"ds_read_b128 {vr(ACC+48+4*i,4)}, v{vrd} offset:{1024*i}", i)
    shd = k.s(); sq = k.s(); skv = k.s()
    k(f"s_lshl_b32 s{shd}, s{shp}, 1\ns_add_u32 s{shd}, s{shd}, s{skh}\ns_lshl_b32 s{shd}, s{shd}, 6\ns_add_u32 s{shd}, s{shd}, s{smb}")
    k(f"s_lshl_b32 s{sq}, s{shd}, 11\ns_add_u32 s{sq}, s{sq}, {WS_Q}\ns_lshl_b32 s{skv}, s{shd}, 12\ns_add_u32 s{skv}, s{skv}, {WS_KV}")
    k(f"v_lshlrev_b32 v{vw}, 4, v{lane}")
    sc = k.s(); k(f"s_mov_b32 s{sc}, {f32(32**-0.5 * math.log2(math.e))}")
    for tt in range(3):
        for hf in range(2):
            i0 = 16*tt + 8*hf
            k.wait(lg=i0//4 + 1)
            for e in range(8):
                k(f"v_add_f32 v{ACC+i0+e}, v{ACC+i0+e}, v{ACC+48+i0+e}")
            if tt == 0:
                for e in range(8): k(f"v_mul_f32 v{ACC+i0+e}, s{sc}, v{ACC+i0+e}")
            o = Wb + 4*((2*tt+hf) % (DW+1))
            for e in range(4):
                k(f"v_cvt_pk_bf16_f32 v{o+e}, v{ACC+i0+2*e}, v{ACC+i0+2*e+1}")
            if tt == 0: k.vm(f"buffer_store_dwordx4 {vr(o,4)}, v{vw}, {sr(S_ws,4)}, s{sq} offen offset:{1024*hf}")
            else: k.vm(f"buffer_store_dwordx4 {vr(o,4)}, v{vw}, {sr(S_ws,4)}, s{skv} offen offset:{2048*(tt-1)+1024*hf}")
    finish(k)
    return k

def gen_res(name, KTOT, wptr, a_off, is_down):
    R, KPS, NT, DA, DW = 4, 4, 2, 16, 3
    KSH = KTOT // 32
    NST = KSH // KPS
    SLOT = 16384
    k = K(name, (256, 1, 1), (512, 1, 1), R * SLOT + 32768)
    start(k, 256)
    lane, sw = k.lane, k.sw
    S_w = k.s(4); S_ws = k.s(4); S_x = k.s(4)
    k.srd(S_w, k.P + wptr, KTOT * 2048); k.srd(S_ws, k.PWS, WS_SIZE)
    k.srd(S_x, k.P + (P_OUT if is_down else P_X), 4*MB)
    smt = k.s(); snt = k.s(); smbl = k.s(); skh = k.s(); smb = k.s(); st = k.s(); st2 = k.s()
    k(f"s_and_b32 s{smt}, s2, 3\ns_lshl_b32 s{smt}, s{smt}, 2\ns_bfe_u32 s{st}, s2, 0x20003\ns_add_u32 s{smt}, s{smt}, s{st}")
    k(f"s_bfe_u32 s{snt}, s2, 0x10002\ns_lshl_b32 s{snt}, s{snt}, 3\ns_lshr_b32 s{st}, s2, 5\ns_add_u32 s{snt}, s{snt}, s{st}")
    k(f"s_and_b32 s{smbl}, s{sw}, 3\ns_lshr_b32 s{skh}, s{sw}, 2\ns_lshl_b32 s{smb}, s{smt}, 2\ns_add_u32 s{smb}, s{smb}, s{smbl}")
    vd = [dma_voff128(k, 2048), k.v()]
    k(f"s_mul_i32 s{st}, s{skh}, {KTOT//2}\ns_lshl_b32 s{st2}, s{smbl}, 4\ns_add_u32 s{st}, s{st}, s{st2}\ns_lshl_b32 s{st}, s{st}, 11\ns_lshl_b32 s{st2}, s{snt}, 7\ns_add_u32 s{st}, s{st}, s{st2}")
    k(f"v_add_u32 v{vd[0]}, s{st}, v{vd[0]}\nv_add_u32 v{vd[1]}, {8*2048}, v{vd[0]}")
    sW = k.s(); sL = k.s()
    k(f"s_mov_b32 s{sW}, 0\ns_lshl_b32 s{sL}, s{sw}, 11")
    def dma(j, i):
        k(f"s_add_u32 m0, s{sL}, {(j % R)*SLOT + i*1024}")
        k.vm(f"buffer_load_dwordx4 v{vd[i]}, {sr(S_w,4)}, s{sW} offen lds", ("dma", j))
        if i == 1: k(f"s_add_u32 s{sW}, s{sW}, {64*2048}")
    vA = k.v()
    k(f"s_mul_i32 s{st}, s{smb}, {KTOT//16*1024}\ns_mul_i32 s{st2}, s{skh}, {KSH*1024}\ns_add_u32 s{st}, s{st}, s{st2}\nv_lshlrev_b32 v{vA}, 4, v{lane}\nv_add_u32 v{vA}, s{st}, v{vA}")
    Abuf = k.v(4*DA, 4)
    aload = a_loader(k, S_ws, vA, Abuf, DA, a_off)
    skb = k.s(); spar = k.s()
    k(f"s_lshl_b32 s{skb}, s{skh}, 13\ns_lshl_b32 s{spar}, s{skh}, 6")
    ak, asend = tr_addr128(k, 4, skb, spar)
    Wb = k.v(4*(DW+1), 4)
    ACC = k.v(32, 4)
    RES = k.v(8, 4)
    vx = k.v(); vT = k.v(); sh = k.s(); t = k.v()
    k(f"s_lshl_b32 s{st}, s{smb}, 16\ns_lshl_b32 s{st2}, s{snt}, 7\ns_add_u32 s{st}, s{st}, s{st2}\ns_add_u32 s{st}, s{st}, s{spar}")
    k(f"v_and_b32 v{vx}, 31, v{lane}\nv_lshlrev_b32 v{vx}, 11, v{vx}\nv_lshrrev_b32 v{t}, 5, v{lane}\nv_lshlrev_b32 v{t}, {4 if is_down else 3}, v{t}\nv_add_u32 v{vx}, v{vx}, v{t}\nv_add_u32 v{vx}, s{st}, v{vx}")
    k(f"s_lshl_b32 s{sh}, s{smb}, 6\ns_lshl_b32 s{st2}, s{snt}, 2\ns_add_u32 s{sh}, s{sh}, s{st2}\ns_lshl_b32 s{st2}, s{skh}, 1\ns_add_u32 s{sh}, s{sh}, s{st2}\ns_lshl_b32 s{sh}, s{sh}, 10\ns_add_u32 s{sh}, s{sh}, {WS_H}")
    k(f"v_lshlrev_b32 v{vT}, 4, v{lane}")
    def mid():
        if is_down:
            for i in range(2): k.vm(f"buffer_load_dwordx4 {vr(RES+4*i,4)}, v{vT}, {sr(S_ws,4)}, s{sh} offen offset:{1024*i}", "res")
        else:
            for j in range(4): k.vm(f"buffer_load_dwordx2 {vr(RES+2*j,2)}, v{vx}, {sr(S_x,4)}, 0 offen offset:{16*j}", "res")
    def wread(j, uu, t, b, tag):
        B = ak if t == 0 else asend
        off = (j % R)*SLOT + uu*2048
        k.ds(f"ds_read_b64_tr_b16 {vr(Wb+4*b,2)}, v{B} offset:{off}", ("w", tag))
        k.ds(f"ds_read_b64_tr_b16 {vr(Wb+4*b+2,2)}, v{B} offset:{off+1024}", ("w", tag))
    def mfma(u, t, b):
        a = vr(Abuf + 4*(u % DA), 4); w = vr(Wb + 4*b, 4); d = vr(ACC + 16*t, 16)
        c = d if u > 0 else "0"
        k(f"v_mfma_f32_32x32x16_bf16 {d}, {w}, {a}, {c}")
    mainloop(k, NT, KPS, NST, R, DA, DW, 2, dma, aload, wread, mfma, name + "_L", mid)
    vw = k.v(); vrd = k.v()
    k(f"s_lshl_b32 s{st}, s{sw}, 12\ns_add_u32 s{st}, s{st}, {R*SLOT}\ns_xor_b32 s{st2}, s{st}, {4*4096}")
    assert (R*SLOT) % (8*4096) == 0
    k(f"v_add_u32 v{vw}, s{st}, v{vT}\nv_add_u32 v{vrd}, s{st2}, v{vT}")
    for i in range(4): k.ds(f"ds_write_b128 v{vw}, {vr(ACC+16+4*i,4)} offset:{1024*i}")
    k.wait(lg="all"); k("s_barrier")
    for i in range(4): k.ds(f"ds_read_b128 {vr(ACC+16+4*i,4)}, v{vrd} offset:{1024*i}", i)
    k.wait(vm="res")
    F = Abuf
    for e in range(8):
        k(f"v_lshlrev_b32 v{F+2*e}, 16, v{RES+e}\nv_and_b32 v{F+2*e+1}, 0xffff0000, v{RES+e}")
    for e in range(16): k(f"v_add_f32 v{ACC+e}, v{ACC+e}, v{F+e}")
    for hf in range(2):
        k.wait(lg=2*hf+1)
        for e in range(8): k(f"v_add_f32 v{ACC+8*hf+e}, v{ACC+8*hf+e}, v{ACC+16+8*hf+e}")
        o = Wb + 4*hf
        for e in range(4): k(f"v_cvt_pk_bf16_f32 v{o+e}, v{ACC+8*hf+2*e}, v{ACC+8*hf+2*e+1}")
        if is_down:
            k(f"v_permlane32_swap_b32 v{o}, v{o+2}\nv_permlane32_swap_b32 v{o+1}, v{o+3}")
            k.vm(f"buffer_store_dwordx4 {vr(o,4)}, v{vx}, {sr(S_x,4)}, 0 offen offset:{32*hf}")
        else:
            k.vm(f"buffer_store_dwordx4 {vr(o,4)}, v{vT}, {sr(S_ws,4)}, s{sh} offen offset:{1024*hf}")
    finish(k)
    return k

def gen_ffn1(name):
    R, KPS, NST, NT, DA, DW = 4, 4, 16, 7, 8, 3
    UPO = 14336 + 128
    SLOT = 28928
    k = K(name, (256, 1, 1), (512, 1, 1), R * SLOT)
    start(k, 256)
    lane, sw = k.lane, k.sw
    S_w = k.s(4); S_ws = k.s(4)
    smat = k.s(); swq = k.s(); snt = k.s(); smb = k.s(); st = k.s(); st2 = k.s()
    k(f"s_lshr_b32 s{smat}, s{sw}, 2\ns_and_b32 s{swq}, s{sw}, 3")
    k(f"s_cmp_eq_u32 s{smat}, 0\ns_cselect_b32 s{S_w}, s{k.P+P_WG}, s{k.P+P_WU}\ns_cselect_b32 s{S_w+1}, s{k.P+P_WG+1}, s{k.P+P_WU+1}\ns_mov_b32 s{S_w+2}, {7*MB}\ns_mov_b32 s{S_w+3}, 0x20000")
    k.srd(S_ws, k.PWS, WS_SIZE)
    k(f"s_and_b32 s{snt}, s2, 7\ns_lshl_b32 s{snt}, s{snt}, 2\ns_bfe_u32 s{st}, s2, 0x20003\ns_add_u32 s{snt}, s{snt}, s{st}")
    k(f"s_lshr_b32 s{smb}, s2, 5\ns_lshl_b32 s{smb}, s{smb}, 3\ns_add_u32 s{smb}, s{smb}, s{sw}")
    vd = [k.v() for _ in range(4)]; q = k.v(); rr = k.v(); t = k.v(); sm = k.s(); sp = k.s()
    k(f"s_mov_b32 s{sm}, 4682\ns_mov_b32 s{sp}, 7168")
    k(f"s_mul_i32 s{st}, s{swq}, {16*7168}\ns_mul_i32 s{st2}, s{snt}, 224\ns_add_u32 s{st}, s{st}, s{st2}")
    for i in range(4):
        k(f"v_add_u32 v{q}, {64*i}, v{lane}\nv_mul_lo_u32 v{rr}, v{q}, s{sm}\nv_lshrrev_b32 v{rr}, 16, v{rr}")
        k(f"v_mul_u32_u24 v{t}, 14, v{rr}\nv_sub_u32 v{t}, v{q}, v{t}\nv_lshlrev_b32 v{t}, 4, v{t}\nv_mul_lo_u32 v{rr}, v{rr}, s{sp}\nv_add3_u32 v{vd[i]}, v{rr}, v{t}, s{st}")
    for qq in range(256): assert (qq*4682) >> 16 == qq // 14
    sW = k.s(); sL = k.s()
    k(f"s_mov_b32 s{sW}, 0\ns_mul_i32 s{sL}, s{smat}, {UPO}\ns_mul_i32 s{st}, s{swq}, 3584\ns_add_u32 s{sL}, s{sL}, s{st}")
    def dma(j, i):
        k(f"s_add_u32 m0, s{sL}, {(j % R)*SLOT + i*1024}")
        if i == 3: k("s_mov_b32 exec_hi, 0")
        k.vm(f"buffer_load_dwordx4 v{vd[i]}, {sr(S_w,4)}, s{sW} offen lds", ("dma", j))
        if i == 3: k(f"s_mov_b32 exec_hi, -1\ns_add_u32 s{sW}, s{sW}, {64*7168}")
    vA = k.v()
    k(f"s_lshl_b32 s{st}, s{smb}, 16\nv_lshlrev_b32 v{vA}, 4, v{lane}\nv_add_u32 v{vA}, s{st}, v{vA}")
    Abuf = k.v(4*DA, 4)
    aload = a_loader(k, S_ws, vA, Abuf, DA, WS_HN)
    h, g1, r, cc = tr_lane_parts(k)
    a = k.v()
    k(f"v_lshl_add_u32 v{a}, v{h}, 2, v{r}\nv_mul_u32_u24 v{a}, 224, v{a}\nv_lshrrev_b32 v{t}, 1, v{cc}\nv_mul_u32_u24 v{t}, {UPO}, v{t}\nv_add_u32 v{a}, v{a}, v{t}")
    k(f"v_lshlrev_b32 v{t}, 4, v{g1}\nv_add_u32 v{a}, v{a}, v{t}\nv_and_b32 v{t}, 1, v{cc}\nv_lshlrev_b32 v{t}, 3, v{t}\nv_add_u32 v{a}, v{a}, v{t}")
    B = LdsBases(k, a, R*SLOT - 1)
    Wb = k.v(4*(DW+1), 4)
    ACC = k.v(112, 4)
    def wread(j, uu, t, b, tag):
        off = (j % R)*SLOT + uu*3584 + t*32
        k.ds(f"ds_read_b64_tr_b16 {vr(Wb+4*b,2)}, {B.at(off)}", ("w", tag))
        k.ds(f"ds_read_b64_tr_b16 {vr(Wb+4*b+2,2)}, {B.at(off+1792)}", ("w", tag))
    def mfma(u, t, b):
        aa = vr(Abuf + 4*(u % DA), 4); w = vr(Wb + 4*b, 4); d = vr(ACC + 16*t, 16)
        c = d if u > 0 else "0"
        k(f"v_mfma_f32_32x32x16_bf16 {d}, {w}, {aa}, {c}")
    mainloop(k, NT, KPS, NST, R, DA, DW, 4, dma, aload, wread, mfma, name + "_L")
    so = k.s(); sc = k.s(); vT = k.v()
    k(f"s_mul_i32 s{so}, s{smb}, 224\ns_mul_i32 s{st}, s{snt}, 7\ns_add_u32 s{so}, s{so}, s{st}\ns_lshl_b32 s{so}, s{so}, 10\ns_add_u32 s{so}, s{so}, {WS_ACT}")
    k(f"v_lshlrev_b32 v{vT}, 4, v{lane}\ns_mov_b32 s{sc}, {f32(-math.log2(math.e))}")
    E = Abuf
    for tt in range(7):
        D = ACC + 16*tt
        pairs = [(D+i, D+4+i) for i in range(4)] + [(D+8+i, D+12+i) for i in range(4)]
        for e, (g, u) in enumerate(pairs): k(f"v_mul_f32 v{E+e}, s{sc}, v{g}")
        for e in range(8): k(f"v_exp_f32 v{E+e}, v{E+e}")
        for e, (g, u) in enumerate(pairs): k(f"v_mul_f32 v{g}, v{g}, v{u}")
        for e in range(8): k(f"v_add_f32 v{E+e}, 1.0, v{E+e}")
        for e in range(8): k(f"v_rcp_f32 v{E+e}, v{E+e}")
        for e, (g, u) in enumerate(pairs): k(f"v_mul_f32 v{g}, v{g}, v{E+e}")
        o = Wb + 4*(tt % (DW+1))
        for e in range(4): k(f"v_cvt_pk_bf16_f32 v{o+e}, v{pairs[2*e][0]}, v{pairs[2*e+1][0]}")
        k.vm(f"buffer_store_dwordx4 {vr(o,4)}, v{vT}, {sr(S_ws,4)}, s{so} offen offset:{1024*(tt%4)}")
        if tt == 3: k(f"s_add_u32 s{so}, s{so}, 4096")
    finish(k)
    return k

def gen_attn(name):
    R, TPS, NST = 4, 4, 16
    SLOT = 16384
    NTILE = TPS * NST
    k = K(name, (256, 1, 1), (512, 1, 1), R * SLOT)
    start(k, 256)
    lane, sw = k.lane, k.sw
    S_ws = k.s(4); k.srd(S_ws, k.PWS, WS_SIZE)
    shd = k.s(); sqb = k.s(); st = k.s(); st2 = k.s(); sKV = k.s(); sKV0 = k.s(); sL = k.s(); scnt = k.s()
    k(f"s_and_b32 s{shd}, s2, 7\ns_lshl_b32 s{shd}, s{shd}, 2\ns_bfe_u32 s{st}, s2, 0x20003\ns_add_u32 s{shd}, s{shd}, s{st}")
    k(f"s_lshr_b32 s{sqb}, s2, 5\ns_lshl_b32 s{sqb}, s{sqb}, 3\ns_add_u32 s{sqb}, s{sqb}, s{sw}")
    vT = k.v(); vD = k.v(); t = k.v(); t2 = k.v()
    k(f"v_lshlrev_b32 v{vT}, 4, v{lane}\ns_lshl_b32 s{sL}, s{sw}, 11\nv_add_u32 v{vD}, s{sL}, v{vT}")
    k(f"s_lshl_b32 s{sKV0}, s{shd}, 18\ns_add_u32 s{sKV0}, s{sKV0}, {WS_KV}\ns_mov_b32 s{sKV}, s{sKV0}")
    def dma(j):
        k(f"s_add_u32 m0, s{sL}, {(j % R)*SLOT}")
        k.vm(f"buffer_load_dwordx4 v{vD}, {sr(S_ws,4)}, s{sKV} offen lds", ("dma", j))
        k.vm(f"buffer_load_dwordx4 v{vD}, {sr(S_ws,4)}, s{sKV} offen offset:1024 lds", ("dma", j))
        k(f"s_add_u32 s{sKV}, s{sKV}, {SLOT}")
    Q = k.v(8, 4); S = [k.v(16, 4), k.v(16, 4)]; NEG = k.v(16, 4); O = k.v(16, 4); Lr = k.v(4, 4); ONE = k.v(4, 4)
    Pf = k.v(8, 4); Kb = [k.v(8, 4), k.v(8, 4)]; Vb = [k.v(8, 4), k.v(8, 4)]
    dma(0)
    k(f"s_lshl_b32 s{st}, s{shd}, 6\ns_add_u32 s{st}, s{st}, s{sqb}\ns_lshl_b32 s{st}, s{st}, 11\ns_add_u32 s{st}, s{st}, {WS_Q}")
    for i in range(2): k.vm(f"buffer_load_dwordx4 {vr(Q+4*i,4)}, v{vT}, {sr(S_ws,4)}, s{st} offen offset:{1024*i}", "q")
    for j in range(1, R): dma(j)
    k(f"v_lshrrev_b32 v{t}, 2, v{lane}\nv_lshrrev_b32 v{t2}, 4, v{lane}\nv_xor_b32 v{t}, v{t}, v{t2}\nv_and_b32 v{t}, 1, v{t}\nv_cmp_eq_u32 vcc, 0, v{t}")
    k(f"v_mov_b32 v{t2}, 0x3f803f80")
    for e in range(4): k(f"v_cndmask_b32 v{ONE+e}, 0, v{t2}, vcc")
    def kread(T):
        off = ((T // TPS) % R)*SLOT + (T % TPS)*4096
        for i in range(2): k.ds(f"ds_read_b128 {vr(Kb[T%2]+4*i,4)}, v{vT} offset:{off+1024*i}", ("k", T))
    def vread(T):
        off = ((T // TPS) % R)*SLOT + (T % TPS)*4096 + 2048
        for i in range(2): k.ds(f"ds_read_b128 {vr(Vb[T%2]+4*i,4)}, v{vT} offset:{off+1024*i}", ("v", T))
    def qk(T, i, c=None):
        d = vr(S[T%2], 16)
        cc = (vr(NEG, 16) if c is None else c) if i == 0 else d
        k(f"v_mfma_f32_32x32x16_bf16 {d}, {vr(Kb[T%2]+4*i,4)}, {vr(Q+4*i,4)}, {cc}")
    def rowmax16(src, dst):
        k(f"v_max3_f32 v{dst}, v{src}, v{src+1}, v{src+2}")
        for e in range(3, 15, 2): k(f"v_max3_f32 v{dst}, v{dst}, v{src+e}, v{src+e+1}")
        k(f"v_max_f32 v{dst}, v{dst}, v{src+15}")
    k.wait(vm="q"); k("s_barrier")
    kread(0); kread(1); vread(0)
    k.wait(lg=("k", 0))
    qk(0, 0, "0"); qk(0, 1)
    rowmax16(S[0], t)
    k(f"v_mov_b32 v{t2}, v{t}\nv_permlane32_swap_b32 v{t}, v{t2}\nv_max_f32 v{t}, v{t}, v{t2}")
    for e in range(16): k(f"v_sub_f32 v{NEG+e}, 0, v{t}")
    for e in range(16): k(f"v_sub_f32 v{S[0]+e}, v{S[0]+e}, v{t}")
    base = len(k.L); starts = [base]
    for T in range(NTILE):
        s = S[T % 2]
        pend = None
        if T + 2 < NTILE:
            if (T + 2) % TPS == 0:
                j = (T + 2) // TPS
                starts.append(len(k.L))
                k.wait(vm=("dma", j)); k("s_barrier")
                if j >= 2 and j - 2 + R < NST: pend = j - 2 + R
            kread(T + 2)
        if T + 1 < NTILE:
            vread(T + 1)
            k.wait(lg=("k", T + 1)); qk(T + 1, 0)
        for e in range(8): k(f"v_exp_f32 v{s+e}, v{s+e}")
        if T + 1 < NTILE: qk(T + 1, 1)
        for e in range(4): k(f"v_cvt_pk_bf16_f32 v{Pf+e}, v{s+2*e}, v{s+2*e+1}")
        if pend is not None: dma(pend)
        for e in range(8, 12): k(f"v_exp_f32 v{s+e}, v{s+e}")
        k.wait(lg=("v", T))
        k(f"v_mfma_f32_32x32x16_bf16 {vr(O,16)}, {vr(Vb[T%2],4)}, {vr(Pf,4)}, {vr(O,16) if T else '0'}")
        for e in range(12, 16): k(f"v_exp_f32 v{s+e}, v{s+e}")
        k(f"v_mfma_f32_16x16x32_bf16 {vr(Lr,4)}, {vr(ONE,4)}, {vr(Pf,4)}, {vr(Lr,4) if T else '0'}")
        for e in range(4, 8): k(f"v_cvt_pk_bf16_f32 v{Pf+e}, v{s+2*e}, v{s+2*e+1}")
        k(f"v_mfma_f32_32x32x16_bf16 {vr(O,16)}, {vr(Vb[T%2]+4,4)}, {vr(Pf+4,4)}, {vr(O,16)}")
        k(f"v_mfma_f32_16x16x32_bf16 {vr(Lr,4)}, {vr(ONE,4)}, {vr(Pf+4,4)}, {vr(Lr,4)}")
    starts.append(len(k.L))
    blocks = [k.L[starts[i]:starts[i+1]] for i in range(len(starts) - 1)]
    del k.L[base:]
    compress_loop(k, blocks, R, scnt, name + "_L")
    k.label(name + "_CHK")
    k(f"v_max3_f32 v{t}, |v{O}|, |v{O+1}|, |v{O+2}|")
    for e in range(3, 15, 2): k(f"v_max3_f32 v{t}, v{t}, |v{O+e}|, |v{O+e+1}|")
    k(f"v_max_f32 v{t}, v{t}, |v{O+15}|".replace("v_max_f32", "v_max_f32_e64"))
    k(f"s_mov_b32 s{st}, {f32(2.0**100)}\ns_mov_b32 s{st2}, 0x7f7fffff")
    k(f"v_cmp_nle_f32 vcc, v{Lr}, s{st}".replace("v_cmp_nle_f32", "v_cmp_nle_f32_e64"))
    sx = k.s(2)
    k(f"v_cmp_nle_f32_e64 {sr(sx,2)}, v{t}, s{st2}")
    k(f"v_add_f32 v{t2}, v{O}, v{O+1}")
    for e in range(2, 16): k(f"v_add_f32 v{t2}, v{t2}, v{O+e}")
    sy = k.s(2)
    k(f"v_cmp_u_f32_e64 {sr(sy,2)}, v{t2}, v{t2}")
    k(f"s_or_b64 vcc, vcc, {sr(sx,2)}\ns_or_b64 vcc, vcc, {sr(sy,2)}\ns_cbranch_scc1 {name}_SLOW")
    k.label(name + "_OUT")
    k(f"v_rcp_f32 v{t}, v{Lr}")
    k(f"s_lshl_b32 s{st}, s{sqb}, 6\ns_lshl_b32 s{st2}, s{shd}, 1\ns_add_u32 s{st}, s{st}, s{st2}\ns_lshl_b32 s{st}, s{st}, 10\ns_add_u32 s{st}, s{st}, {WS_O}")
    for e in range(16): k(f"v_mul_f32 v{O+e}, v{O+e}, v{t}")
    for e in range(8): k(f"v_cvt_pk_bf16_f32 v{Pf+e}, v{O+2*e}, v{O+2*e+1}")
    for i in range(2): k.vm(f"buffer_store_dwordx4 {vr(Pf+4*i,4)}, v{vT}, {sr(S_ws,4)}, s{st} offen offset:{1024*i}")
    tend(k)
    k("s_endpgm")
    k.vmq = []; k.lgq = []
    k.label(name + "_SLOW")
    mx = k.v()
    k(f"v_mov_b32 v{mx}, 0xff800000\ns_mov_b32 s{sKV}, s{sKV0}\ns_mov_b32 s{scnt}, {NTILE}")
    k.label(name + "_S1")
    for i in range(2): k.vm(f"buffer_load_dwordx4 {vr(Kb[0]+4*i,4)}, v{vT}, {sr(S_ws,4)}, s{sKV} offen offset:{1024*i}")
    k.wait(vm="all")
    qk(0, 0, "0"); qk(0, 1)
    rowmax16(S[0], t)
    k(f"v_max_f32 v{mx}, v{mx}, v{t}")
    k(f"s_add_u32 s{sKV}, s{sKV}, 4096\ns_sub_u32 s{scnt}, s{scnt}, 1\ns_cmp_lg_u32 s{scnt}, 0\ns_cbranch_scc1 {name}_S1")
    k(f"v_mov_b32 v{t2}, v{mx}\nv_permlane32_swap_b32 v{mx}, v{t2}\nv_max_f32 v{mx}, v{mx}, v{t2}")
    for e in range(16): k(f"v_sub_f32 v{NEG+e}, 0, v{mx}")
    for e in range(16): k(f"v_mov_b32 v{O+e}, 0")
    for e in range(4): k(f"v_mov_b32 v{Lr+e}, 0")
    k(f"s_mov_b32 s{sKV}, s{sKV0}\ns_mov_b32 s{scnt}, {NTILE}")
    k.label(name + "_S2")
    for i in range(2): k.vm(f"buffer_load_dwordx4 {vr(Kb[0]+4*i,4)}, v{vT}, {sr(S_ws,4)}, s{sKV} offen offset:{1024*i}")
    for i in range(2): k.vm(f"buffer_load_dwordx4 {vr(Vb[0]+4*i,4)}, v{vT}, {sr(S_ws,4)}, s{sKV} offen offset:{2048+1024*i}")
    k.wait(vm="all")
    qk(0, 0); qk(0, 1)
    s = S[0]
    for e in range(16): k(f"v_exp_f32 v{s+e}, v{s+e}")
    for e in range(8): k(f"v_cvt_pk_bf16_f32 v{Pf+e}, v{s+2*e}, v{s+2*e+1}")
    for i in range(2):
        k(f"v_mfma_f32_32x32x16_bf16 {vr(O,16)}, {vr(Vb[0]+4*i,4)}, {vr(Pf+4*i,4)}, {vr(O,16)}")
        k(f"v_mfma_f32_16x16x32_bf16 {vr(Lr,4)}, {vr(ONE,4)}, {vr(Pf+4*i,4)}, {vr(Lr,4)}")
    k(f"s_add_u32 s{sKV}, s{sKV}, 4096\ns_sub_u32 s{scnt}, s{scnt}, 1\ns_cmp_lg_u32 s{scnt}, 0\ns_cbranch_scc1 {name}_S2")
    k(f"s_nop 15\ns_branch {name}_OUT")
    finish(k, False)
    return k

def build(out):
    ks = [gen_ln("ln1_kernel", False, 0, WS_XN), gen_qkv("qkv_kernel"), gen_attn("attn_kernel"),
          gen_res("wo_kernel", 1024, P_WO, WS_O, False), gen_ln("ln2_kernel", True, WS_H, WS_HN),
          gen_ffn1("ffn1_kernel"), gen_res("ffn2_kernel", 3584, P_WD, WS_ACT, True)]
    ref = open("cdna_kernels/" + NAME + ".s.ref").read().split("\n")
    head = [l for l in ref if l.startswith(";") and not l.startswith("; @launch") and not l.startswith("; Override") and not l.startswith("; grid=")]
    txt = "\n".join(head) + "\n"
    for k in ks:
        txt += f"; @launch kernel={k.name} grid=({k.grid[0]},{k.grid[1]},{k.grid[2]}) block=({k.block[0]},{k.block[1]},{k.block[2]}) lds={k.lds}\n"
    txt += '.amdgcn_target "amdgcn-amd-amdhsa--gfx950"\n'
    descs = ""
    for k in ks:
        c, d = k.text(); txt += c; descs += d
        print(k.name, "vgpr", k.nv, "lines", c.count("\n"), "lds", k.lds, file=sys.stderr)
    txt += descs
    open(out, "w").write(txt)

if __name__ == "__main__":
    if "--timing" in sys.argv: TIMING = True; sys.argv.remove("--timing")
    if "--dbg" in sys.argv: TIMING = 2; sys.argv.remove("--dbg")
    build(sys.argv[1] if len(sys.argv) > 1 else "cdna_kernels/" + NAME + ".s")
```

```python
import sys
from asmlib import *
MB = 1<<20
src = open('sequential_preLN__mha_block__swiglu_ffn__prompt.s').read()
def pf(name, weights=True, wstouch=False, code=False):
    k = K(name, (256,1,1), (256,1,1), 0)
    k(f"s_cmp_ge_u32 s2, 256\ns_cbranch_scc1 {name}_END")
    k("s_load_dwordx16 s[4:19], s[0:1], 0\ns_load_dwordx4 s[20:23], s[0:1], 64")
    k("s_lshl_b32 s3, s2, 12\nv_lshlrev_b32 v1, 4, v0\nv_add_u32 v1, s3, v1\ns_waitcnt lgkmcnt(0)")
    r = 8
    if code:
        k("s_getpc_b64 s[40:41]")
        k.label("pf_here")
        k("s_lshr_b32 s3, s2, 3\ns_lshl_b32 s3, s3, 12\nv_lshlrev_b32 v2, 4, v0\nv_add_u32 v2, s3, v2")
        k("s_sub_u32 s40, s40, pf_here-ln1_kernel\ns_subb_u32 s41, s41, 0\ns_mov_b32 s42, pf_here-ln1_kernel\ns_mov_b32 s43, 0x20000")
        k(f"buffer_load_dwordx4 v[4:7], v2, s[40:43], 0 offen")
    if weights:
        for (p, n) in [(0, 4), (2, 6), (4, 2), (8, 7), (10, 7), (12, 7)]:
            k.srd(24, 4+p, n*MB)
            for i in range(n):
                k(f"s_mov_b32 s3, {i*MB}\nbuffer_load_dwordx4 v[{r}:{r+3}], v1, s[24:27], s3 offen"); r += 4
    if wstouch:
        k.srd(24, 22, 64*MB)
        k("s_lshr_b32 s3, s2, 3\ns_lshl_b32 s3, s3, 20\nv_lshlrev_b32 v2, 12, v0\nv_add_u32 v2, s3, v2")
        k(f"s_mov_b32 s3, {32*MB}\nbuffer_load_dword v{r}, v2, s[24:27], 0 offen\nbuffer_load_dword v{r+1}, v2, s[24:27], s3 offen"); r += 2
        k.srd(24, 18, 4*MB)
        k(f"buffer_load_dword v{r}, v2, s[24:27], 0 offen"); r += 1
    k("s_waitcnt vmcnt(0)")
    k.label(name + "_END"); k("s_endpgm")
    return k.text()
def variant(out, **kw):
    lines = src.split("\n")
    idx = [i for i,l in enumerate(lines) if l.startswith("; @launch")]
    e = "; @launch kernel=pf_kernel grid=(256,1,1) block=(256,1,1) lds=0"
    lines = lines[:idx[0]] + [e] + lines[idx[0]:]
    t = "\n".join(lines)
    c, d = pf("pf_kernel", **kw)
    t = t.replace('.section .rodata,"a"', c + d + '.section .rodata,"a"', 1)
    open(out, "w").write(t)
variant("p0.s", weights=False)
variant("p1.s", weights=True)
variant("p2.s", weights=False, wstouch=True)
variant("p3.s", weights=False, code=True)
variant("p4.s", weights=True, wstouch=True, code=True)
```

```python
import sys, math
from asmlib import *

NAME = "sequential_preLN__mha_block__swiglu_ffn__prompt"
MB = 1 << 20
WS_XN, WS_Q, WS_KV, WS_O, WS_H, WS_HN, WS_ACT = 0, 4*MB, 8*MB, 16*MB, 20*MB, 24*MB, 28*MB
WS_SIZE = 64*MB
P_X, P_WQKV, P_WO, P_BX, P_WG, P_WU, P_WD, P_OUT = 0, 2, 4, 6, 8, 10, 12, 14
def f32(x):
    import struct
    return "0x%08x" % struct.unpack("<I", struct.pack("<f", x))[0]

def start(k, nwg):
    k(f"s_cmp_ge_u32 s2, {nwg}\ns_cbranch_scc1 {k.name}_END")
    P = k.s(16, 4); P2 = k.s(4, 4)
    k(f"s_load_dwordx16 {sr(P,16)}, s[0:1], 0\ns_load_dwordx4 {sr(P2,4)}, s[0:1], 64")
    lane = k.v(); sw = k.s()
    k(f"v_lshrrev_b32 v{lane}, 6, v0")
    k(f"v_readfirstlane_b32 s{sw}, v{lane}")
    k(f"v_and_b32 v{lane}, 63, v0")
    k.P = P; k.PWS = P2 + 2; k.lane = lane; k.sw = sw
    tstart(k)
    k("s_waitcnt lgkmcnt(0)")
TIMING = False
PF = True
WS_TIM = 60*MB
KIDX = [0]
NKERN = 7
def tstart(k):
    if not TIMING: return
    k.T = k.s(8, 4); k.kidx = KIDX[0]; KIDX[0] += 1
    k(f"s_memtime {sr(k.T,2)}\ns_memrealtime {sr(k.T+2,2)}")
def tend(k):
    if not TIMING: return
    if TIMING == 2: return dbg_end(k)
    T = k.T
    if not hasattr(k, "TV"): k.TV = k.v(4, 4); k.TA = k.v(); k.TS = k.s(4, 4)
    k(f"s_waitcnt vmcnt(0)\ns_memtime {sr(T+4,2)}\ns_memrealtime {sr(T+6,2)}\ns_waitcnt lgkmcnt(0)")
    k.srd(k.TS, k.PWS, WS_SIZE)
    k(f"v_mov_b32 v{k.TV}, s{T}\nv_mov_b32 v{k.TV+1}, s{T+4}\nv_mov_b32 v{k.TV+2}, s{T+2}\nv_mov_b32 v{k.TV+3}, s{T+6}")
    k(f"s_lshl_b32 s{T}, s2, 3\ns_add_u32 s{T}, s{T}, s{k.sw}\ns_lshl_b32 s{T}, s{T}, 4\ns_add_u32 s{T}, s{T}, {WS_TIM + k.kidx*256*8*16}")
    k(f"v_mov_b32 v{k.TA}, 0\nbuffer_store_dwordx4 {vr(k.TV,4)}, v{k.TA}, {sr(k.TS,4)}, s{T} offen")
def dbg_end(k):
    T = k.T
    if not hasattr(k, "TV"): k.TV = k.v(4, 4); k.TA = k.v(); k.TS = k.s(4, 4)
    lab = f"{k.name}_DBG{k.uid}"; k.uid += 1
    k(f"s_waitcnt vmcnt(0)\ns_memrealtime {sr(T+6,2)}\ns_and_b32 s{T}, s2, 15\ns_or_b32 s{T}, s{T}, s{k.sw}\ns_cmp_lg_u32 s{T}, 0\ns_cbranch_scc1 {lab}")
    k(f"s_add_u32 s{k.TS}, s{k.PWS-2}, {512*(NKERN-1-k.kidx)}\ns_addc_u32 s{k.TS+1}, s{k.PWS-1}, 0\ns_mov_b32 s{k.TS+2}, 256\ns_mov_b32 s{k.TS+3}, 0x20000\ns_waitcnt lgkmcnt(0)")
    k(f"s_not_b32 s{T+2}, s{T+2}\nv_mov_b32 v{k.TV}, s{T+2}\nv_mov_b32 v{k.TV+1}, s{T+6}\nv_mov_b32 v{k.TA}, {8*k.kidx}\ns_mov_b64 exec, 1")
    k(f"buffer_atomic_umax v{k.TV}, v{k.TA}, {sr(k.TS,4)}, 0 offen\nbuffer_atomic_umax v{k.TV+1}, v{k.TA}, {sr(k.TS,4)}, 0 offen offset:4")
    k.label(lab)
def finish(k, endt=True):
    if endt: tend(k)
    k.label(f"{k.name}_END")
    k("s_endpgm")

def gen_ln(name, in_T, src_off, dst_off):
    k = K(name, (256, 1, 1), (256, 1, 1), 1024)
    start(k, 256)
    lane, sw = k.lane, k.sw
    S_in = k.s(4); S_ws = k.s(4)
    k.srd(S_ws, k.PWS, WS_SIZE)
    if not in_T: k.srd(S_in, k.P + P_X, 4*MB)
    row = k.v(); c = k.v(); vo = k.v(); vi = k.v(); t = k.v(); t2 = k.v()
    sa = k.s(); sb = k.s(); so = [k.s() for _ in range(4)]; si = [k.s() for _ in range(4)]
    k(f"v_lshrrev_b32 v{row}, 3, v{lane}\nv_and_b32 v{c}, 7, v{lane}")
    k(f"s_lshr_b32 s{sa}, s2, 2\ns_lshl_b32 s{sa}, s{sa}, 16\ns_lshl_b32 s{sb}, s{sw}, 14\ns_add_u32 s{sa}, s{sa}, s{sb}")
    k(f"s_and_b32 s{sb}, s2, 3\ns_lshl_b32 s{sb}, s{sb}, 7\ns_add_u32 s{sa}, s{sa}, s{sb}")
    k(f"v_lshrrev_b32 v{t}, 1, v{c}\nv_lshlrev_b32 v{t}, 10, v{t}\nv_and_b32 v{t2}, 1, v{c}\nv_lshlrev_b32 v{t2}, 9, v{t2}")
    k(f"v_add_u32 v{vo}, v{t}, v{t2}\nv_lshlrev_b32 v{t}, 4, v{row}\nv_add_u32 v{vo}, v{vo}, v{t}\nv_add_u32 v{vo}, s{sa}, v{vo}")
    X = k.v(16, 4); F = k.v(32, 4)
    for i in range(4):
        k(f"s_mov_b32 s{so[i]}, {dst_off + 4096*i}")
    if in_T:
        for i in range(4):
            k(f"s_mov_b32 s{si[i]}, {src_off + 4096*i}")
        for i in range(4):
            k.vm(f"buffer_load_dwordx4 {vr(X+4*i,4)}, v{vo}, {sr(S_ws,4)}, s{si[i]} offen", i)
    else:
        k(f"s_lshl_b32 s{sa}, s2, 14\ns_lshl_b32 s{sb}, s{sw}, 9\ns_add_u32 s{sa}, s{sa}, s{sb}")
        k(f"v_lshlrev_b32 v{vi}, 11, v{row}\nv_lshlrev_b32 v{t}, 4, v{c}\nv_add_u32 v{vi}, v{vi}, v{t}\nv_add_u32 v{vi}, s{sa}, v{vi}")
        for i in range(4):
            k.vm(f"buffer_load_dwordx4 {vr(X+4*i,4)}, v{vi}, {sr(S_in,4)}, 0 offen offset:{128*i}", i)
        if PF:
            S_pf = k.s(4); k.srd(S_pf, k.P + P_WQKV, 6*MB); vp = k.v(); D = k.v(4, 4); sp = k.s()
            k(f"s_lshl_b32 s{sp}, s2, 12\nv_lshlrev_b32 v{vp}, 4, v0\nv_add_u32 v{vp}, s{sp}, v{vp}")
            for i in range(6):
                k(f"s_mov_b32 s{sp}, {i*MB}")
                k.vm(f"buffer_load_dwordx4 {vr(D,4)}, v{vp}, {sr(S_pf,4)}, s{sp} offen", "pf")
    sm = k.v(); m2 = k.v()
    for i in range(4):
        k.wait(vm=i)
        for j in range(4):
            r = 4*i + j
            k(f"v_lshlrev_b32 v{F+2*r}, 16, v{X+r}\nv_and_b32 v{F+2*r+1}, 0xffff0000, v{X+r}")
        for j in range(8):
            e = F + 8*i + j
            if i == 0 and j == 0: continue
            if i == 0 and j == 1: k(f"v_add_f32 v{sm}, v{F}, v{F+1}")
            elif j % 2 == 0: k(f"v_add_f32 v{sm}, v{sm}, v{e}")
            else:
                if i == 0 and j == 3: k(f"v_mov_b32 v{m2}, v{e}")
                else: k(f"v_add_f32 v{m2}, v{m2}, v{e}")
    k(f"v_add_f32 v{sm}, v{sm}, v{m2}")
    def red8(r):
        k(f"v_add_f32_dpp v{r}, v{r}, v{r} quad_perm:[1,0,3,2] row_mask:0xf bank_mask:0xf")
        k(f"v_add_f32_dpp v{r}, v{r}, v{r} quad_perm:[2,3,0,1] row_mask:0xf bank_mask:0xf")
        k(f"v_add_f32_dpp v{r}, v{r}, v{r} row_half_mirror row_mask:0xf bank_mask:0xf")
    red8(sm)
    pr = k.v(2, 2)
    k(f"v_mul_f32 v{pr}, {f32(1/256)}, v{sm}")
    for e in range(32): k(f"v_sub_f32 v{F+e}, v{F+e}, v{pr}")
    k(f"v_mul_f32 v{pr+1}, v{F}, v{F}\nv_mul_f32 v{m2}, v{F+1}, v{F+1}")
    for e in range(2, 32):
        k(f"v_fmac_f32 v{pr+1 if e%2==0 else m2}, v{F+e}, v{F+e}")
    k(f"v_add_f32 v{pr+1}, v{pr+1}, v{m2}")
    red8(pr+1)
    k(f"v_lshlrev_b32 v{t}, 5, v{row}\ns_lshl_b32 s{sb}, s{sw}, 3\nv_add_u32 v{t2}, s{sb}, v{t}")
    k.ds(f"ds_write_b64 v{t2}, {vr(pr,2)}")
    k.wait(lg="all"); k("s_barrier")
    Q = X
    k.ds(f"ds_read_b128 {vr(Q,4)}, v{t}"); k.ds(f"ds_read_b128 {vr(Q+4,4)}, v{t} offset:16")
    k.wait(lg="all")
    mean = k.v(); var = k.v()
    k(f"v_add_f32 v{mean}, v{Q}, v{Q+2}\nv_add_f32 v{t}, v{Q+4}, v{Q+6}\nv_add_f32 v{mean}, v{mean}, v{t}\nv_mul_f32 v{mean}, 0.25, v{mean}".replace("0.25", f32(0.25)))
    k(f"v_add_f32 v{var}, v{Q+1}, v{Q+3}\nv_add_f32 v{t}, v{Q+5}, v{Q+7}\nv_add_f32 v{var}, v{var}, v{t}")
    k(f"v_mov_b32 v{t2}, 0")
    for j in range(4):
        k(f"v_sub_f32 v{t}, v{Q+2*j}, v{mean}\nv_fmac_f32 v{t2}, v{t}, v{t}")
    k(f"v_mul_f32 v{t2}, {f32(256.0)}, v{t2}\nv_add_f32 v{var}, v{var}, v{t2}")
    k(f"v_mul_f32 v{var}, {f32(1/1024)}, v{var}\nv_add_f32 v{var}, {f32(1e-5)}, v{var}\nv_rsq_f32 v{var}, v{var}")
    k(f"v_sub_f32 v{t}, v{pr}, v{mean}\nv_mul_f32 v{t}, v{t}, v{var}")
    for i in range(4):
        for j in range(8):
            e = F + 8*i + j
            k(f"v_fma_f32 v{e}, v{e}, v{var}, v{t}")
        for j in range(4):
            k(f"v_cvt_pk_bf16_f32 v{X+4*i+j}, v{F+8*i+2*j}, v{F+8*i+2*j+1}")
        k.vm(f"buffer_store_dwordx4 {vr(X+4*i,4)}, v{vo}, {sr(S_ws,4)}, s{so[i]} offen")
    finish(k)
    return k

def mainloop(k, NT, KPS, NST, R, DA, DW, ndma, dma, aload, wread, mfma, lname, mid=None):
    NB = DW + 1
    KS = KPS * NST
    nslots = KS * NT
    scnt = k.s()
    au = 0
    for j in range(min(R, NST)):
        for i in range(ndma): dma(j, i)
        for _ in range(KPS):
            if au < min(DA, KS): aload(au); au += 1
    while au < min(DA, KS): aload(au); au += 1
    if mid: mid()
    k.wait(vm=("dma", 0)); k("s_barrier")
    for i in range(min(DW, nslots)):
        u, t = divmod(i, NT); wread(u // KPS, u % KPS, t, i % NB, i)
    blocks = []; base = len(k.L); starts = [base]
    pend = []
    for i in range(nslots):
        u, t = divmod(i, NT)
        n = i + DW
        if n < nslots:
            un, tn = divmod(n, NT)
            if tn == 0 and un % KPS == 0:
                j = un // KPS
                starts.append(len(k.L))
                k.wait(vm=("dma", j)); k("s_barrier")
                if j >= 2 and j - 2 + R < NST:
                    pend += [(j - 2 + R, q) for q in range(ndma)]
            wread(un // KPS, un % KPS, tn, n % NB, n)
        k.wait(vm=("a", u) if t == 0 else None, lg=("w", i))
        mfma(u, t, i % NB)
        if t == NT - 1 and u + DA < KS: aload(u + DA)
        elif pend: dma(*pend.pop(0))
    assert not pend
    starts.append(len(k.L))
    blocks = [k.L[starts[i]:starts[i+1]] for i in range(len(starts) - 1)]
    del k.L[base:]
    period = R * KPS * NT
    period = math.lcm(R * KPS * NT, DA * NT, NB, 4 * NT) // (KPS * NT)
    reps = compress_loop(k, blocks, period, scnt, lname)
    return reps

class LdsBases:
    def __init__(self, k, base, maxoff):
        self.regs = [base]
        for w in range(1, maxoff // 65536 + 1):
            r = k.v(); k(f"v_add_u32 v{r}, {65536*w}, v{base}"); self.regs.append(r)
    def at(self, off):
        return f"v{self.regs[off // 65536]} offset:{off % 65536}"

def a_loader(k, S_ws, vA, Abuf, DA, base_off):
    sA = k.s()
    k(f"s_mov_b32 s{sA}, {base_off}")
    def aload(u):
        k.vm(f"buffer_load_dwordx4 {vr(Abuf + 4*(u % DA), 4)}, v{vA}, {sr(S_ws,4)}, s{sA} offen offset:{1024*(u%4)}", ("a", u))
        if u % 4 == 3: k(f"s_add_u32 s{sA}, s{sA}, 4096")
    return aload

def tr_lane_parts(k):
    lane = k.lane
    h = k.v(); g1 = k.v(); r = k.v(); cc = k.v()
    k(f"v_lshrrev_b32 v{h}, 5, v{lane}\nv_bfe_u32 v{g1}, v{lane}, 4, 1\nv_bfe_u32 v{r}, v{lane}, 2, 2\nv_and_b32 v{cc}, 3, v{lane}")
    return h, g1, r, cc

def tr_addr128(k, hrows, skh_bytes, spar):
    h, g1, r, cc = tr_lane_parts(k)
    a = k.v(); b = k.v(); t = k.v()
    k(f"v_mul_u32_u24 v{a}, {hrows}, v{h}\nv_add_u32 v{a}, v{a}, v{r}\nv_lshlrev_b32 v{a}, 7, v{a}")
    k(f"v_lshlrev_b32 v{t}, 5, v{g1}\nv_add_u32 v{a}, v{a}, v{t}")
    k(f"v_lshlrev_b32 v{t}, 3, v{cc}\nv_add_u32 v{a}, v{a}, v{t}")
    k(f"v_lshrrev_b32 v{t}, 1, v{r}\nv_lshlrev_b32 v{t}, 6, v{t}\nv_add_u32 v{a}, v{a}, v{t}")
    k(f"v_xor_b32 v{a}, s{spar}, v{a}\nv_add_u32 v{a}, s{skh_bytes}, v{a}\nv_xor_b32 v{b}, 64, v{a}")
    return a, b

def dma_voff128(k, pitch):
    lane = k.lane
    a = k.v(); t = k.v(); t2 = k.v(); sp = k.s()
    k(f"s_mov_b32 s{sp}, {pitch}")
    k(f"v_lshrrev_b32 v{t}, 3, v{lane}\nv_mul_lo_u32 v{a}, v{t}, s{sp}")
    k(f"v_and_b32 v{t}, 2, v{t}\nv_lshlrev_b32 v{t}, 1, v{t}\nv_and_b32 v{t2}, 7, v{lane}\nv_xor_b32 v{t}, v{t}, v{t2}\nv_lshlrev_b32 v{t}, 4, v{t}\nv_add_u32 v{a}, v{a}, v{t}")
    return a

def gen_qkv(name):
    R, KPS, NST, NT, DA, DW = 6, 2, 16, 6, 6, 3
    SLOT = 24576
    k = K(name, (256, 1, 1), (512, 1, 1), R * SLOT)
    start(k, 256)
    lane, sw = k.lane, k.sw
    S_w = k.s(4); S_ws = k.s(4)
    k.srd(S_w, k.P + P_WQKV, 6*MB); k.srd(S_ws, k.PWS, WS_SIZE)
    shp = k.s(); smt = k.s(); smbl = k.s(); skh = k.s(); smb = k.s(); st = k.s(); st2 = k.s()
    k(f"s_and_b32 s{shp}, s2, 7\ns_lshl_b32 s{shp}, s{shp}, 1\ns_bfe_u32 s{st}, s2, 0x10003\ns_add_u32 s{shp}, s{shp}, s{st}\ns_lshr_b32 s{smt}, s2, 4")
    k(f"s_and_b32 s{smbl}, s{sw}, 3\ns_lshr_b32 s{skh}, s{sw}, 2\ns_lshl_b32 s{smb}, s{smt}, 2\ns_add_u32 s{smb}, s{smb}, s{smbl}")
    vd = [dma_voff128(k, 6144), k.v(), k.v()]
    k(f"s_lshl_b32 s{st}, s{skh}, 9\ns_lshl_b32 s{st2}, s{smbl}, 3\ns_add_u32 s{st}, s{st}, s{st2}\ns_mul_i32 s{st}, s{st}, 6144\ns_lshl_b32 s{st2}, s{shp}, 7\ns_add_u32 s{st}, s{st}, s{st2}")
    k(f"v_add_u32 v{vd[0]}, s{st}, v{vd[0]}\nv_add_u32 v{vd[1]}, 2048, v{vd[0]}\nv_add_u32 v{vd[2]}, 4096, v{vd[0]}")
    sW = k.s(); sL = k.s()
    k(f"s_mov_b32 s{sW}, 0\ns_mul_i32 s{sL}, s{skh}, 12288\ns_lshl_b32 s{st}, s{smbl}, 10\ns_add_u32 s{sL}, s{sL}, s{st}")
    def dma(j, i):
        k(f"s_add_u32 m0, s{sL}, {(j % R)*SLOT + i*4096}")
        k.vm(f"buffer_load_dwordx4 v{vd[i]}, {sr(S_w,4)}, s{sW} offen lds", ("dma", j))
        if i == 2: k(f"s_add_u32 s{sW}, s{sW}, {32*6144}")
    vA = k.v()
    k(f"s_lshl_b32 s{st}, s{smb}, 16\ns_lshl_b32 s{st2}, s{skh}, 15\ns_add_u32 s{st}, s{st}, s{st2}\nv_lshlrev_b32 v{vA}, 4, v{lane}\nv_add_u32 v{vA}, s{st}, v{vA}")
    Abuf = k.v(4*DA, 4)
    aload = a_loader(k, S_ws, vA, Abuf, DA, WS_XN)
    skb = k.s(); spar = k.s()
    k(f"s_mul_i32 s{skb}, s{skh}, 12288\ns_lshl_b32 s{spar}, s{skh}, 6")
    ak, asend = tr_addr128(k, 8, skb, spar)
    BK = LdsBases(k, ak, R*SLOT - 1); BS = LdsBases(k, asend, R*SLOT - 1)
    Wb = k.v(4*(DW+1), 4)
    ACC = k.v(96, 4)
    def wread(j, uu, t, b, tag):
        B = BK if t < 3 else BS
        off = (j % R)*SLOT + (t % 3)*4096 + uu*2048
        k.ds(f"ds_read_b64_tr_b16 {vr(Wb+4*b,2)}, {B.at(off)}", ("w", tag))
        k.ds(f"ds_read_b64_tr_b16 {vr(Wb+4*b+2,2)}, {B.at(off+512)}", ("w", tag))
    def mfma(u, t, b):
        a = vr(Abuf + 4*(u % DA), 4); w = vr(Wb + 4*b, 4); d = vr(ACC + 16*t, 16)
        c = d if u > 0 else "0"
        if t % 3 == 2: k(f"v_mfma_f32_32x32x16_bf16 {d}, {a}, {w}, {c}")
        else: k(f"v_mfma_f32_32x32x16_bf16 {d}, {w}, {a}, {c}")
    mainloop(k, NT, KPS, NST, R, DA, DW, 3, dma, aload, wread, mfma, name + "_L")
    free = [(NST + i) % R for i in range(R - 2)]
    assert free == [4, 5, 0, 1]
    vw = k.v(); vrd = k.v()
    def region(dst, swv):
        k(f"s_mul_i32 s{dst}, s{swv}, 12288\ns_add_u32 s{dst}, s{dst}, {4*SLOT}\ns_cmp_ge_u32 s{dst}, {6*SLOT}\ns_cselect_b32 s{skb}, {6*SLOT}, 0\ns_sub_u32 s{dst}, s{dst}, s{skb}")
    region(st, sw)
    k(f"s_xor_b32 s{spar}, s{sw}, 4"); region(st2, spar)
    k(f"v_lshlrev_b32 v{vw}, 4, v{lane}\nv_add_u32 v{vrd}, s{st2}, v{vw}\nv_add_u32 v{vw}, s{st}, v{vw}")
    for i in range(12):
        k.ds(f"ds_write_b128 v{vw}, {vr(ACC+48+4*i,4)} offset:{1024*i}")
    k.wait(lg="all"); k("s_barrier")
    for i in range(12):
        k.ds(f"ds_read_b128 {vr(ACC+48+4*i,4)}, v{vrd} offset:{1024*i}", i)
    shd = k.s(); sq = k.s(); skv = k.s()
    k(f"s_lshl_b32 s{shd}, s{shp}, 1\ns_add_u32 s{shd}, s{shd}, s{skh}\ns_lshl_b32 s{shd}, s{shd}, 6\ns_add_u32 s{shd}, s{shd}, s{smb}")
    k(f"s_lshl_b32 s{sq}, s{shd}, 11\ns_add_u32 s{sq}, s{sq}, {WS_Q}\ns_lshl_b32 s{skv}, s{shd}, 12\ns_add_u32 s{skv}, s{skv}, {WS_KV}")
    k(f"v_lshlrev_b32 v{vw}, 4, v{lane}")
    sc = k.s(); k(f"s_mov_b32 s{sc}, {f32(32**-0.5 * math.log2(math.e))}")
    for tt in range(3):
        for hf in range(2):
            i0 = 16*tt + 8*hf
            k.wait(lg=i0//4 + 1)
            for e in range(8):
                k(f"v_add_f32 v{ACC+i0+e}, v{ACC+i0+e}, v{ACC+48+i0+e}")
            if tt == 0:
                for e in range(8): k(f"v_mul_f32 v{ACC+i0+e}, s{sc}, v{ACC+i0+e}")
            o = Wb + 4*((2*tt+hf) % (DW+1))
            for e in range(4):
                k(f"v_cvt_pk_bf16_f32 v{o+e}, v{ACC+i0+2*e}, v{ACC+i0+2*e+1}")
            if tt == 0: k.vm(f"buffer_store_dwordx4 {vr(o,4)}, v{vw}, {sr(S_ws,4)}, s{sq} offen offset:{1024*hf}")
            else: k.vm(f"buffer_store_dwordx4 {vr(o,4)}, v{vw}, {sr(S_ws,4)}, s{skv} offen offset:{2048*(tt-1)+1024*hf}")
    finish(k)
    return k

def gen_res(name, KTOT, wptr, a_off, is_down):
    R, KPS, NT, DA, DW = 4, 4, 2, 16, 3
    KSH = KTOT // 32
    NST = KSH // KPS
    SLOT = 16384
    k = K(name, (256, 1, 1), (512, 1, 1), R * SLOT + 32768)
    start(k, 256)
    lane, sw = k.lane, k.sw
    S_w = k.s(4); S_ws = k.s(4); S_x = k.s(4)
    k.srd(S_w, k.P + wptr, KTOT * 2048); k.srd(S_ws, k.PWS, WS_SIZE)
    k.srd(S_x, k.P + (P_OUT if is_down else P_X), 4*MB)
    smt = k.s(); snt = k.s(); smbl = k.s(); skh = k.s(); smb = k.s(); st = k.s(); st2 = k.s()
    k(f"s_and_b32 s{smt}, s2, 3\ns_lshl_b32 s{smt}, s{smt}, 2\ns_bfe_u32 s{st}, s2, 0x20003\ns_add_u32 s{smt}, s{smt}, s{st}")
    k(f"s_bfe_u32 s{snt}, s2, 0x10002\ns_lshl_b32 s{snt}, s{snt}, 3\ns_lshr_b32 s{st}, s2, 5\ns_add_u32 s{snt}, s{snt}, s{st}")
    k(f"s_and_b32 s{smbl}, s{sw}, 3\ns_lshr_b32 s{skh}, s{sw}, 2\ns_lshl_b32 s{smb}, s{smt}, 2\ns_add_u32 s{smb}, s{smb}, s{smbl}")
    vd = [dma_voff128(k, 2048), k.v()]
    k(f"s_mul_i32 s{st}, s{skh}, {KTOT//2}\ns_lshl_b32 s{st2}, s{smbl}, 4\ns_add_u32 s{st}, s{st}, s{st2}\ns_lshl_b32 s{st}, s{st}, 11\ns_lshl_b32 s{st2}, s{snt}, 7\ns_add_u32 s{st}, s{st}, s{st2}")
    k(f"v_add_u32 v{vd[0]}, s{st}, v{vd[0]}\nv_add_u32 v{vd[1]}, {8*2048}, v{vd[0]}")
    sW = k.s(); sL = k.s()
    k(f"s_mov_b32 s{sW}, 0\ns_lshl_b32 s{sL}, s{sw}, 11")
    def dma(j, i):
        k(f"s_add_u32 m0, s{sL}, {(j % R)*SLOT + i*1024}")
        k.vm(f"buffer_load_dwordx4 v{vd[i]}, {sr(S_w,4)}, s{sW} offen lds", ("dma", j))
        if i == 1: k(f"s_add_u32 s{sW}, s{sW}, {64*2048}")
    vA = k.v()
    k(f"s_mul_i32 s{st}, s{smb}, {KTOT//16*1024}\ns_mul_i32 s{st2}, s{skh}, {KSH*1024}\ns_add_u32 s{st}, s{st}, s{st2}\nv_lshlrev_b32 v{vA}, 4, v{lane}\nv_add_u32 v{vA}, s{st}, v{vA}")
    Abuf = k.v(4*DA, 4)
    aload = a_loader(k, S_ws, vA, Abuf, DA, a_off)
    skb = k.s(); spar = k.s()
    k(f"s_lshl_b32 s{skb}, s{skh}, 13\ns_lshl_b32 s{spar}, s{skh}, 6")
    ak, asend = tr_addr128(k, 4, skb, spar)
    Wb = k.v(4*(DW+1), 4)
    ACC = k.v(32, 4)
    RES = k.v(8, 4)
    vx = k.v(); vT = k.v(); sh = k.s(); t = k.v()
    k(f"s_lshl_b32 s{st}, s{smb}, 16\ns_lshl_b32 s{st2}, s{snt}, 7\ns_add_u32 s{st}, s{st}, s{st2}\ns_add_u32 s{st}, s{st}, s{spar}")
    k(f"v_and_b32 v{vx}, 31, v{lane}\nv_lshlrev_b32 v{vx}, 11, v{vx}\nv_lshrrev_b32 v{t}, 5, v{lane}\nv_lshlrev_b32 v{t}, {4 if is_down else 3}, v{t}\nv_add_u32 v{vx}, v{vx}, v{t}\nv_add_u32 v{vx}, s{st}, v{vx}")
    k(f"s_lshl_b32 s{sh}, s{smb}, 6\ns_lshl_b32 s{st2}, s{snt}, 2\ns_add_u32 s{sh}, s{sh}, s{st2}\ns_lshl_b32 s{st2}, s{skh}, 1\ns_add_u32 s{sh}, s{sh}, s{st2}\ns_lshl_b32 s{sh}, s{sh}, 10\ns_add_u32 s{sh}, s{sh}, {WS_H}")
    k(f"v_lshlrev_b32 v{vT}, 4, v{lane}")
    def mid():
        if is_down:
            for i in range(2): k.vm(f"buffer_load_dwordx4 {vr(RES+4*i,4)}, v{vT}, {sr(S_ws,4)}, s{sh} offen offset:{1024*i}", "res")
        else:
            for j in range(4): k.vm(f"buffer_load_dwordx2 {vr(RES+2*j,2)}, v{vx}, {sr(S_x,4)}, 0 offen offset:{16*j}", "res")
    def wread(j, uu, t, b, tag):
        B = ak if t == 0 else asend
        off = (j % R)*SLOT + uu*2048
        k.ds(f"ds_read_b64_tr_b16 {vr(Wb+4*b,2)}, v{B} offset:{off}", ("w", tag))
        k.ds(f"ds_read_b64_tr_b16 {vr(Wb+4*b+2,2)}, v{B} offset:{off+1024}", ("w", tag))
    def mfma(u, t, b):
        a = vr(Abuf + 4*(u % DA), 4); w = vr(Wb + 4*b, 4); d = vr(ACC + 16*t, 16)
        c = d if u > 0 else "0"
        k(f"v_mfma_f32_32x32x16_bf16 {d}, {w}, {a}, {c}")
    mainloop(k, NT, KPS, NST, R, DA, DW, 2, dma, aload, wread, mfma, name + "_L", mid)
    vw = k.v(); vrd = k.v()
    k(f"s_lshl_b32 s{st}, s{sw}, 12\ns_add_u32 s{st}, s{st}, {R*SLOT}\ns_xor_b32 s{st2}, s{st}, {4*4096}")
    assert (R*SLOT) % (8*4096) == 0
    k(f"v_add_u32 v{vw}, s{st}, v{vT}\nv_add_u32 v{vrd}, s{st2}, v{vT}")
    for i in range(4): k.ds(f"ds_write_b128 v{vw}, {vr(ACC+16+4*i,4)} offset:{1024*i}")
    k.wait(lg="all"); k("s_barrier")
    for i in range(4): k.ds(f"ds_read_b128 {vr(ACC+16+4*i,4)}, v{vrd} offset:{1024*i}", i)
    k.wait(vm="res")
    F = Abuf
    for e in range(8):
        k(f"v_lshlrev_b32 v{F+2*e}, 16, v{RES+e}\nv_and_b32 v{F+2*e+1}, 0xffff0000, v{RES+e}")
    for e in range(16): k(f"v_add_f32 v{ACC+e}, v{ACC+e}, v{F+e}")
    for hf in range(2):
        k.wait(lg=2*hf+1)
        for e in range(8): k(f"v_add_f32 v{ACC+8*hf+e}, v{ACC+8*hf+e}, v{ACC+16+8*hf+e}")
        o = Wb + 4*hf
        for e in range(4): k(f"v_cvt_pk_bf16_f32 v{o+e}, v{ACC+8*hf+2*e}, v{ACC+8*hf+2*e+1}")
        if is_down:
            k(f"v_permlane32_swap_b32 v{o}, v{o+2}\nv_permlane32_swap_b32 v{o+1}, v{o+3}")
            k.vm(f"buffer_store_dwordx4 {vr(o,4)}, v{vx}, {sr(S_x,4)}, 0 offen offset:{32*hf}")
        else:
            k.vm(f"buffer_store_dwordx4 {vr(o,4)}, v{vT}, {sr(S_ws,4)}, s{sh} offen offset:{1024*hf}")
    finish(k)
    return k

def gen_ffn1(name):
    R, KPS, NST, NT, DA, DW = 4, 4, 16, 7, 8, 3
    UPO = 14336 + 128
    SLOT = 28928
    k = K(name, (256, 1, 1), (512, 1, 1), R * SLOT)
    start(k, 256)
    lane, sw = k.lane, k.sw
    S_w = k.s(4); S_ws = k.s(4)
    smat = k.s(); swq = k.s(); snt = k.s(); smb = k.s(); st = k.s(); st2 = k.s()
    k(f"s_lshr_b32 s{smat}, s{sw}, 2\ns_and_b32 s{swq}, s{sw}, 3")
    k(f"s_cmp_eq_u32 s{smat}, 0\ns_cselect_b32 s{S_w}, s{k.P+P_WG}, s{k.P+P_WU}\ns_cselect_b32 s{S_w+1}, s{k.P+P_WG+1}, s{k.P+P_WU+1}\ns_mov_b32 s{S_w+2}, {7*MB}\ns_mov_b32 s{S_w+3}, 0x20000")
    k.srd(S_ws, k.PWS, WS_SIZE)
    k(f"s_and_b32 s{snt}, s2, 7\ns_lshl_b32 s{snt}, s{snt}, 2\ns_bfe_u32 s{st}, s2, 0x20003\ns_add_u32 s{snt}, s{snt}, s{st}")
    k(f"s_lshr_b32 s{smb}, s2, 5\ns_lshl_b32 s{smb}, s{smb}, 3\ns_add_u32 s{smb}, s{smb}, s{sw}")
    vd = [k.v() for _ in range(4)]; q = k.v(); rr = k.v(); t = k.v(); sm = k.s(); sp = k.s()
    k(f"s_mov_b32 s{sm}, 4682\ns_mov_b32 s{sp}, 7168")
    k(f"s_mul_i32 s{st}, s{swq}, {16*7168}\ns_mul_i32 s{st2}, s{snt}, 224\ns_add_u32 s{st}, s{st}, s{st2}")
    for i in range(4):
        k(f"v_add_u32 v{q}, {64*i}, v{lane}\nv_mul_lo_u32 v{rr}, v{q}, s{sm}\nv_lshrrev_b32 v{rr}, 16, v{rr}")
        k(f"v_mul_u32_u24 v{t}, 14, v{rr}\nv_sub_u32 v{t}, v{q}, v{t}\nv_lshlrev_b32 v{t}, 4, v{t}\nv_mul_lo_u32 v{rr}, v{rr}, s{sp}\nv_add3_u32 v{vd[i]}, v{rr}, v{t}, s{st}")
    for qq in range(256): assert (qq*4682) >> 16 == qq // 14
    sW = k.s(); sL = k.s()
    k(f"s_mov_b32 s{sW}, 0\ns_mul_i32 s{sL}, s{smat}, {UPO}\ns_mul_i32 s{st}, s{swq}, 3584\ns_add_u32 s{sL}, s{sL}, s{st}")
    def dma(j, i):
        k(f"s_add_u32 m0, s{sL}, {(j % R)*SLOT + i*1024}")
        if i == 3: k("s_mov_b32 exec_hi, 0")
        k.vm(f"buffer_load_dwordx4 v{vd[i]}, {sr(S_w,4)}, s{sW} offen lds", ("dma", j))
        if i == 3: k(f"s_mov_b32 exec_hi, -1\ns_add_u32 s{sW}, s{sW}, {64*7168}")
    vA = k.v()
    k(f"s_lshl_b32 s{st}, s{smb}, 16\nv_lshlrev_b32 v{vA}, 4, v{lane}\nv_add_u32 v{vA}, s{st}, v{vA}")
    Abuf = k.v(4*DA, 4)
    aload = a_loader(k, S_ws, vA, Abuf, DA, WS_HN)
    h, g1, r, cc = tr_lane_parts(k)
    a = k.v()
    k(f"v_lshl_add_u32 v{a}, v{h}, 2, v{r}\nv_mul_u32_u24 v{a}, 224, v{a}\nv_lshrrev_b32 v{t}, 1, v{cc}\nv_mul_u32_u24 v{t}, {UPO}, v{t}\nv_add_u32 v{a}, v{a}, v{t}")
    k(f"v_lshlrev_b32 v{t}, 4, v{g1}\nv_add_u32 v{a}, v{a}, v{t}\nv_and_b32 v{t}, 1, v{cc}\nv_lshlrev_b32 v{t}, 3, v{t}\nv_add_u32 v{a}, v{a}, v{t}")
    B = LdsBases(k, a, R*SLOT - 1)
    Wb = k.v(4*(DW+1), 4)
    ACC = k.v(112, 4)
    def wread(j, uu, t, b, tag):
        off = (j % R)*SLOT + uu*3584 + t*32
        k.ds(f"ds_read_b64_tr_b16 {vr(Wb+4*b,2)}, {B.at(off)}", ("w", tag))
        k.ds(f"ds_read_b64_tr_b16 {vr(Wb+4*b+2,2)}, {B.at(off+1792)}", ("w", tag))
    def mfma(u, t, b):
        aa = vr(Abuf + 4*(u % DA), 4); w = vr(Wb + 4*b, 4); d = vr(ACC + 16*t, 16)
        c = d if u > 0 else "0"
        k(f"v_mfma_f32_32x32x16_bf16 {d}, {w}, {aa}, {c}")
    mainloop(k, NT, KPS, NST, R, DA, DW, 4, dma, aload, wread, mfma, name + "_L")
    so = k.s(); sc = k.s(); vT = k.v()
    k(f"s_mul_i32 s{so}, s{smb}, 224\ns_mul_i32 s{st}, s{snt}, 7\ns_add_u32 s{so}, s{so}, s{st}\ns_lshl_b32 s{so}, s{so}, 10\ns_add_u32 s{so}, s{so}, {WS_ACT}")
    k(f"v_lshlrev_b32 v{vT}, 4, v{lane}\ns_mov_b32 s{sc}, {f32(-math.log2(math.e))}")
    E = Abuf
    for tt in range(7):
        D = ACC + 16*tt
        pairs = [(D+i, D+4+i) for i in range(4)] + [(D+8+i, D+12+i) for i in range(4)]
        for e, (g, u) in enumerate(pairs): k(f"v_mul_f32 v{E+e}, s{sc}, v{g}")
        for e in range(8): k(f"v_exp_f32 v{E+e}, v{E+e}")
        for e, (g, u) in enumerate(pairs): k(f"v_mul_f32 v{g}, v{g}, v{u}")
        for e in range(8): k(f"v_add_f32 v{E+e}, 1.0, v{E+e}")
        for e in range(8): k(f"v_rcp_f32 v{E+e}, v{E+e}")
        for e, (g, u) in enumerate(pairs): k(f"v_mul_f32 v{g}, v{g}, v{E+e}")
        o = Wb + 4*(tt % (DW+1))
        for e in range(4): k(f"v_cvt_pk_bf16_f32 v{o+e}, v{pairs[2*e][0]}, v{pairs[2*e+1][0]}")
        k.vm(f"buffer_store_dwordx4 {vr(o,4)}, v{vT}, {sr(S_ws,4)}, s{so} offen offset:{1024*(tt%4)}")
        if tt == 3: k(f"s_add_u32 s{so}, s{so}, 4096")
    finish(k)
    return k

def gen_attn(name):
    R, TPS, NST = 4, 4, 16
    SLOT = 16384
    NTILE = TPS * NST
    k = K(name, (256, 1, 1), (512, 1, 1), R * SLOT)
    start(k, 256)
    lane, sw = k.lane, k.sw
    S_ws = k.s(4); k.srd(S_ws, k.PWS, WS_SIZE)
    shd = k.s(); sqb = k.s(); st = k.s(); st2 = k.s(); sKV = k.s(); sKV0 = k.s(); sL = k.s(); scnt = k.s()
    k(f"s_and_b32 s{shd}, s2, 7\ns_lshl_b32 s{shd}, s{shd}, 2\ns_bfe_u32 s{st}, s2, 0x20003\ns_add_u32 s{shd}, s{shd}, s{st}")
    k(f"s_lshr_b32 s{sqb}, s2, 5\ns_lshl_b32 s{sqb}, s{sqb}, 3\ns_add_u32 s{sqb}, s{sqb}, s{sw}")
    vT = k.v(); vD = k.v(); t = k.v(); t2 = k.v()
    k(f"v_lshlrev_b32 v{vT}, 4, v{lane}\ns_lshl_b32 s{sL}, s{sw}, 11\nv_add_u32 v{vD}, s{sL}, v{vT}")
    k(f"s_lshl_b32 s{sKV0}, s{shd}, 18\ns_add_u32 s{sKV0}, s{sKV0}, {WS_KV}\ns_mov_b32 s{sKV}, s{sKV0}")
    def dma(j):
        k(f"s_add_u32 m0, s{sL}, {(j % R)*SLOT}")
        k.vm(f"buffer_load_dwordx4 v{vD}, {sr(S_ws,4)}, s{sKV} offen lds", ("dma", j))
        k.vm(f"buffer_load_dwordx4 v{vD}, {sr(S_ws,4)}, s{sKV} offen offset:1024 lds", ("dma", j))
        k(f"s_add_u32 s{sKV}, s{sKV}, {SLOT}")
    Q = k.v(8, 4); S = [k.v(16, 4), k.v(16, 4)]; NEG = k.v(16, 4); O = k.v(16, 4); Lr = k.v(4, 4); ONE = k.v(4, 4)
    Pf = k.v(8, 4); Kb = [k.v(8, 4), k.v(8, 4)]; Vb = [k.v(8, 4), k.v(8, 4)]
    dma(0)
    k(f"s_lshl_b32 s{st}, s{shd}, 6\ns_add_u32 s{st}, s{st}, s{sqb}\ns_lshl_b32 s{st}, s{st}, 11\ns_add_u32 s{st}, s{st}, {WS_Q}")
    for i in range(2): k.vm(f"buffer_load_dwordx4 {vr(Q+4*i,4)}, v{vT}, {sr(S_ws,4)}, s{st} offen offset:{1024*i}", "q")
    for j in range(1, R): dma(j)
    if PF:
        S_pf = k.s(4); vp = k.v(); PD = k.v(4, 4); spf = k.s(); nxt = k.s(4)
        k.srd(S_pf, k.P + P_WO, 2*MB)
        k(f"s_lshl_b32 s{spf}, s2, 13\nv_lshlrev_b32 v{vp}, 4, v0\nv_add_u32 v{vp}, s{spf}, v{vp}")
        k.vm(f"buffer_load_dwordx4 {vr(PD,4)}, v{vp}, {sr(S_pf,4)}, 0 offen", "pf")
        k(f"s_nop 4")
        k.srd(S_pf, k.P + P_WG, 7*MB)
        k(f"s_mov_b64 {sr(nxt,2)}, {sr(k.P+P_WU,2)}\ns_mov_b64 {sr(nxt+2,2)}, {sr(k.P+P_WD,2)}")
    def pf(j):
        if not PF or not (2 <= j < 14): return
        q = (j - 2) % 4
        k(f"s_mov_b32 s{spf}, {q*2*MB}")
        k.vm(f"buffer_load_dwordx4 {vr(PD,4)}, v{vp}, {sr(S_pf,4)}, s{spf} offen", "pf")
        if q == 3: k(f"s_nop 4\ns_mov_b64 {sr(S_pf,2)}, {sr(nxt,2)}\ns_mov_b64 {sr(nxt,2)}, {sr(nxt+2,2)}")
    k(f"v_lshrrev_b32 v{t}, 2, v{lane}\nv_lshrrev_b32 v{t2}, 4, v{lane}\nv_xor_b32 v{t}, v{t}, v{t2}\nv_and_b32 v{t}, 1, v{t}\nv_cmp_eq_u32 vcc, 0, v{t}")
    k(f"v_mov_b32 v{t2}, 0x3f803f80")
    for e in range(4): k(f"v_cndmask_b32 v{ONE+e}, 0, v{t2}, vcc")
    def kread(T):
        off = ((T // TPS) % R)*SLOT + (T % TPS)*4096
        for i in range(2): k.ds(f"ds_read_b128 {vr(Kb[T%2]+4*i,4)}, v{vT} offset:{off+1024*i}", ("k", T))
    def vread(T):
        off = ((T // TPS) % R)*SLOT + (T % TPS)*4096 + 2048
        for i in range(2): k.ds(f"ds_read_b128 {vr(Vb[T%2]+4*i,4)}, v{vT} offset:{off+1024*i}", ("v", T))
    def qk(T, i, c=None):
        d = vr(S[T%2], 16)
        cc = (vr(NEG, 16) if c is None else c) if i == 0 else d
        k(f"v_mfma_f32_32x32x16_bf16 {d}, {vr(Kb[T%2]+4*i,4)}, {vr(Q+4*i,4)}, {cc}")
    def rowmax16(src, dst):
        k(f"v_max3_f32 v{dst}, v{src}, v{src+1}, v{src+2}")
        for e in range(3, 15, 2): k(f"v_max3_f32 v{dst}, v{dst}, v{src+e}, v{src+e+1}")
        k(f"v_max_f32 v{dst}, v{dst}, v{src+15}")
    k.wait(vm="q"); k("s_barrier")
    kread(0); kread(1); vread(0)
    k.wait(lg=("k", 0))
    qk(0, 0, "0"); qk(0, 1)
    rowmax16(S[0], t)
    k(f"v_mov_b32 v{t2}, v{t}\nv_permlane32_swap_b32 v{t}, v{t2}\nv_max_f32 v{t}, v{t}, v{t2}")
    for e in range(16): k(f"v_sub_f32 v{NEG+e}, 0, v{t}")
    for e in range(16): k(f"v_sub_f32 v{S[0]+e}, v{S[0]+e}, v{t}")
    base = len(k.L); starts = [base]
    for T in range(NTILE):
        s = S[T % 2]
        pend = None
        if T + 2 < NTILE:
            if (T + 2) % TPS == 0:
                j = (T + 2) // TPS
                starts.append(len(k.L))
                k.wait(vm=("dma", j)); k("s_barrier")
                if j >= 2 and j - 2 + R < NST: pend = j - 2 + R
            kread(T + 2)
        if T + 1 < NTILE:
            vread(T + 1)
            k.wait(lg=("k", T + 1)); qk(T + 1, 0)
        for e in range(8): k(f"v_exp_f32 v{s+e}, v{s+e}")
        if T + 1 < NTILE: qk(T + 1, 1)
        for e in range(4): k(f"v_cvt_pk_bf16_f32 v{Pf+e}, v{s+2*e}, v{s+2*e+1}")
        if pend is not None: dma(pend); pf(pend + 2 - R)
        for e in range(8, 12): k(f"v_exp_f32 v{s+e}, v{s+e}")
        k.wait(lg=("v", T))
        k(f"v_mfma_f32_32x32x16_bf16 {vr(O,16)}, {vr(Vb[T%2],4)}, {vr(Pf,4)}, {vr(O,16) if T else '0'}")
        for e in range(12, 16): k(f"v_exp_f32 v{s+e}, v{s+e}")
        k(f"v_mfma_f32_16x16x32_bf16 {vr(Lr,4)}, {vr(ONE,4)}, {vr(Pf,4)}, {vr(Lr,4) if T else '0'}")
        for e in range(4, 8): k(f"v_cvt_pk_bf16_f32 v{Pf+e}, v{s+2*e}, v{s+2*e+1}")
        k(f"v_mfma_f32_32x32x16_bf16 {vr(O,16)}, {vr(Vb[T%2]+4,4)}, {vr(Pf+4,4)}, {vr(O,16)}")
        k(f"v_mfma_f32_16x16x32_bf16 {vr(Lr,4)}, {vr(ONE,4)}, {vr(Pf+4,4)}, {vr(Lr,4)}")
    starts.append(len(k.L))
    blocks = [k.L[starts[i]:starts[i+1]] for i in range(len(starts) - 1)]
    del k.L[base:]
    compress_loop(k, blocks, R, scnt, name + "_L")
    k.label(name + "_CHK")
    k(f"v_max3_f32 v{t}, |v{O}|, |v{O+1}|, |v{O+2}|")
    for e in range(3, 15, 2): k(f"v_max3_f32 v{t}, v{t}, |v{O+e}|, |v{O+e+1}|")
    k(f"v_max_f32 v{t}, v{t}, |v{O+15}|".replace("v_max_f32", "v_max_f32_e64"))
    k(f"s_mov_b32 s{st}, {f32(2.0**100)}\ns_mov_b32 s{st2}, 0x7f7fffff")
    k(f"v_cmp_nle_f32 vcc, v{Lr}, s{st}".replace("v_cmp_nle_f32", "v_cmp_nle_f32_e64"))
    sx = k.s(2)
    k(f"v_cmp_nle_f32_e64 {sr(sx,2)}, v{t}, s{st2}")
    k(f"v_add_f32 v{t2}, v{O}, v{O+1}")
    for e in range(2, 16): k(f"v_add_f32 v{t2}, v{t2}, v{O+e}")
    sy = k.s(2)
    k(f"v_cmp_u_f32_e64 {sr(sy,2)}, v{t2}, v{t2}")
    k(f"s_or_b64 vcc, vcc, {sr(sx,2)}\ns_or_b64 vcc, vcc, {sr(sy,2)}\ns_cbranch_scc1 {name}_SLOW")
    k.label(name + "_OUT")
    k(f"v_rcp_f32 v{t}, v{Lr}")
    k(f"s_lshl_b32 s{st}, s{sqb}, 6\ns_lshl_b32 s{st2}, s{shd}, 1\ns_add_u32 s{st}, s{st}, s{st2}\ns_lshl_b32 s{st}, s{st}, 10\ns_add_u32 s{st}, s{st}, {WS_O}")
    for e in range(16): k(f"v_mul_f32 v{O+e}, v{O+e}, v{t}")
    for e in range(8): k(f"v_cvt_pk_bf16_f32 v{Pf+e}, v{O+2*e}, v{O+2*e+1}")
    for i in range(2): k.vm(f"buffer_store_dwordx4 {vr(Pf+4*i,4)}, v{vT}, {sr(S_ws,4)}, s{st} offen offset:{1024*i}")
    tend(k)
    k("s_endpgm")
    k.vmq = []; k.lgq = []
    k.label(name + "_SLOW")
    mx = k.v()
    k(f"v_mov_b32 v{mx}, 0xff800000\ns_mov_b32 s{sKV}, s{sKV0}\ns_mov_b32 s{scnt}, {NTILE}")
    k.label(name + "_S1")
    for i in range(2): k.vm(f"buffer_load_dwordx4 {vr(Kb[0]+4*i,4)}, v{vT}, {sr(S_ws,4)}, s{sKV} offen offset:{1024*i}")
    k.wait(vm="all")
    qk(0, 0, "0"); qk(0, 1)
    rowmax16(S[0], t)
    k(f"v_max_f32 v{mx}, v{mx}, v{t}")
    k(f"s_add_u32 s{sKV}, s{sKV}, 4096\ns_sub_u32 s{scnt}, s{scnt}, 1\ns_cmp_lg_u32 s{scnt}, 0\ns_cbranch_scc1 {name}_S1")
    k(f"v_mov_b32 v{t2}, v{mx}\nv_permlane32_swap_b32 v{mx}, v{t2}\nv_max_f32 v{mx}, v{mx}, v{t2}")
    for e in range(16): k(f"v_sub_f32 v{NEG+e}, 0, v{mx}")
    for e in range(16): k(f"v_mov_b32 v{O+e}, 0")
    for e in range(4): k(f"v_mov_b32 v{Lr+e}, 0")
    k(f"s_mov_b32 s{sKV}, s{sKV0}\ns_mov_b32 s{scnt}, {NTILE}")
    k.label(name + "_S2")
    for i in range(2): k.vm(f"buffer_load_dwordx4 {vr(Kb[0]+4*i,4)}, v{vT}, {sr(S_ws,4)}, s{sKV} offen offset:{1024*i}")
    for i in range(2): k.vm(f"buffer_load_dwordx4 {vr(Vb[0]+4*i,4)}, v{vT}, {sr(S_ws,4)}, s{sKV} offen offset:{2048+1024*i}")
    k.wait(vm="all")
    qk(0, 0); qk(0, 1)
    s = S[0]
    for e in range(16): k(f"v_exp_f32 v{s+e}, v{s+e}")
    for e in range(8): k(f"v_cvt_pk_bf16_f32 v{Pf+e}, v{s+2*e}, v{s+2*e+1}")
    for i in range(2):
        k(f"v_mfma_f32_32x32x16_bf16 {vr(O,16)}, {vr(Vb[0]+4*i,4)}, {vr(Pf+4*i,4)}, {vr(O,16)}")
        k(f"v_mfma_f32_16x16x32_bf16 {vr(Lr,4)}, {vr(ONE,4)}, {vr(Pf+4*i,4)}, {vr(Lr,4)}")
    k(f"s_add_u32 s{sKV}, s{sKV}, 4096\ns_sub_u32 s{scnt}, s{scnt}, 1\ns_cmp_lg_u32 s{scnt}, 0\ns_cbranch_scc1 {name}_S2")
    k(f"s_nop 15\ns_branch {name}_OUT")
    finish(k, False)
    return k

def build(out):
    ks = [gen_ln("ln1_kernel", False, 0, WS_XN), gen_qkv("qkv_kernel"), gen_attn("attn_kernel"),
          gen_res("wo_kernel", 1024, P_WO, WS_O, False), gen_ln("ln2_kernel", True, WS_H, WS_HN),
          gen_ffn1("ffn1_kernel"), gen_res("ffn2_kernel", 3584, P_WD, WS_ACT, True)]
    ref = open("cdna_kernels/" + NAME + ".s.ref").read().split("\n")
    head = [l for l in ref if l.startswith(";") and not l.startswith("; @launch") and not l.startswith("; Override") and not l.startswith("; grid=")]
    txt = "\n".join(head) + "\n"
    for k in ks:
        txt += f"; @launch kernel={k.name} grid=({k.grid[0]},{k.grid[1]},{k.grid[2]}) block=({k.block[0]},{k.block[1]},{k.block[2]}) lds={k.lds}\n"
    txt += '.amdgcn_target "amdgcn-amd-amdhsa--gfx950"\n'
    descs = ""
    for k in ks:
        c, d = k.text(); txt += c; descs += d
        print(k.name, "vgpr", k.nv, "lines", c.count("\n"), "lds", k.lds, file=sys.stderr)
    txt += descs
    open(out, "w").write(txt)

if __name__ == "__main__":
    if "--timing" in sys.argv: TIMING = True; sys.argv.remove("--timing")
    if "--nopf" in sys.argv: PF = False; sys.argv.remove("--nopf")
    if "--dbg" in sys.argv: TIMING = 2; sys.argv.remove("--dbg")
    build(sys.argv[1] if len(sys.argv) > 1 else "cdna_kernels/" + NAME + ".s")
```

```python
import math
from asmlib import *
import gen as G
from gen import MB, f32, sr, vr, stamp, finish, tstart, WS_SIZE, P_X, P_WQKV, P_WO, P_WG, P_WU, P_WD, P_OUT, LdsBases
WS_XN, WS_Q, WS_KV, WS_O, WS_H, WS_ACT = 0, 4*MB, 8*MB, 16*MB, 20*MB, 28*MB
WS_ST = 24*MB
WS_CS = 25*MB
MF = "v_mfma_f32_16x16x32_bf16"

def start2(k, nwg):
    k(f"s_cmp_ge_u32 s2, {nwg}\ns_cbranch_scc1 {k.name}_END")
    P = k.s(16, 4); P2 = k.s(4, 4)
    k(f"s_load_dwordx16 {sr(P,16)}, s[0:1], 0\ns_load_dwordx4 {sr(P2,4)}, s[0:1], 64")
    lane = k.v(); sw = k.s()
    k(f"v_lshrrev_b32 v{lane}, 6, v0")
    k(f"v_readfirstlane_b32 s{sw}, v{lane}")
    k(f"v_and_b32 v{lane}, 63, v0")
    k.P = P; k.PWS = P2 + 2; k.lane = lane; k.sw = sw
    tstart(k)
def karg(k):
    k("s_waitcnt lgkmcnt(0)")
    stamp(k)

def mainloop16(k, order, MT, KPS, NST, R, DA, DW, ndma, dma, aload, wread, mfma, lname, pro, period,
               fill=None, lpm=1, lag=2, mid=None):
    NB = DW + 1
    n = len(order)
    KS = KPS * NST
    scnt = k.s()
    first_use = {}; last_use = {}; first_stage = {}
    for i, (u, t) in enumerate(order):
        first_use.setdefault(u, i); last_use[u] = i
        first_stage.setdefault(u // KPS, i)
    barpos = {j: max(-1, first_stage[j] - DW) if j else -1 for j in range(NST)}
    todo = []
    for j in range(NST):
        for q in range(ndma):
            jj = j - R + lag
            todo.append((barpos[j], barpos[jj] if jj >= 0 else -2, "d", j, q))
    for u in range(KS):
        for i in range(MT):
            todo.append((first_use[u], last_use[u - DA] if u >= DA else -2, "a", u, i))
    todo.sort(key=lambda x: (x[0], x[2] == "a", x[3], x[4]))
    X = G.XF if lname.startswith(G.XK[G.XI]) else 0
    def issue(e):
        if e[2] == "d" and (X & 1) and e[3] >= R: return
        if e[2] == "a" and (X & 2) and e[3] >= DA: return
        (dma if e[2] == "d" else aload)(e[3], e[4])
    for p in pro:
        e = [x for x in todo if x[2:] == p][0]; todo.remove(e); issue(e)
    if mid: mid()
    stamp(k)
    k.wait(vm=("dma", 0)); k("s_barrier")
    stamp(k)
    done_bar = {0}
    def do_read(m):
        u, t = order[m]
        j = u // KPS
        if j not in done_bar:
            starts.append(len(k.L))
            k.wait(vm=("dma", j))
            if not (X & 4): k("s_barrier")
            done_bar.add(j)
        if not (X & 8) or m < 16: wread(j, u % KPS, t, m % NB, m)
    base = len(k.L); starts = [base]
    for m in range(min(DW, n)): do_read(m)
    seen_a = set()
    for i, (u, t) in enumerate(order):
        if i + DW < n: do_read(i + DW)
        k.wait(vm=("a", u) if u not in seen_a else None, lg=("w", i)); seen_a.add(u)
        mfma(u, t, i % NB)
        c = 0
        while c < lpm:
            e = next((x for x in todo if x[1] <= i), None)
            if e is None: break
            todo.remove(e); issue(e); c += 1
        if fill: fill(i, (u, t))
    assert not todo, todo[:4]
    starts.append(len(k.L))
    blocks = [k.L[starts[i]:starts[i+1]] for i in range(len(starts) - 1)]
    del k.L[base:]
    reps = compress_loop(k, blocks, period, scnt, lname)
    stamp(k)
    return reps

def lane_parts(k):
    lane = k.lane
    g = k.v(); r = k.v(); cc = k.v()
    k(f"v_lshrrev_b32 v{g}, 4, v{lane}\nv_bfe_u32 v{r}, v{lane}, 2, 2\nv_and_b32 v{cc}, 3, v{lane}")
    return g, r, cc

def a_loader16(k, S_ws, vA, Abuf, MT, DA, base_off):
    sA = k.s()
    k(f"s_mov_b32 s{sA}, {base_off}")
    def aload(u, i):
        k.vm(f"buffer_load_dwordx4 {vr(Abuf + 4*((u % DA)*MT + i), 4)}, v{vA[i]}, {sr(S_ws,4)}, s{sA} offen offset:{1024*(u%4)}", ("a", u))
        if u % 4 == 3 and i == MT - 1: k(f"s_add_u32 s{sA}, s{sA}, 4096")
    return aload

def xg_reduce(k, regs, tmp):
    for r in regs:
        k(f"v_mov_b32 v{tmp}, v{r}\nv_permlane16_swap_b32 v{r}, v{tmp}\nv_add_f32 v{r}, v{r}, v{tmp}")
        k(f"v_mov_b32 v{tmp}, v{r}\nv_permlane32_swap_b32 v{r}, v{tmp}\nv_add_f32 v{r}, v{r}, v{tmp}")

def gen_res16(name, KTOT, wptr, a_off, is_down, R=6, DA=6, DW=4, NPRO=2, lpm=1):
    KPS, NT, MT = 2, 4, 2
    KSH = KTOT // 64
    NST = KSH // KPS
    SLOT = 16384
    R = min(R, NST)
    k = K(name, (256, 1, 1), (512, 1, 1), R * SLOT + 32768)
    start2(k, 256)
    lane, sw = k.lane, k.sw
    S_w = k.s(4); S_ws = k.s(4); S_x = k.s(4)
    smt = k.s(); snt = k.s(); smbl = k.s(); skh = k.s(); sm16 = k.s(); st = k.s(); st2 = k.s()
    k(f"s_and_b32 s{smt}, s2, 3\ns_lshl_b32 s{smt}, s{smt}, 2\ns_bfe_u32 s{st}, s2, 0x20003\ns_add_u32 s{smt}, s{smt}, s{st}")
    k(f"s_bfe_u32 s{snt}, s2, 0x10002\ns_lshl_b32 s{snt}, s{snt}, 3\ns_lshr_b32 s{st}, s2, 5\ns_add_u32 s{snt}, s{snt}, s{st}")
    k(f"s_and_b32 s{smbl}, s{sw}, 3\ns_lshr_b32 s{skh}, s{sw}, 2")
    k(f"s_lshl_b32 s{sm16}, s{smt}, 3\ns_lshl_b32 s{st}, s{smbl}, 1\ns_add_u32 s{sm16}, s{sm16}, s{st}\ns_add_u32 s{sm16}, s{sm16}, s{skh}")
    vd = [k.v(), k.v()]; t = k.v(); t2 = k.v()
    k(f"v_lshrrev_b32 v{t}, 3, v{lane}\nv_lshlrev_b32 v{vd[0]}, 11, v{t}\nv_bfe_u32 v{t}, v{lane}, 4, 2\nv_lshlrev_b32 v{t}, 1, v{t}\nv_and_b32 v{t2}, 7, v{lane}\nv_xor_b32 v{t}, v{t}, v{t2}\nv_lshl_add_u32 v{vd[0]}, v{t}, 4, v{vd[0]}")
    k(f"s_mul_i32 s{st}, s{skh}, {KTOT//2}\ns_lshl_b32 s{st2}, s{smbl}, 4\ns_add_u32 s{st}, s{st}, s{st2}\ns_lshl_b32 s{st}, s{st}, 11\ns_lshl_b32 s{st2}, s{snt}, 7\ns_add_u32 s{st}, s{st}, s{st2}")
    k(f"v_add_u32 v{vd[0]}, s{st}, v{vd[0]}\nv_add_u32 v{vd[1]}, {8*2048}, v{vd[0]}")
    sW = k.s(); sL = k.s()
    k(f"s_mov_b32 s{sW}, 0\ns_lshl_b32 s{sL}, s{sw}, 11")
    def dma(j, i):
        k(f"s_add_u32 m0, s{sL}, {(j % R)*SLOT + i*1024}")
        k.vm(f"buffer_load_dwordx4 v{vd[i]}, {sr(S_w,4)}, s{sW} offen lds", ("dma", j))
        if i == 1: k(f"s_add_u32 s{sW}, s{sW}, {64*2048}")
    vA = [k.v(), k.v()]; vT = k.v()
    k(f"v_lshlrev_b32 v{vT}, 4, v{lane}")
    k(f"s_mul_i32 s{st2}, s{skh}, {KSH*1024}")
    k(f"s_mul_i32 s{st}, s{sm16}, {KTOT//32*1024}\ns_add_u32 s{st}, s{st}, s{st2}\nv_add_u32 v{vA[0]}, s{st}, v{vT}")
    k(f"s_xor_b32 s{st}, s{sm16}, 1\ns_mul_i32 s{st}, s{st}, {KTOT//32*1024}\ns_add_u32 s{st}, s{st}, s{st2}\nv_add_u32 v{vA[1]}, s{st}, v{vT}")
    Abuf = k.v(4*MT*DA, 4)
    aload = a_loader16(k, S_ws, vA, Abuf, MT, DA, a_off)
    g, r, cc = lane_parts(k)
    ra = [k.v() for _ in range(4)]
    if is_down: k(f"v_lshl_add_u32 v{t}, v{g}, 2, v{r}")
    else: k(f"v_lshrrev_b32 v{t}, 1, v{g}\nv_lshlrev_b32 v{t}, 4, v{t}\nv_and_b32 v{t2}, 1, v{g}\nv_lshl_add_u32 v{t}, v{t2}, 2, v{t}\nv_add_u32 v{t}, v{t}, v{r}")
    k(f"s_lshl_b32 s{st}, s{skh}, 13\nv_lshlrev_b32 v{t2}, 7, v{t}\nv_lshl_add_u32 v{t2}, v{cc}, 3, v{t2}\nv_add_u32 v{t2}, s{st}, v{t2}")
    k(f"v_bfe_u32 v{t}, v{t}, 1, 2")
    for tt in range(4):
        k(f"v_xor_b32 v{ra[tt]}, {tt}, v{t}\nv_lshl_add_u32 v{ra[tt]}, v{ra[tt]}, 5, v{t2}")
    RB = [LdsBases(k, ra[tt], R*SLOT - 1) for tt in range(4)]
    HOFF = 2048 if is_down else 1024
    Wb = k.v(4*(DW+1), 4)
    ACC = k.v(32, 4)
    RES = k.v(8, 4)
    vx = k.v(); sh = k.s(); vs = k.v()
    k(f"s_lshl_b32 s{st}, s{sm16}, 15\ns_lshl_b32 s{st2}, s{snt}, 7\ns_add_u32 s{st}, s{st}, s{st2}")
    k(f"v_and_b32 v{vx}, 15, v{lane}\nv_lshlrev_b32 v{vs}, 7, v{vx}\nv_lshlrev_b32 v{vx}, 11, v{vx}\nv_and_b32 v{t}, 1, v{g}\nv_lshl_add_u32 v{vx}, v{t}, 5, v{vx}\nv_lshrrev_b32 v{t}, 1, v{g}\nv_lshl_add_u32 v{vx}, v{t}, 4, v{vx}\nv_add_u32 v{vx}, s{st}, v{vx}")
    k(f"s_lshl_b32 s{sh}, s{sm16}, 15\ns_lshl_b32 s{st2}, s{snt}, 11\ns_add_u32 s{sh}, s{sh}, s{st2}\ns_add_u32 s{sh}, s{sh}, {WS_H}")
    if not is_down:
        k(f"s_lshl_b32 s{st}, s{sm16}, 11\ns_lshl_b32 s{st2}, s{snt}, 3\ns_add_u32 s{st}, s{st}, s{st2}\ns_add_u32 s{st}, s{st}, {WS_ST}")
        k(f"v_lshl_add_u32 v{vs}, v{g}, 28, v{vs}\nv_add_u32 v{vs}, s{st}, v{vs}")
    vw = k.v(); vrd = k.v()
    k(f"s_lshl_b32 s{st}, s{sw}, 12\ns_add_u32 s{st}, s{st}, {R*SLOT}\nv_add_u32 v{vw}, s{st}, v{vT}")
    k(f"s_xor_b32 s{st}, s{sw}, 4\ns_lshl_b32 s{st}, s{st}, 12\ns_add_u32 s{st}, s{st}, {R*SLOT}\nv_add_u32 v{vrd}, s{st}, v{vT}")
    karg(k)
    k.srd(S_w, k.P + wptr, KTOT * 2048); k.srd(S_ws, k.PWS, WS_SIZE)
    k.srd(S_x, k.P + (P_OUT if is_down else P_X), 4*MB)
    def res_load():
        if is_down:
            for i in range(2): k.vm(f"buffer_load_dwordx4 {vr(RES+4*i,4)}, v{vT}, {sr(S_ws,4)}, s{sh} offen offset:{1024*i}", "res")
        else:
            for i in range(2): k.vm(f"buffer_load_dwordx4 {vr(RES+4*i,4)}, v{vx}, {sr(S_x,4)}, 0 offen offset:{64*i}", "res")
    def wread(j, uu, t, b, tag):
        off = (j % R)*SLOT + uu*4096
        k.ds(f"ds_read_b64_tr_b16 {vr(Wb+4*b,2)}, {RB[t].at(off)}", ("w", tag))
        k.ds(f"ds_read_b64_tr_b16 {vr(Wb+4*b+2,2)}, {RB[t].at(off+HOFF)}", ("w", tag))
    def mfma(u, t, b):
        for i in range(MT):
            a = vr(Abuf + 4*((u % DA)*MT + i), 4); w = vr(Wb + 4*b, 4); d = vr(ACC + 16*i + 4*t, 4)
            k(f"{MF} {d}, {w}, {a}, {d if u > 0 else '0'}")
    order = [(u, t) for u in range(KSH) for t in range(NT)]
    pro = []
    for j in range(NPRO):
        pro += [("d", j, q) for q in range(2)] + [("a", KPS*j + uu, i) for uu in range(KPS) for i in range(MT)]
    nsl = len(order)
    def fill(i, s):
        if i == nsl - 6*NT: res_load()
    period = math.lcm(R, DA // math.gcd(DA, KPS), 2, (DW + 1) // math.gcd(DW + 1, KPS*NT))
    reps = mainloop16(k, order, MT, KPS, NST, R, DA, DW, 2, dma, aload, wread, mfma, name + "_L", pro, period, fill, lpm)
    for i in range(4): k.ds(f"ds_write_b128 v{vw}, {vr(ACC+16+4*i,4)} offset:{1024*i}")
    k.wait(vm="res")
    F = Abuf
    if not is_down:
        for p in range(2):
            k(f"v_permlane16_swap_b32 v{RES+4*p}, v{RES+4*p+2}\nv_permlane16_swap_b32 v{RES+4*p+1}, v{RES+4*p+3}")
    for e in range(8):
        k(f"v_lshlrev_b32 v{F+2*e}, 16, v{RES+e}\nv_and_b32 v{F+2*e+1}, 0xffff0000, v{RES+e}")
    for e in range(16): k(f"v_add_f32 v{ACC+e}, v{ACC+e}, v{F+e}")
    k.wait(lg="all"); k("s_barrier")
    for i in range(4): k.ds(f"ds_read_b128 {vr(ACC+16+4*i,4)}, v{vrd} offset:{1024*i}", i)
    SM = k.v(2, 2)
    for p in range(2):
        k.wait(lg=2*p+1)
        for e in range(8): k(f"v_add_f32 v{ACC+8*p+e}, v{ACC+8*p+e}, v{ACC+16+8*p+e}")
        o = Wb + 4*p
        for e in range(4): k(f"v_cvt_pk_bf16_f32 v{o+e}, v{ACC+8*p+2*e}, v{ACC+8*p+2*e+1}")
        if is_down:
            k(f"v_permlane16_swap_b32 v{o}, v{o+2}\nv_permlane16_swap_b32 v{o+1}, v{o+3}")
            k.vm(f"buffer_store_dwordx4 {vr(o,4)}, v{vx}, {sr(S_x,4)}, 0 offen offset:{64*p}")
        else:
            k.vm(f"buffer_store_dwordx4 {vr(o,4)}, v{vT}, {sr(S_ws,4)}, s{sh} offen offset:{1024*p}")
    if not is_down:
        k(f"v_add_f32 v{SM}, v{ACC}, v{ACC+1}\nv_mul_f32 v{SM+1}, v{ACC}, v{ACC}\nv_add_f32 v{t}, v{ACC+2}, v{ACC+3}\nv_mul_f32 v{t2}, v{ACC+1}, v{ACC+1}")
        for e in range(2, 16):
            k(f"v_fmac_f32 v{SM+1 if e % 2 == 0 else t2}, v{ACC+e}, v{ACC+e}")
            if e >= 4: k(f"v_add_f32 v{SM if e % 2 == 0 else t}, v{SM if e % 2 == 0 else t}, v{ACC+e}")
        k(f"v_add_f32 v{SM}, v{SM}, v{t}\nv_add_f32 v{SM+1}, v{SM+1}, v{t2}")
        k(f"v_mov_b32 v{t}, v{SM}\nv_mov_b32 v{t2}, v{SM+1}\nv_permlane16_swap_b32 v{SM}, v{t}\nv_permlane16_swap_b32 v{SM+1}, v{t2}\nv_add_f32 v{SM}, v{SM}, v{t}\nv_add_f32 v{SM+1}, v{SM+1}, v{t2}")
        k(f"v_mov_b32 v{t}, v{SM}\nv_mov_b32 v{t2}, v{SM+1}\nv_permlane32_swap_b32 v{SM}, v{t}\nv_permlane32_swap_b32 v{SM+1}, v{t2}\nv_add_f32 v{SM}, v{SM}, v{t}\nv_add_f32 v{SM+1}, v{SM+1}, v{t2}")
        k.vm(f"buffer_store_dwordx2 {vr(SM,2)}, v{vs}, {sr(S_ws,4)}, 0 offen")
    finish(k)
    return k

def gen_ffn1_16(name, R=5, DA=6, DW=4, TAIL=0, lpm=1):
    KPS, NST, NT, MT = 2, 16, 14, 2
    UPO = 14336
    SLOT = 28672
    CS = R * SLOT
    k = K(name, (256, 1, 1), (512, 1, 1), R * SLOT + 1024)
    start2(k, 256)
    lane, sw = k.lane, k.sw
    S_w = k.s(4); S_ws = k.s(4)
    smat = k.s(); swq = k.s(); snt = k.s(); sm16 = k.s(); st = k.s(); st2 = k.s(); sodd = k.s()
    k(f"s_lshr_b32 s{smat}, s{sw}, 2\ns_and_b32 s{swq}, s{sw}, 3")
    k(f"s_and_b32 s{snt}, s2, 7\ns_lshl_b32 s{snt}, s{snt}, 2\ns_bfe_u32 s{st}, s2, 0x20003\ns_add_u32 s{snt}, s{snt}, s{st}\ns_and_b32 s{sodd}, s{snt}, 1")
    k(f"s_lshr_b32 s{sm16}, s2, 5\ns_lshl_b32 s{sm16}, s{sm16}, 3\ns_add_u32 s{sm16}, s{sm16}, s{sw}\ns_lshl_b32 s{sm16}, s{sm16}, 1")
    vd = [k.v() for _ in range(4)]; q = k.v(); rr = k.v(); t = k.v(); sm = k.s(); sp = k.s()
    k(f"s_mov_b32 s{sm}, 4682\ns_mov_b32 s{sp}, 7168")
    k(f"s_mul_i32 s{st}, s{swq}, {16*7168}\ns_mul_i32 s{st2}, s{snt}, 224\ns_add_u32 s{st}, s{st}, s{st2}")
    for i in range(4):
        k(f"v_add_u32 v{q}, {64*i}, v{lane}\nv_mul_lo_u32 v{rr}, v{q}, s{sm}\nv_lshrrev_b32 v{rr}, 16, v{rr}")
        k(f"v_mul_u32_u24 v{t}, 14, v{rr}\nv_sub_u32 v{t}, v{q}, v{t}\nv_lshlrev_b32 v{t}, 4, v{t}\nv_mul_lo_u32 v{rr}, v{rr}, s{sp}\nv_add3_u32 v{vd[i]}, v{rr}, v{t}, s{st}")
    sW = k.s(); sL = k.s()
    k(f"s_mov_b32 s{sW}, 0\ns_mul_i32 s{sL}, s{smat}, {UPO}\ns_mul_i32 s{st}, s{swq}, 3584\ns_add_u32 s{sL}, s{sL}, s{st}")
    def dma(j, i):
        k(f"s_add_u32 m0, s{sL}, {(j % R)*SLOT + i*1024}")
        if i == 3: k("s_mov_b32 exec_hi, 0")
        k.vm(f"buffer_load_dwordx4 v{vd[i]}, {sr(S_w,4)}, s{sW} offen lds", ("dma", j))
        if i == 3: k(f"s_mov_b32 exec_hi, -1\ns_add_u32 s{sW}, s{sW}, {64*7168}")
    vA = [k.v(), k.v()]; vT = k.v()
    k(f"v_lshlrev_b32 v{vT}, 4, v{lane}\ns_lshl_b32 s{st}, s{sm16}, 15\nv_add_u32 v{vA[0]}, s{st}, v{vT}\nv_add_u32 v{vA[1]}, 32768, v{vA[0]}")
    Abuf = k.v(4*MT*DA, 4)
    aload = a_loader16(k, S_ws, vA, Abuf, MT, DA, WS_H)
    g, r, cc = lane_parts(k)
    a1 = k.v(); a2 = k.v(); c1 = k.v(); c2 = k.v()
    k(f"v_lshl_add_u32 v{a2}, v{g}, 2, v{r}\nv_mul_u32_u24 v{a2}, 224, v{a2}\nv_lshl_add_u32 v{a2}, v{cc}, 3, v{a2}")
    k(f"s_lshl_b32 s{st}, s{sodd}, 5\nv_add_u32 v{a1}, s{st}, v{a2}\ns_mul_i32 s{st}, s{sodd}, 192\ns_sub_u32 s{st}, 192, s{st}\nv_add_u32 v{a2}, s{st}, v{a2}")
    k(f"s_lshl_b32 s{st}, s{st}, 1\ns_add_u32 s{st}, s{st}, {CS}\nv_lshl_add_u32 v{c2}, v{g}, 4, s{st}\ns_lshl_b32 s{st}, s{sodd}, 6\ns_add_u32 s{st}, s{st}, {CS}\nv_lshl_add_u32 v{c1}, v{g}, 4, s{st}")
    B1 = LdsBases(k, a1, R*SLOT - 1); B2 = LdsBases(k, a2, R*SLOT - 1)
    vs = k.v(); ss = k.s(); vc = k.v()
    k(f"v_and_b32 v{vs}, 15, v{lane}\nv_lshlrev_b32 v{vs}, 7, v{vs}\nv_lshl_add_u32 v{vs}, v{g}, 5, v{vs}\ns_lshl_b32 s{ss}, s{sm16}, 11\ns_add_u32 s{ss}, s{ss}, {WS_ST}")
    k(f"v_cmp_le_u32 vcc, 28, v{lane}\nv_mov_b32 v{t}, {3584*4 - 448}\nv_cndmask_b32 v{vc}, 0, v{t}, vcc\nv_add_u32 v{vc}, v{vc}, v{vT}")
    k(f"v_cmp_le_u32 vcc, 56, v{lane}\nv_mov_b32 v{t}, 0x10000000\nv_cndmask_b32 v{vc}, v{vc}, v{t}, vcc")
    sc = k.s(); k(f"s_mul_i32 s{sc}, s{snt}, 448\ns_add_u32 s{sc}, s{sc}, {WS_CS}")
    so = k.s(); so6 = k.s(); v6 = k.v()
    k(f"s_mul_i32 s{so}, s{sm16}, 112\ns_lshr_b32 s{st}, s{snt}, 1\ns_mul_i32 s{st}, s{st}, 7\ns_add_u32 s{so}, s{so}, s{st}\ns_add_u32 s{so6}, s{so}, 3\ns_lshl_b32 s{st}, s{sodd}, 2\ns_add_u32 s{so}, s{so}, s{st}")
    k(f"s_lshl_b32 s{so}, s{so}, 10\ns_add_u32 s{so}, s{so}, {WS_ACT}\ns_lshl_b32 s{so6}, s{so6}, 10\ns_add_u32 s{so6}, s{so6}, {WS_ACT}")
    vO1 = k.v(); v61 = k.v()
    k(f"s_lshl_b32 s{st}, s{sodd}, 3\nv_add_u32 v{v6}, s{st}, v{vT}\nv_add_u32 v{vO1}, {112*1024}, v{vT}\nv_add_u32 v{v61}, {112*1024}, v{v6}")
    Wb = k.v(4*(DW+1), 4)
    ACC = k.v(112, 4)
    STT = k.v(16, 4)
    NM = k.v(2, 2); VAR = k.v(2, 2); CE = k.v(2, 2)
    OUT = k.v(8, 4)
    karg(k)
    k(f"s_cmp_eq_u32 s{smat}, 0\ns_cselect_b32 s{S_w}, s{k.P+P_WG}, s{k.P+P_WU}\ns_cselect_b32 s{S_w+1}, s{k.P+P_WG+1}, s{k.P+P_WU+1}\ns_mov_b32 s{S_w+2}, {7*MB}\ns_mov_b32 s{S_w+3}, 0x20000")
    k.srd(S_ws, k.PWS, WS_SIZE)
    def mid():
        for i in range(2):
            for hh in range(2):
                k.vm(f"buffer_load_dwordx4 {vr(STT+8*i+4*hh,4)}, v{vs}, {sr(S_ws,4)}, s{ss} offen offset:{2048*i+16*hh}", "st")
        k(f"s_mov_b32 m0, {CS}")
        k.vm(f"buffer_load_dwordx4 v{vc}, {sr(S_ws,4)}, s{sc} offen lds", ("dma", 1))
    def wread(j, uu, t, b, tag):
        p, mat = divmod(t, 2)
        off = (j % R)*SLOT + uu*7168 + mat*UPO + (32*p if p < 6 else 0)
        B = B1 if p < 6 else B2
        k.ds(f"ds_read_b64_tr_b16 {vr(Wb+4*b,2)}, {B.at(off)}", ("w", tag))
        k.ds(f"ds_read_b64_tr_b16 {vr(Wb+4*b+2,2)}, {B.at(off+3584)}", ("w", tag))
    def mfma(u, t, b):
        for i in range(MT):
            a = vr(Abuf + 4*((u % DA)*MT + i), 4); w = vr(Wb + 4*b, 4); d = vr(ACC + 8*t + 4*i, 4)
            k(f"{MF} {d}, {w}, {a}, {d if u > 0 else '0'}")
    KS = KPS * NST
    order = [(u, t) for u in range(KS - TAIL) for t in range(NT)]
    if TAIL:
        for p in range(7):
            for u in range(KS - TAIL, KS):
                order += [(u, 2*p), (u, 2*p+1)]
    fills = {}
    def at(i, f): fills.setdefault(i, []).append(f)
    def spread(i0, lines, per):
        for n, l in enumerate(lines):
            at(i0 + n // per, l if callable(l) else (lambda l=l: k(l)))
        return i0 + (len(lines) + per - 1) // per
    L = [lambda: k.wait(vm="st")]
    for i in range(2):
        S = STT + 8*i
        L += [f"v_add_f32 v{S}, v{S}, v{S+2}", f"v_add_f32 v{S+1}, v{S+1}, v{S+3}", f"v_add_f32 v{S+4}, v{S+4}, v{S+6}", f"v_add_f32 v{S+5}, v{S+5}, v{S+7}",
              f"v_add_f32 v{S}, v{S}, v{S+4}", f"v_add_f32 v{S+1}, v{S+1}, v{S+5}"]
    for sw_ in ("v_permlane16_swap_b32", "v_permlane32_swap_b32"):
        regs = [STT, STT+1, STT+8, STT+9]
        L += [f"v_mov_b32 v{x+2}, v{x}" for x in regs]
        L += [f"{sw_} v{x}, v{x+2}" for x in regs]
        L += [f"v_add_f32 v{x}, v{x}, v{x+2}" for x in regs]
    for i in range(2):
        S = STT + 8*i
        L += [f"v_mul_f32 v{NM+i}, {f32(-1/1024)}, v{S}", f"v_mul_f32 v{VAR+i}, {f32(1/1024)}, v{S+1}"]
    for i in range(2): L += [f"v_fma_f32 v{VAR+i}, -v{NM+i}, v{NM+i}, v{VAR+i}"]
    for i in range(2): L += [f"v_max_f32 v{VAR+i}, 0, v{VAR+i}"]
    for i in range(2): L += [f"v_add_f32 v{VAR+i}, {f32(1e-5)}, v{VAR+i}"]
    for i in range(2): L += [f"v_rsq_f32 v{CE+i}, v{VAR+i}"]
    for i in range(2): L += [f"v_mul_f32 v{CE+i}, {f32(-math.log2(math.e))}, v{CE+i}"]
    e = spread(6, L, 2)
    i0 = 2*NT + DW + 2
    i0 = max(i0, e + 3)
    for t_ in range(NT):
        p, mat = divmod(t_, 2)
        b = i0 + 4*t_
        while any(min((order[b+d][1] - t_) % NT, (t_ - order[b+d][1]) % NT) < 3 for d in range(1, 5)): b += 1
        Q = STT + 4*(t_ % 4)
        at(b - 3, lambda Q=Q, p=p, mat=mat, t_=t_: k.ds(f"ds_read_b128 {vr(Q,4)}, v{c1 if p < 6 else c2} offset:{448*mat + (64*p if p < 6 else 0)}", ("cs", t_)))
        Lc = [lambda t_=t_: k.wait(lg=("cs", t_))]
        Lf = [f"v_fmac_f32 v{ACC+8*t_+4*i+e}, v{NM+i}, v{Q+e}" for i in range(2) for e in range(4)]
        at(b + 1, Lc[0]); spread(b + 1, Lf, 2)
        i0 = b - 4*t_
    def epi(p):
        Gs = [ACC + 16*p + e for e in range(8)]; Us = [ACC + 16*p + 8 + e for e in range(8)]
        E = STT
        L = [f"v_mul_f32 v{E+e}, v{CE + e//4}, v{Gs[e]}" for e in range(8)]
        L += [f"v_exp_f32 v{E+e}, v{E+e}" for e in range(8)]
        L += [f"v_mul_f32 v{Gs[e]}, v{Gs[e]}, v{Us[e]}" for e in range(8)]
        L += [f"v_fma_f32 v{E+e}, v{E+e}, v{VAR + e//4}, v{VAR + e//4}" for e in range(8)]
        L += [f"v_rcp_f32 v{E+e}, v{E+e}" for e in range(8)]
        L += [f"v_mul_f32 v{Gs[e]}, v{Gs[e]}, v{E+e}" for e in range(8)]
        for i in range(2):
            o = OUT + 4*i + 2*(p % 2)
            L += [f"v_cvt_pk_bf16_f32 v{o}, v{Gs[4*i]}, v{Gs[4*i+1]}", f"v_cvt_pk_bf16_f32 v{o+1}, v{Gs[4*i+2]}, v{Gs[4*i+3]}"]
        if p == 6:
            for i in range(2): L += [lambda i=i: k.vm(f"buffer_store_dwordx2 {vr(OUT+4*i,2)}, v{v61 if i else v6}, {sr(S_ws,4)}, s{so6} offen")]
        elif p % 2:
            for i in range(2): L += [lambda i=i: k.vm(f"buffer_store_dwordx4 {vr(OUT+4*i,4)}, v{vO1 if i else vT}, {sr(S_ws,4)}, s{so} offen offset:{1024*(p//2)}")]
        return L
    if TAIL:
        b0 = (KS - TAIL) * NT
        for p in range(6):
            L = epi(p)
            per = -(-len(L) // (2*TAIL - 1))
            spread(b0 + (p + 1)*2*TAIL + 1, L, per)
    def fill(i, s):
        for f in fills.pop(i, []): f()
    pro = [("d", 0, q) for q in range(4)] + [("a", 0, 0), ("a", 0, 1), ("a", 1, 0), ("a", 1, 1)]
    period = math.lcm(R, DA // math.gcd(DA, KPS), 2, (DW + 1) // math.gcd(DW + 1, KPS*NT))
    reps = mainloop16(k, order, MT, KPS, NST, R, DA, DW, 4, dma, aload, wread, mfma, name + "_L", pro, period, fill, lpm, mid=mid)
    assert not fills, sorted(fills)
    for p in range(6 if TAIL else 0, 7):
        for l in epi(p): l() if callable(l) else k(l)
    finish(k)
    return k
```

```python
import sys, math
from asmlib import *

NAME = "sequential_preLN__mha_block__swiglu_ffn__prompt"
MB = 1 << 20
WS_XN, WS_Q, WS_KV, WS_O, WS_H, WS_HN, WS_ACT = 0, 4*MB, 8*MB, 16*MB, 20*MB, 24*MB, 28*MB
WS_SIZE = 64*MB
P_X, P_WQKV, P_WO, P_BX, P_WG, P_WU, P_WD, P_OUT = 0, 2, 4, 6, 8, 10, 12, 14
def f32(x):
    import struct
    return "0x%08x" % struct.unpack("<I", struct.pack("<f", x))[0]

def start(k, nwg):
    k(f"s_cmp_ge_u32 s2, {nwg}\ns_cbranch_scc1 {k.name}_END")
    P = k.s(16, 4); P2 = k.s(4, 4)
    k(f"s_load_dwordx16 {sr(P,16)}, s[0:1], 0\ns_load_dwordx4 {sr(P2,4)}, s[0:1], 64")
    lane = k.v(); sw = k.s()
    k(f"v_lshrrev_b32 v{lane}, 6, v0")
    k(f"v_readfirstlane_b32 s{sw}, v{lane}")
    k(f"v_and_b32 v{lane}, 63, v0")
    k.P = P; k.PWS = P2 + 2; k.lane = lane; k.sw = sw
    tstart(k)
    k("s_waitcnt lgkmcnt(0)")
    if STK: stamp(k)
TIMING = False
PF = True
STK = True
APRIO = 0
ASCHED = 1
V2 = 1
NOLOOP = 0
XF = 0
XI = 0
XK = ['ffn1', 'ffn2', 'wo', 'qkv']
WS_TIM = 60*MB
KIDX = [0]
NKERN = 7
def tstart(k):
    k.nst = 0
    if not TIMING: return
    k.T = k.s(16, 4); k.kidx = KIDX[0]; KIDX[0] += 1
    k(f"s_memtime {sr(k.T,2)}\ns_memrealtime {sr(k.T+2,2)}")
def stamp(k):
    if TIMING != 1: return
    k(f"s_memtime {sr(k.T+8+2*k.nst,2)}"); k.nst += 1
    assert k.nst <= 4
    k.lgq.append("stamp")
def tend(k):
    if not TIMING: return
    if TIMING == 2: return dbg_end(k)
    T = k.T
    if not hasattr(k, "TV"): k.TV = k.v(8, 4); k.TA = k.v(); k.TS = k.s(4, 4)
    k(f"s_waitcnt vmcnt(0)\ns_memtime {sr(T+4,2)}\ns_memrealtime {sr(T+6,2)}\ns_waitcnt lgkmcnt(0)")
    k.srd(k.TS, k.PWS, WS_SIZE)
    k(f"v_mov_b32 v{k.TV}, s{T}\nv_mov_b32 v{k.TV+1}, s{T+4}\nv_mov_b32 v{k.TV+2}, s{T+2}\nv_mov_b32 v{k.TV+3}, s{T+6}")
    for i in range(4): k(f"v_mov_b32 v{k.TV+4+i}, s{T+8+2*i if i < k.nst else T}")
    k(f"s_lshl_b32 s{T}, s2, 3\ns_add_u32 s{T}, s{T}, s{k.sw}\ns_lshl_b32 s{T}, s{T}, 5\ns_add_u32 s{T}, s{T}, {WS_TIM + k.kidx*256*8*32}")
    k(f"v_mov_b32 v{k.TA}, 0\nbuffer_store_dwordx4 {vr(k.TV,4)}, v{k.TA}, {sr(k.TS,4)}, s{T} offen\nbuffer_store_dwordx4 {vr(k.TV+4,4)}, v{k.TA}, {sr(k.TS,4)}, s{T} offen offset:16")
def dbg_end(k):
    T = k.T
    if not hasattr(k, "TV"): k.TV = k.v(4, 4); k.TA = k.v(); k.TS = k.s(4, 4)
    lab = f"{k.name}_DBG{k.uid}"; k.uid += 1
    k(f"s_waitcnt vmcnt(0)\ns_memrealtime {sr(T+6,2)}\ns_and_b32 s{T}, s2, 15\ns_or_b32 s{T}, s{T}, s{k.sw}\ns_cmp_lg_u32 s{T}, 0\ns_cbranch_scc1 {lab}")
    k(f"s_add_u32 s{k.TS}, s{k.PWS-2}, {512*(NKERN-1-k.kidx)}\ns_addc_u32 s{k.TS+1}, s{k.PWS-1}, 0\ns_mov_b32 s{k.TS+2}, 256\ns_mov_b32 s{k.TS+3}, 0x20000\ns_waitcnt lgkmcnt(0)")
    k(f"s_not_b32 s{T+2}, s{T+2}\nv_mov_b32 v{k.TV}, s{T+2}\nv_mov_b32 v{k.TV+1}, s{T+6}\nv_mov_b32 v{k.TA}, {8*k.kidx}\ns_mov_b64 exec, 1")
    k(f"buffer_atomic_umax v{k.TV}, v{k.TA}, {sr(k.TS,4)}, 0 offen\nbuffer_atomic_umax v{k.TV+1}, v{k.TA}, {sr(k.TS,4)}, 0 offen offset:4")
    k.label(lab)
def finish(k, endt=True):
    if endt: tend(k)
    k.label(f"{k.name}_END")
    k("s_endpgm")

def gen_ln(name, in_T, src_off, dst_off):
    k = K(name, (256, 1, 1), (256, 1, 1), 1024)
    start(k, 256)
    lane, sw = k.lane, k.sw
    S_in = k.s(4); S_ws = k.s(4)
    k.srd(S_ws, k.PWS, WS_SIZE)
    if not in_T: k.srd(S_in, k.P + P_X, 4*MB)
    row = k.v(); c = k.v(); vo = k.v(); vi = k.v(); t = k.v(); t2 = k.v()
    sa = k.s(); sb = k.s(); so = [k.s() for _ in range(4)]; si = [k.s() for _ in range(4)]
    k(f"v_lshrrev_b32 v{row}, 3, v{lane}\nv_and_b32 v{c}, 7, v{lane}")
    k(f"s_lshr_b32 s{sa}, s2, 2\ns_lshl_b32 s{sa}, s{sa}, 16\ns_lshl_b32 s{sb}, s{sw}, 14\ns_add_u32 s{sa}, s{sa}, s{sb}")
    k(f"s_and_b32 s{sb}, s2, 3\ns_lshl_b32 s{sb}, s{sb}, 7\ns_add_u32 s{sa}, s{sa}, s{sb}")
    k(f"v_lshrrev_b32 v{t}, 1, v{c}\nv_lshlrev_b32 v{t}, 10, v{t}\nv_and_b32 v{t2}, 1, v{c}\nv_lshlrev_b32 v{t2}, 9, v{t2}")
    k(f"v_add_u32 v{vo}, v{t}, v{t2}\nv_lshlrev_b32 v{t}, 4, v{row}\nv_add_u32 v{vo}, v{vo}, v{t}\nv_add_u32 v{vo}, s{sa}, v{vo}")
    X = k.v(16, 4); F = k.v(32, 4)
    for i in range(4):
        k(f"s_mov_b32 s{so[i]}, {dst_off + 4096*i}")
    if in_T:
        for i in range(4):
            k(f"s_mov_b32 s{si[i]}, {src_off + 4096*i}")
        for i in range(4):
            k.vm(f"buffer_load_dwordx4 {vr(X+4*i,4)}, v{vo}, {sr(S_ws,4)}, s{si[i]} offen", i)
    else:
        k(f"s_lshl_b32 s{sa}, s2, 14\ns_lshl_b32 s{sb}, s{sw}, 9\ns_add_u32 s{sa}, s{sa}, s{sb}")
        k(f"v_lshlrev_b32 v{vi}, 11, v{row}\nv_lshlrev_b32 v{t}, 4, v{c}\nv_add_u32 v{vi}, v{vi}, v{t}\nv_add_u32 v{vi}, s{sa}, v{vi}")
        for i in range(4):
            k.vm(f"buffer_load_dwordx4 {vr(X+4*i,4)}, v{vi}, {sr(S_in,4)}, 0 offen offset:{128*i}", i)
        if PF:
            S_pf = k.s(4); k.srd(S_pf, k.P + P_WQKV, 6*MB); vp = k.v(); D = k.v(4, 4); sp = k.s()
            k(f"s_lshl_b32 s{sp}, s2, 12\nv_lshlrev_b32 v{vp}, 4, v0\nv_add_u32 v{vp}, s{sp}, v{vp}")
            for i in range(6):
                k(f"s_mov_b32 s{sp}, {i*MB}")
                k.vm(f"buffer_load_dwordx4 {vr(D,4)}, v{vp}, {sr(S_pf,4)}, s{sp} offen", "pf")
    sm = k.v(); m2 = k.v()
    for i in range(4):
        k.wait(vm=i)
        for j in range(4):
            r = 4*i + j
            k(f"v_lshlrev_b32 v{F+2*r}, 16, v{X+r}\nv_and_b32 v{F+2*r+1}, 0xffff0000, v{X+r}")
        for j in range(8):
            e = F + 8*i + j
            if i == 0 and j == 0: continue
            if i == 0 and j == 1: k(f"v_add_f32 v{sm}, v{F}, v{F+1}")
            elif j % 2 == 0: k(f"v_add_f32 v{sm}, v{sm}, v{e}")
            else:
                if i == 0 and j == 3: k(f"v_mov_b32 v{m2}, v{e}")
                else: k(f"v_add_f32 v{m2}, v{m2}, v{e}")
    k(f"v_add_f32 v{sm}, v{sm}, v{m2}")
    def red8(r):
        k(f"v_add_f32_dpp v{r}, v{r}, v{r} quad_perm:[1,0,3,2] row_mask:0xf bank_mask:0xf")
        k(f"v_add_f32_dpp v{r}, v{r}, v{r} quad_perm:[2,3,0,1] row_mask:0xf bank_mask:0xf")
        k(f"v_add_f32_dpp v{r}, v{r}, v{r} row_half_mirror row_mask:0xf bank_mask:0xf")
    red8(sm)
    pr = k.v(2, 2)
    k(f"v_mul_f32 v{pr}, {f32(1/256)}, v{sm}")
    for e in range(32): k(f"v_sub_f32 v{F+e}, v{F+e}, v{pr}")
    k(f"v_mul_f32 v{pr+1}, v{F}, v{F}\nv_mul_f32 v{m2}, v{F+1}, v{F+1}")
    for e in range(2, 32):
        k(f"v_fmac_f32 v{pr+1 if e%2==0 else m2}, v{F+e}, v{F+e}")
    k(f"v_add_f32 v{pr+1}, v{pr+1}, v{m2}")
    red8(pr+1)
    k(f"v_lshlrev_b32 v{t}, 5, v{row}\ns_lshl_b32 s{sb}, s{sw}, 3\nv_add_u32 v{t2}, s{sb}, v{t}")
    k.ds(f"ds_write_b64 v{t2}, {vr(pr,2)}")
    k.wait(lg="all"); k("s_barrier")
    Q = X
    k.ds(f"ds_read_b128 {vr(Q,4)}, v{t}"); k.ds(f"ds_read_b128 {vr(Q+4,4)}, v{t} offset:16")
    k.wait(lg="all")
    mean = k.v(); var = k.v()
    k(f"v_add_f32 v{mean}, v{Q}, v{Q+2}\nv_add_f32 v{t}, v{Q+4}, v{Q+6}\nv_add_f32 v{mean}, v{mean}, v{t}\nv_mul_f32 v{mean}, 0.25, v{mean}".replace("0.25", f32(0.25)))
    k(f"v_add_f32 v{var}, v{Q+1}, v{Q+3}\nv_add_f32 v{t}, v{Q+5}, v{Q+7}\nv_add_f32 v{var}, v{var}, v{t}")
    k(f"v_mov_b32 v{t2}, 0")
    for j in range(4):
        k(f"v_sub_f32 v{t}, v{Q+2*j}, v{mean}\nv_fmac_f32 v{t2}, v{t}, v{t}")
    k(f"v_mul_f32 v{t2}, {f32(256.0)}, v{t2}\nv_add_f32 v{var}, v{var}, v{t2}")
    k(f"v_mul_f32 v{var}, {f32(1/1024)}, v{var}\nv_add_f32 v{var}, {f32(1e-5)}, v{var}\nv_rsq_f32 v{var}, v{var}")
    k(f"v_sub_f32 v{t}, v{pr}, v{mean}\nv_mul_f32 v{t}, v{t}, v{var}")
    for i in range(4):
        for j in range(8):
            e = F + 8*i + j
            k(f"v_fma_f32 v{e}, v{e}, v{var}, v{t}")
        for j in range(4):
            k(f"v_cvt_pk_bf16_f32 v{X+4*i+j}, v{F+8*i+2*j}, v{F+8*i+2*j+1}")
        k.vm(f"buffer_store_dwordx4 {vr(X+4*i,4)}, v{vo}, {sr(S_ws,4)}, s{so[i]} offen")
    finish(k)
    return k

def mainloop(k, NT, KPS, NST, R, DA, DW, ndma, dma, aload, wread, mfma, lname, mid=None):
    NB = DW + 1
    KS = KPS * NST
    nslots = KS * NT
    scnt = k.s()
    au = 0
    for j in range(min(R, NST)):
        for i in range(ndma): dma(j, i)
        for _ in range(KPS):
            if au < min(DA, KS): aload(au); au += 1
    while au < min(DA, KS): aload(au); au += 1
    if mid: mid()
    stamp(k)
    k.wait(vm=("dma", 0)); k("s_barrier")
    stamp(k)
    for i in range(min(DW, nslots)):
        u, t = divmod(i, NT); wread(u // KPS, u % KPS, t, i % NB, i)
    blocks = []; base = len(k.L); starts = [base]
    pend = []
    for i in range(nslots):
        u, t = divmod(i, NT)
        n = i + DW
        if n < nslots:
            un, tn = divmod(n, NT)
            if tn == 0 and un % KPS == 0:
                j = un // KPS
                starts.append(len(k.L))
                k.wait(vm=("dma", j)); k("s_barrier")
                if j >= 2 and j - 2 + R < NST:
                    pend += [(j - 2 + R, q) for q in range(ndma)]
            wread(un // KPS, un % KPS, tn, n % NB, n)
        k.wait(vm=("a", u) if t == 0 else None, lg=("w", i))
        mfma(u, t, i % NB)
        if t == NT - 1 and u + DA < KS: aload(u + DA)
        elif pend: dma(*pend.pop(0))
    assert not pend
    starts.append(len(k.L))
    blocks = [k.L[starts[i]:starts[i+1]] for i in range(len(starts) - 1)]
    del k.L[base:]
    period = R * KPS * NT
    period = math.lcm(R * KPS * NT, DA * NT, NB, 4 * NT) // (KPS * NT)
    reps = compress_loop(k, blocks, period, scnt, lname)
    stamp(k)
    return reps

class LdsBases:
    def __init__(self, k, base, maxoff):
        self.regs = [base]
        for w in range(1, maxoff // 65536 + 1):
            r = k.v(); k(f"v_add_u32 v{r}, {65536*w}, v{base}"); self.regs.append(r)
    def at(self, off):
        return f"v{self.regs[off // 65536]} offset:{off % 65536}"

def a_loader(k, S_ws, vA, Abuf, DA, base_off):
    sA = k.s()
    k(f"s_mov_b32 s{sA}, {base_off}")
    def aload(u):
        k.vm(f"buffer_load_dwordx4 {vr(Abuf + 4*(u % DA), 4)}, v{vA}, {sr(S_ws,4)}, s{sA} offen offset:{1024*(u%4)}", ("a", u))
        if u % 4 == 3: k(f"s_add_u32 s{sA}, s{sA}, 4096")
    return aload

def tr_lane_parts(k):
    lane = k.lane
    h = k.v(); g1 = k.v(); r = k.v(); cc = k.v()
    k(f"v_lshrrev_b32 v{h}, 5, v{lane}\nv_bfe_u32 v{g1}, v{lane}, 4, 1\nv_bfe_u32 v{r}, v{lane}, 2, 2\nv_and_b32 v{cc}, 3, v{lane}")
    return h, g1, r, cc

def tr_addr128(k, hrows, skh_bytes, spar):
    h, g1, r, cc = tr_lane_parts(k)
    a = k.v(); b = k.v(); t = k.v()
    k(f"v_mul_u32_u24 v{a}, {hrows}, v{h}\nv_add_u32 v{a}, v{a}, v{r}\nv_lshlrev_b32 v{a}, 7, v{a}")
    k(f"v_lshlrev_b32 v{t}, 5, v{g1}\nv_add_u32 v{a}, v{a}, v{t}")
    k(f"v_lshlrev_b32 v{t}, 3, v{cc}\nv_add_u32 v{a}, v{a}, v{t}")
    k(f"v_lshrrev_b32 v{t}, 1, v{r}\nv_lshlrev_b32 v{t}, 6, v{t}\nv_add_u32 v{a}, v{a}, v{t}")
    k(f"v_xor_b32 v{a}, s{spar}, v{a}\nv_add_u32 v{a}, s{skh_bytes}, v{a}\nv_xor_b32 v{b}, 64, v{a}")
    return a, b

def dma_voff128(k, pitch):
    lane = k.lane
    a = k.v(); t = k.v(); t2 = k.v(); sp = k.s()
    k(f"s_mov_b32 s{sp}, {pitch}")
    k(f"v_lshrrev_b32 v{t}, 3, v{lane}\nv_mul_lo_u32 v{a}, v{t}, s{sp}")
    k(f"v_and_b32 v{t}, 2, v{t}\nv_lshlrev_b32 v{t}, 1, v{t}\nv_and_b32 v{t2}, 7, v{lane}\nv_xor_b32 v{t}, v{t}, v{t2}\nv_lshlrev_b32 v{t}, 4, v{t}\nv_add_u32 v{a}, v{a}, v{t}")
    return a

def gen_qkv(name):
    R, KPS, NST, NT, DA, DW = 6, 2, 16, 6, 6, 3
    SLOT = 24576
    k = K(name, (256, 1, 1), (512, 1, 1), R * SLOT)
    start(k, 256)
    lane, sw = k.lane, k.sw
    S_w = k.s(4); S_ws = k.s(4)
    k.srd(S_w, k.P + P_WQKV, 6*MB); k.srd(S_ws, k.PWS, WS_SIZE)
    shp = k.s(); smt = k.s(); smbl = k.s(); skh = k.s(); smb = k.s(); st = k.s(); st2 = k.s()
    k(f"s_and_b32 s{shp}, s2, 7\ns_lshl_b32 s{shp}, s{shp}, 1\ns_bfe_u32 s{st}, s2, 0x10003\ns_add_u32 s{shp}, s{shp}, s{st}\ns_lshr_b32 s{smt}, s2, 4")
    k(f"s_and_b32 s{smbl}, s{sw}, 3\ns_lshr_b32 s{skh}, s{sw}, 2\ns_lshl_b32 s{smb}, s{smt}, 2\ns_add_u32 s{smb}, s{smb}, s{smbl}")
    vd = [dma_voff128(k, 6144), k.v(), k.v()]
    k(f"s_lshl_b32 s{st}, s{skh}, 9\ns_lshl_b32 s{st2}, s{smbl}, 3\ns_add_u32 s{st}, s{st}, s{st2}\ns_mul_i32 s{st}, s{st}, 6144\ns_lshl_b32 s{st2}, s{shp}, 7\ns_add_u32 s{st}, s{st}, s{st2}")
    k(f"v_add_u32 v{vd[0]}, s{st}, v{vd[0]}\nv_add_u32 v{vd[1]}, 2048, v{vd[0]}\nv_add_u32 v{vd[2]}, 4096, v{vd[0]}")
    sW = k.s(); sL = k.s()
    k(f"s_mov_b32 s{sW}, 0\ns_mul_i32 s{sL}, s{skh}, 12288\ns_lshl_b32 s{st}, s{smbl}, 10\ns_add_u32 s{sL}, s{sL}, s{st}")
    def dma(j, i):
        k(f"s_add_u32 m0, s{sL}, {(j % R)*SLOT + i*4096}")
        k.vm(f"buffer_load_dwordx4 v{vd[i]}, {sr(S_w,4)}, s{sW} offen lds", ("dma", j))
        if i == 2: k(f"s_add_u32 s{sW}, s{sW}, {32*6144}")
    vA = k.v()
    k(f"s_lshl_b32 s{st}, s{smb}, 16\ns_lshl_b32 s{st2}, s{skh}, 15\ns_add_u32 s{st}, s{st}, s{st2}\nv_lshlrev_b32 v{vA}, 4, v{lane}\nv_add_u32 v{vA}, s{st}, v{vA}")
    Abuf = k.v(4*DA, 4)
    aload = a_loader(k, S_ws, vA, Abuf, DA, WS_XN)
    skb = k.s(); spar = k.s()
    k(f"s_mul_i32 s{skb}, s{skh}, 12288\ns_lshl_b32 s{spar}, s{skh}, 6")
    ak, asend = tr_addr128(k, 8, skb, spar)
    BK = LdsBases(k, ak, R*SLOT - 1); BS = LdsBases(k, asend, R*SLOT - 1)
    Wb = k.v(4*(DW+1), 4)
    ACC = k.v(96, 4)
    def wread(j, uu, t, b, tag):
        B = BK if t < 3 else BS
        off = (j % R)*SLOT + (t % 3)*4096 + uu*2048
        k.ds(f"ds_read_b64_tr_b16 {vr(Wb+4*b,2)}, {B.at(off)}", ("w", tag))
        k.ds(f"ds_read_b64_tr_b16 {vr(Wb+4*b+2,2)}, {B.at(off+512)}", ("w", tag))
    def mfma(u, t, b):
        a = vr(Abuf + 4*(u % DA), 4); w = vr(Wb + 4*b, 4); d = vr(ACC + 16*t, 16)
        c = d if u > 0 else "0"
        if t % 3 == 2: k(f"v_mfma_f32_32x32x16_bf16 {d}, {a}, {w}, {c}")
        else: k(f"v_mfma_f32_32x32x16_bf16 {d}, {w}, {a}, {c}")
    mainloop(k, NT, KPS, NST, R, DA, DW, 3, dma, aload, wread, mfma, name + "_L")
    free = [(NST + i) % R for i in range(R - 2)]
    assert free == [4, 5, 0, 1]
    vw = k.v(); vrd = k.v()
    def region(dst, swv):
        k(f"s_mul_i32 s{dst}, s{swv}, 12288\ns_add_u32 s{dst}, s{dst}, {4*SLOT}\ns_cmp_ge_u32 s{dst}, {6*SLOT}\ns_cselect_b32 s{skb}, {6*SLOT}, 0\ns_sub_u32 s{dst}, s{dst}, s{skb}")
    region(st, sw)
    k(f"s_xor_b32 s{spar}, s{sw}, 4"); region(st2, spar)
    k(f"v_lshlrev_b32 v{vw}, 4, v{lane}\nv_add_u32 v{vrd}, s{st2}, v{vw}\nv_add_u32 v{vw}, s{st}, v{vw}")
    for i in range(12):
        k.ds(f"ds_write_b128 v{vw}, {vr(ACC+48+4*i,4)} offset:{1024*i}")
    k.wait(lg="all"); k("s_barrier")
    for i in range(12):
        k.ds(f"ds_read_b128 {vr(ACC+48+4*i,4)}, v{vrd} offset:{1024*i}", i)
    shd = k.s(); sq = k.s(); skv = k.s()
    k(f"s_lshl_b32 s{shd}, s{shp}, 1\ns_add_u32 s{shd}, s{shd}, s{skh}\ns_lshl_b32 s{shd}, s{shd}, 6\ns_add_u32 s{shd}, s{shd}, s{smb}")
    k(f"s_lshl_b32 s{sq}, s{shd}, 11\ns_add_u32 s{sq}, s{sq}, {WS_Q}\ns_lshl_b32 s{skv}, s{shd}, 12\ns_add_u32 s{skv}, s{skv}, {WS_KV}")
    k(f"v_lshlrev_b32 v{vw}, 4, v{lane}")
    sc = k.s(); k(f"s_mov_b32 s{sc}, {f32(32**-0.5 * math.log2(math.e))}")
    for tt in range(3):
        for hf in range(2):
            i0 = 16*tt + 8*hf
            k.wait(lg=i0//4 + 1)
            for e in range(8):
                k(f"v_add_f32 v{ACC+i0+e}, v{ACC+i0+e}, v{ACC+48+i0+e}")
            if tt == 0:
                for e in range(8): k(f"v_mul_f32 v{ACC+i0+e}, s{sc}, v{ACC+i0+e}")
            o = Wb + 4*((2*tt+hf) % (DW+1))
            for e in range(4):
                k(f"v_cvt_pk_bf16_f32 v{o+e}, v{ACC+i0+2*e}, v{ACC+i0+2*e+1}")
            if tt == 0: k.vm(f"buffer_store_dwordx4 {vr(o,4)}, v{vw}, {sr(S_ws,4)}, s{sq} offen offset:{1024*hf}")
            else: k.vm(f"buffer_store_dwordx4 {vr(o,4)}, v{vw}, {sr(S_ws,4)}, s{skv} offen offset:{2048*(tt-1)+1024*hf}")
    finish(k)
    return k

def gen_res(name, KTOT, wptr, a_off, is_down):
    R, KPS, NT, DA, DW = 4, 4, 2, 16, 3
    KSH = KTOT // 32
    NST = KSH // KPS
    SLOT = 16384
    k = K(name, (256, 1, 1), (512, 1, 1), R * SLOT + 32768)
    start(k, 256)
    lane, sw = k.lane, k.sw
    S_w = k.s(4); S_ws = k.s(4); S_x = k.s(4)
    k.srd(S_w, k.P + wptr, KTOT * 2048); k.srd(S_ws, k.PWS, WS_SIZE)
    k.srd(S_x, k.P + (P_OUT if is_down else P_X), 4*MB)
    smt = k.s(); snt = k.s(); smbl = k.s(); skh = k.s(); smb = k.s(); st = k.s(); st2 = k.s()
    k(f"s_and_b32 s{smt}, s2, 3\ns_lshl_b32 s{smt}, s{smt}, 2\ns_bfe_u32 s{st}, s2, 0x20003\ns_add_u32 s{smt}, s{smt}, s{st}")
    k(f"s_bfe_u32 s{snt}, s2, 0x10002\ns_lshl_b32 s{snt}, s{snt}, 3\ns_lshr_b32 s{st}, s2, 5\ns_add_u32 s{snt}, s{snt}, s{st}")
    k(f"s_and_b32 s{smbl}, s{sw}, 3\ns_lshr_b32 s{skh}, s{sw}, 2\ns_lshl_b32 s{smb}, s{smt}, 2\ns_add_u32 s{smb}, s{smb}, s{smbl}")
    vd = [dma_voff128(k, 2048), k.v()]
    k(f"s_mul_i32 s{st}, s{skh}, {KTOT//2}\ns_lshl_b32 s{st2}, s{smbl}, 4\ns_add_u32 s{st}, s{st}, s{st2}\ns_lshl_b32 s{st}, s{st}, 11\ns_lshl_b32 s{st2}, s{snt}, 7\ns_add_u32 s{st}, s{st}, s{st2}")
    k(f"v_add_u32 v{vd[0]}, s{st}, v{vd[0]}\nv_add_u32 v{vd[1]}, {8*2048}, v{vd[0]}")
    sW = k.s(); sL = k.s()
    k(f"s_mov_b32 s{sW}, 0\ns_lshl_b32 s{sL}, s{sw}, 11")
    def dma(j, i):
        k(f"s_add_u32 m0, s{sL}, {(j % R)*SLOT + i*1024}")
        k.vm(f"buffer_load_dwordx4 v{vd[i]}, {sr(S_w,4)}, s{sW} offen lds", ("dma", j))
        if i == 1: k(f"s_add_u32 s{sW}, s{sW}, {64*2048}")
    vA = k.v()
    k(f"s_mul_i32 s{st}, s{smb}, {KTOT//16*1024}\ns_mul_i32 s{st2}, s{skh}, {KSH*1024}\ns_add_u32 s{st}, s{st}, s{st2}\nv_lshlrev_b32 v{vA}, 4, v{lane}\nv_add_u32 v{vA}, s{st}, v{vA}")
    Abuf = k.v(4*DA, 4)
    aload = a_loader(k, S_ws, vA, Abuf, DA, a_off)
    skb = k.s(); spar = k.s()
    k(f"s_lshl_b32 s{skb}, s{skh}, 13\ns_lshl_b32 s{spar}, s{skh}, 6")
    ak, asend = tr_addr128(k, 4, skb, spar)
    Wb = k.v(4*(DW+1), 4)
    ACC = k.v(32, 4)
    RES = k.v(8, 4)
    vx = k.v(); vT = k.v(); sh = k.s(); t = k.v()
    k(f"s_lshl_b32 s{st}, s{smb}, 16\ns_lshl_b32 s{st2}, s{snt}, 7\ns_add_u32 s{st}, s{st}, s{st2}\ns_add_u32 s{st}, s{st}, s{spar}")
    k(f"v_and_b32 v{vx}, 31, v{lane}\nv_lshlrev_b32 v{vx}, 11, v{vx}\nv_lshrrev_b32 v{t}, 5, v{lane}\nv_lshlrev_b32 v{t}, {4 if is_down else 3}, v{t}\nv_add_u32 v{vx}, v{vx}, v{t}\nv_add_u32 v{vx}, s{st}, v{vx}")
    k(f"s_lshl_b32 s{sh}, s{smb}, 6\ns_lshl_b32 s{st2}, s{snt}, 2\ns_add_u32 s{sh}, s{sh}, s{st2}\ns_lshl_b32 s{st2}, s{skh}, 1\ns_add_u32 s{sh}, s{sh}, s{st2}\ns_lshl_b32 s{sh}, s{sh}, 10\ns_add_u32 s{sh}, s{sh}, {WS_H}")
    k(f"v_lshlrev_b32 v{vT}, 4, v{lane}")
    def mid():
        if is_down:
            for i in range(2): k.vm(f"buffer_load_dwordx4 {vr(RES+4*i,4)}, v{vT}, {sr(S_ws,4)}, s{sh} offen offset:{1024*i}", "res")
        else:
            for j in range(4): k.vm(f"buffer_load_dwordx2 {vr(RES+2*j,2)}, v{vx}, {sr(S_x,4)}, 0 offen offset:{16*j}", "res")
    def wread(j, uu, t, b, tag):
        B = ak if t == 0 else asend
        off = (j % R)*SLOT + uu*2048
        k.ds(f"ds_read_b64_tr_b16 {vr(Wb+4*b,2)}, v{B} offset:{off}", ("w", tag))
        k.ds(f"ds_read_b64_tr_b16 {vr(Wb+4*b+2,2)}, v{B} offset:{off+1024}", ("w", tag))
    def mfma(u, t, b):
        a = vr(Abuf + 4*(u % DA), 4); w = vr(Wb + 4*b, 4); d = vr(ACC + 16*t, 16)
        c = d if u > 0 else "0"
        k(f"v_mfma_f32_32x32x16_bf16 {d}, {w}, {a}, {c}")
    mainloop(k, NT, KPS, NST, R, DA, DW, 2, dma, aload, wread, mfma, name + "_L", mid)
    vw = k.v(); vrd = k.v()
    k(f"s_lshl_b32 s{st}, s{sw}, 12\ns_add_u32 s{st}, s{st}, {R*SLOT}\ns_xor_b32 s{st2}, s{st}, {4*4096}")
    assert (R*SLOT) % (8*4096) == 0
    k(f"v_add_u32 v{vw}, s{st}, v{vT}\nv_add_u32 v{vrd}, s{st2}, v{vT}")
    for i in range(4): k.ds(f"ds_write_b128 v{vw}, {vr(ACC+16+4*i,4)} offset:{1024*i}")
    k.wait(lg="all"); k("s_barrier")
    for i in range(4): k.ds(f"ds_read_b128 {vr(ACC+16+4*i,4)}, v{vrd} offset:{1024*i}", i)
    k.wait(vm="res")
    F = Abuf
    for e in range(8):
        k(f"v_lshlrev_b32 v{F+2*e}, 16, v{RES+e}\nv_and_b32 v{F+2*e+1}, 0xffff0000, v{RES+e}")
    for e in range(16): k(f"v_add_f32 v{ACC+e}, v{ACC+e}, v{F+e}")
    for hf in range(2):
        k.wait(lg=2*hf+1)
        for e in range(8): k(f"v_add_f32 v{ACC+8*hf+e}, v{ACC+8*hf+e}, v{ACC+16+8*hf+e}")
        o = Wb + 4*hf
        for e in range(4): k(f"v_cvt_pk_bf16_f32 v{o+e}, v{ACC+8*hf+2*e}, v{ACC+8*hf+2*e+1}")
        if is_down:
            k(f"v_permlane32_swap_b32 v{o}, v{o+2}\nv_permlane32_swap_b32 v{o+1}, v{o+3}")
            k.vm(f"buffer_store_dwordx4 {vr(o,4)}, v{vx}, {sr(S_x,4)}, 0 offen offset:{32*hf}")
        else:
            k.vm(f"buffer_store_dwordx4 {vr(o,4)}, v{vT}, {sr(S_ws,4)}, s{sh} offen offset:{1024*hf}")
    finish(k)
    return k

def gen_ffn1(name):
    R, KPS, NST, NT, DA, DW = 4, 4, 16, 7, 8, 3
    UPO = 14336 + 128
    SLOT = 28928
    k = K(name, (256, 1, 1), (512, 1, 1), R * SLOT)
    start(k, 256)
    lane, sw = k.lane, k.sw
    S_w = k.s(4); S_ws = k.s(4)
    smat = k.s(); swq = k.s(); snt = k.s(); smb = k.s(); st = k.s(); st2 = k.s()
    k(f"s_lshr_b32 s{smat}, s{sw}, 2\ns_and_b32 s{swq}, s{sw}, 3")
    k(f"s_cmp_eq_u32 s{smat}, 0\ns_cselect_b32 s{S_w}, s{k.P+P_WG}, s{k.P+P_WU}\ns_cselect_b32 s{S_w+1}, s{k.P+P_WG+1}, s{k.P+P_WU+1}\ns_mov_b32 s{S_w+2}, {7*MB}\ns_mov_b32 s{S_w+3}, 0x20000")
    k.srd(S_ws, k.PWS, WS_SIZE)
    k(f"s_and_b32 s{snt}, s2, 7\ns_lshl_b32 s{snt}, s{snt}, 2\ns_bfe_u32 s{st}, s2, 0x20003\ns_add_u32 s{snt}, s{snt}, s{st}")
    k(f"s_lshr_b32 s{smb}, s2, 5\ns_lshl_b32 s{smb}, s{smb}, 3\ns_add_u32 s{smb}, s{smb}, s{sw}")
    vd = [k.v() for _ in range(4)]; q = k.v(); rr = k.v(); t = k.v(); sm = k.s(); sp = k.s()
    k(f"s_mov_b32 s{sm}, 4682\ns_mov_b32 s{sp}, 7168")
    k(f"s_mul_i32 s{st}, s{swq}, {16*7168}\ns_mul_i32 s{st2}, s{snt}, 224\ns_add_u32 s{st}, s{st}, s{st2}")
    for i in range(4):
        k(f"v_add_u32 v{q}, {64*i}, v{lane}\nv_mul_lo_u32 v{rr}, v{q}, s{sm}\nv_lshrrev_b32 v{rr}, 16, v{rr}")
        k(f"v_mul_u32_u24 v{t}, 14, v{rr}\nv_sub_u32 v{t}, v{q}, v{t}\nv_lshlrev_b32 v{t}, 4, v{t}\nv_mul_lo_u32 v{rr}, v{rr}, s{sp}\nv_add3_u32 v{vd[i]}, v{rr}, v{t}, s{st}")
    for qq in range(256): assert (qq*4682) >> 16 == qq // 14
    sW = k.s(); sL = k.s()
    k(f"s_mov_b32 s{sW}, 0\ns_mul_i32 s{sL}, s{smat}, {UPO}\ns_mul_i32 s{st}, s{swq}, 3584\ns_add_u32 s{sL}, s{sL}, s{st}")
    def dma(j, i):
        k(f"s_add_u32 m0, s{sL}, {(j % R)*SLOT + i*1024}")
        if i == 3: k("s_mov_b32 exec_hi, 0")
        k.vm(f"buffer_load_dwordx4 v{vd[i]}, {sr(S_w,4)}, s{sW} offen lds", ("dma", j))
        if i == 3: k(f"s_mov_b32 exec_hi, -1\ns_add_u32 s{sW}, s{sW}, {64*7168}")
    vA = k.v()
    k(f"s_lshl_b32 s{st}, s{smb}, 16\nv_lshlrev_b32 v{vA}, 4, v{lane}\nv_add_u32 v{vA}, s{st}, v{vA}")
    Abuf = k.v(4*DA, 4)
    aload = a_loader(k, S_ws, vA, Abuf, DA, WS_HN)
    h, g1, r, cc = tr_lane_parts(k)
    a = k.v()
    k(f"v_lshl_add_u32 v{a}, v{h}, 2, v{r}\nv_mul_u32_u24 v{a}, 224, v{a}\nv_lshrrev_b32 v{t}, 1, v{cc}\nv_mul_u32_u24 v{t}, {UPO}, v{t}\nv_add_u32 v{a}, v{a}, v{t}")
    k(f"v_lshlrev_b32 v{t}, 4, v{g1}\nv_add_u32 v{a}, v{a}, v{t}\nv_and_b32 v{t}, 1, v{cc}\nv_lshlrev_b32 v{t}, 3, v{t}\nv_add_u32 v{a}, v{a}, v{t}")
    B = LdsBases(k, a, R*SLOT - 1)
    Wb = k.v(4*(DW+1), 4)
    ACC = k.v(112, 4)
    def wread(j, uu, t, b, tag):
        off = (j % R)*SLOT + uu*3584 + t*32
        k.ds(f"ds_read_b64_tr_b16 {vr(Wb+4*b,2)}, {B.at(off)}", ("w", tag))
        k.ds(f"ds_read_b64_tr_b16 {vr(Wb+4*b+2,2)}, {B.at(off+1792)}", ("w", tag))
    def mfma(u, t, b):
        aa = vr(Abuf + 4*(u % DA), 4); w = vr(Wb + 4*b, 4); d = vr(ACC + 16*t, 16)
        c = d if u > 0 else "0"
        k(f"v_mfma_f32_32x32x16_bf16 {d}, {w}, {aa}, {c}")
    mainloop(k, NT, KPS, NST, R, DA, DW, 4, dma, aload, wread, mfma, name + "_L")
    so = k.s(); sc = k.s(); vT = k.v()
    k(f"s_mul_i32 s{so}, s{smb}, 224\ns_mul_i32 s{st}, s{snt}, 7\ns_add_u32 s{so}, s{so}, s{st}\ns_lshl_b32 s{so}, s{so}, 10\ns_add_u32 s{so}, s{so}, {WS_ACT}")
    k(f"v_lshlrev_b32 v{vT}, 4, v{lane}\ns_mov_b32 s{sc}, {f32(-math.log2(math.e))}")
    E = Abuf
    for tt in range(7):
        D = ACC + 16*tt
        pairs = [(D+i, D+4+i) for i in range(4)] + [(D+8+i, D+12+i) for i in range(4)]
        for e, (g, u) in enumerate(pairs): k(f"v_mul_f32 v{E+e}, s{sc}, v{g}")
        for e in range(8): k(f"v_exp_f32 v{E+e}, v{E+e}")
        for e, (g, u) in enumerate(pairs): k(f"v_mul_f32 v{g}, v{g}, v{u}")
        for e in range(8): k(f"v_add_f32 v{E+e}, 1.0, v{E+e}")
        for e in range(8): k(f"v_rcp_f32 v{E+e}, v{E+e}")
        for e, (g, u) in enumerate(pairs): k(f"v_mul_f32 v{g}, v{g}, v{E+e}")
        o = Wb + 4*(tt % (DW+1))
        for e in range(4): k(f"v_cvt_pk_bf16_f32 v{o+e}, v{pairs[2*e][0]}, v{pairs[2*e+1][0]}")
        k.vm(f"buffer_store_dwordx4 {vr(o,4)}, v{vT}, {sr(S_ws,4)}, s{so} offen offset:{1024*(tt%4)}")
        if tt == 3: k(f"s_add_u32 s{so}, s{so}, 4096")
    finish(k)
    return k

def gen_attn(name):
    R, TPS, NST = 4, 4, 16
    SLOT = 16384
    NTILE = TPS * NST
    k = K(name, (256, 1, 1), (512, 1, 1), R * SLOT + 2048)
    start(k, 256)
    lane, sw = k.lane, k.sw
    S_ws = k.s(4); k.srd(S_ws, k.PWS, WS_SIZE)
    shd = k.s(); sqb = k.s(); st = k.s(); st2 = k.s(); sKV = k.s(); sKV0 = k.s(); sL = k.s(); scnt = k.s()
    k(f"s_and_b32 s{shd}, s2, 7\ns_lshl_b32 s{shd}, s{shd}, 2\ns_bfe_u32 s{st}, s2, 0x20003\ns_add_u32 s{shd}, s{shd}, s{st}")
    k(f"s_lshr_b32 s{sqb}, s2, 5\ns_lshl_b32 s{sqb}, s{sqb}, 3\ns_add_u32 s{sqb}, s{sqb}, s{sw}")
    vT = k.v(); vD = k.v(); t = k.v(); t2 = k.v()
    k(f"v_lshlrev_b32 v{vT}, 4, v{lane}\ns_lshl_b32 s{sL}, s{sw}, 11\nv_add_u32 v{vD}, s{sL}, v{vT}")
    k(f"s_lshl_b32 s{sKV0}, s{shd}, 18\ns_add_u32 s{sKV0}, s{sKV0}, {WS_KV}\ns_mov_b32 s{sKV}, s{sKV0}")
    def dma(j):
        k(f"s_add_u32 m0, s{sL}, {(j % R)*SLOT}")
        k.vm(f"buffer_load_dwordx4 v{vD}, {sr(S_ws,4)}, s{sKV} offen lds", ("dma", j))
        k.vm(f"buffer_load_dwordx4 v{vD}, {sr(S_ws,4)}, s{sKV} offen offset:1024 lds", ("dma", j))
        k(f"s_add_u32 s{sKV}, s{sKV}, {SLOT}")
    Q = k.v(8, 4); S = [k.v(16, 4), k.v(16, 4)]; NEG = k.v(16, 4); O = k.v(16, 4); Lr = k.v(4, 4); ONE = k.v(4, 4)
    Pf = k.v(8, 4); Kb = [k.v(8, 4), k.v(8, 4)]; Vb = [k.v(8, 4), k.v(8, 4)]
    dma(0)
    k(f"s_lshl_b32 s{st}, s{shd}, 6\ns_add_u32 s{st}, s{st}, s{sqb}\ns_lshl_b32 s{st}, s{st}, 11\ns_add_u32 s{st}, s{st}, {WS_Q}")
    for i in range(2): k.vm(f"buffer_load_dwordx4 {vr(Q+4*i,4)}, v{vT}, {sr(S_ws,4)}, s{st} offen offset:{1024*i}", "q")
    for j in range(1, R): dma(j)
    S_pf = k.s(4); vp = k.v(); PD = k.v(4, 4); spf = k.s()
    k.srd(S_pf, k.P + P_WO, 2*MB)
    k(f"s_lshl_b32 s{spf}, s2, 13\nv_lshlrev_b32 v{vp}, 4, v0\nv_add_u32 v{vp}, s{spf}, v{vp}")
    if PF: k.vm(f"buffer_load_dwordx4 {vr(PD,4)}, v{vp}, {sr(S_pf,4)}, 0 offen", "pf")
    k(f"s_nop 4")
    k.srd(S_pf, k.P + P_WD, 7*MB)
    S_gu = k.s(4); vg = k.v(); CD = [k.v(4, 4), k.v(4, 4)]; CA = k.v(4, 4); SEL = k.v(4, 4); sgu = k.s(); scol = k.s(); vcw = k.v(); vcr = k.v(); vcs = k.v()
    k(f"s_lshr_b32 s{st}, s2, 3\ns_cmp_ge_u32 s{st}, 14\ns_cselect_b32 s{S_gu}, s{k.P+P_WU}, s{k.P+P_WG}\ns_cselect_b32 s{S_gu+1}, s{k.P+P_WU+1}, s{k.P+P_WG+1}\ns_mov_b32 s{S_gu+2}, {7*MB}\ns_mov_b32 s{S_gu+3}, 0x20000")
    k(f"s_cselect_b32 s{st2}, 14, 0\ns_cselect_b32 s{sgu}, {3584*4}, 0\ns_sub_u32 s{scol}, s{st}, s{st2}\ns_lshl_b32 s{scol}, s{scol}, 5\ns_and_b32 s{st2}, s2, 7\ns_mul_i32 s{st2}, s{st2}, 448\ns_add_u32 s{scol}, s{scol}, s{st2}")
    k(f"s_cmp_ge_u32 s{st}, 28\ns_cselect_b32 s{st}, 0x4000000, 0\ns_add_u32 s{scol}, s{scol}, s{st}")
    k(f"s_mul_i32 s{st}, s{sw}, {128*7168}\ns_lshl_b32 s{st2}, s{scol}, 1\ns_add_u32 s{st}, s{st}, s{st2}\ns_mov_b32 s{st2}, 7168")
    k(f"v_lshrrev_b32 v{vg}, 2, v{lane}\nv_mul_lo_u32 v{vg}, v{vg}, s{st2}\nv_and_b32 v{t}, 3, v{lane}\nv_lshl_add_u32 v{vg}, v{t}, 4, v{vg}\nv_add_u32 v{vg}, s{st}, v{vg}")
    k(f"s_lshl_b32 s{st}, s{sw}, 8\ns_add_u32 s{st}, s{st}, {R*SLOT}\nv_lshl_add_u32 v{vcw}, v{t}, 4, s{st}\nv_lshrrev_b32 v{t2}, 4, v{lane}\nv_lshl_add_u32 v{vcw}, v{t2}, 6, v{vcw}")
    k(f"v_and_b32 v{vcr}, 31, v{lane}\nv_lshlrev_b32 v{vcr}, 2, v{vcr}\nv_lshrrev_b32 v{t2}, 5, v{lane}\nv_lshl_add_u32 v{vcr}, v{t2}, 10, v{vcr}\nv_add_u32 v{vcr}, {R*SLOT}, v{vcr}")
    k(f"v_bfe_u32 v{vcs}, v{lane}, 2, 2\nv_lshl_add_u32 v{vcs}, v{vcs}, 3, v{t}\nv_bfe_u32 v{t2}, v{lane}, 4, 1\nv_lshl_add_u32 v{vcs}, v{t2}, 2, v{vcs}\nv_add_u32 v{vcs}, s{scol}, v{vcs}\nv_lshlrev_b32 v{vcs}, 2, v{vcs}\nv_add_u32 v{vcs}, s{sgu}, v{vcs}")
    k(f"v_and_b32 v{t}, 1, v{lane}\nv_lshlrev_b32 v{t}, 4, v{t}\nv_mov_b32 v{t2}, 0x3f80\nv_lshlrev_b32 v{t2}, v{t}, v{t2}\nv_bfe_u32 v{t}, v{lane}, 1, 3")
    for e in range(4): k(f"v_cmp_eq_u32 vcc, {e}, v{t}\nv_cndmask_b32 v{SEL+e}, 0, v{t2}, vcc")
    k(f"s_mov_b32 s{sgu}, 0")
    def pf(j):
        if 2 <= j < 10:
            k.vm(f"buffer_load_dwordx4 {vr(CD[j%2],4)}, v{vg}, {sr(S_gu,4)}, s{sgu} offen", "pf")
            k(f"s_add_u32 s{sgu}, s{sgu}, {16*7168}")
        elif 10 <= j < 14 and PF:
            k(f"s_mov_b32 s{spf}, {(j-10)*2*MB}")
            k.vm(f"buffer_load_dwordx4 {vr(PD,4)}, v{vp}, {sr(S_pf,4)}, s{spf} offen", "pf")
    def cs(j):
        if 4 <= j < 12: k(f"v_mfma_f32_16x16x32_bf16 {vr(CA,4)}, {vr(SEL,4)}, {vr(CD[j%2],4)}, {vr(CA,4) if j > 4 else '0'}")
    def cs2(j):
        if j == 12:
            for rot in (4, 8):
                for e in range(4): k(f"v_add_f32_dpp v{CA+e}, v{CA+e}, v{CA+e} row_ror:{rot} row_mask:0xf bank_mask:0xf")
            k.ds(f"ds_write_b128 v{vcw}, {vr(CA,4)}", "csw")
        if j == 14:
            for e in range(4): k.ds(f"ds_read_b32 v{CA+e}, v{vcr} offset:{256*e}", "csr")
        if j == 15:
            k.wait(lg="csr")
            k(f"v_add_f32 v{CA}, v{CA}, v{CA+1}\nv_add_f32 v{CA+2}, v{CA+2}, v{CA+3}\nv_add_f32 v{CA}, v{CA}, v{CA+2}\nv_mov_b32 v{CA+1}, v{CA}\nv_permlane32_swap_b32 v{CA}, v{CA+1}\nv_add_f32 v{CA}, v{CA}, v{CA+1}")
            k(f"s_mov_b32 s{sgu}, {25*MB}")
            k.vm(f"buffer_store_dword v{CA}, v{vcs}, {sr(S_ws,4)}, s{sgu} offen")
    k(f"v_lshrrev_b32 v{t}, 2, v{lane}\nv_lshrrev_b32 v{t2}, 4, v{lane}\nv_xor_b32 v{t}, v{t}, v{t2}\nv_and_b32 v{t}, 1, v{t}\nv_cmp_eq_u32 vcc, 0, v{t}")
    k(f"v_mov_b32 v{t2}, 0x3f803f80")
    for e in range(4): k(f"v_cndmask_b32 v{ONE+e}, 0, v{t2}, vcc")
    def kread(T):
        off = ((T // TPS) % R)*SLOT + (T % TPS)*4096
        for i in range(2): k.ds(f"ds_read_b128 {vr(Kb[T%2]+4*i,4)}, v{vT} offset:{off+1024*i}", ("k", T))
    def vread(T):
        off = ((T // TPS) % R)*SLOT + (T % TPS)*4096 + 2048
        for i in range(2): k.ds(f"ds_read_b128 {vr(Vb[T%2]+4*i,4)}, v{vT} offset:{off+1024*i}", ("v", T))
    def qk(T, i, c=None):
        d = vr(S[T%2], 16)
        cc = (vr(NEG, 16) if c is None else c) if i == 0 else d
        k(f"v_mfma_f32_32x32x16_bf16 {d}, {vr(Kb[T%2]+4*i,4)}, {vr(Q+4*i,4)}, {cc}")
    def rowmax16(src, dst):
        k(f"v_max3_f32 v{dst}, v{src}, v{src+1}, v{src+2}")
        for e in range(3, 15, 2): k(f"v_max3_f32 v{dst}, v{dst}, v{src+e}, v{src+e+1}")
        k(f"v_max_f32 v{dst}, v{dst}, v{src+15}")
    stamp(k)
    k.wait(vm="q"); k("s_barrier")
    stamp(k)
    kread(0); kread(1); vread(0)
    k.wait(lg=("k", 0))
    qk(0, 0, "0"); qk(0, 1)
    rowmax16(S[0], t)
    k(f"v_mov_b32 v{t2}, v{t}\nv_permlane32_swap_b32 v{t}, v{t2}\nv_max_f32 v{t}, v{t}, v{t2}")
    for e in range(16): k(f"v_sub_f32 v{NEG+e}, 0, v{t}")
    for e in range(16): k(f"v_sub_f32 v{S[0]+e}, v{S[0]+e}, v{t}")
    base = len(k.L); starts = [base]
    def summ(T, i):
        k(f"v_mfma_f32_16x16x32_bf16 {vr(Lr,4)}, {vr(ONE,4)}, {vr(Pf+4*i,4)}, {vr(Lr,4) if (T or i) else '0'}")
    for T in range(NTILE):
        s = S[T % 2]
        pend = None; jj = None
        if T + 2 < NTILE:
            if (T + 2) % TPS == 0:
                j = (T + 2) // TPS
                starts.append(len(k.L))
                k.wait(vm=("dma", j)); k("s_barrier")
                if j >= 2 and j - 2 + R < NST: pend = j - 2 + R
                jj = j
        if APRIO: k(f"s_setprio {3 - (T + 2) % TPS}")
        if ASCHED == 0:
            if T + 2 < NTILE: kread(T + 2)
            if T + 1 < NTILE:
                vread(T + 1)
                k.wait(lg=("k", T + 1)); qk(T + 1, 0)
            for e in range(8): k(f"v_exp_f32 v{s+e}, v{s+e}")
            if T + 1 < NTILE: qk(T + 1, 1)
            for e in range(4): k(f"v_cvt_pk_bf16_f32 v{Pf+e}, v{s+2*e}, v{s+2*e+1}")
            if jj is not None: cs(jj); cs2(jj)
            if pend is not None: pf(pend + 2 - R); dma(pend)
            for e in range(8, 12): k(f"v_exp_f32 v{s+e}, v{s+e}")
            k.wait(lg=("v", T))
            k(f"v_mfma_f32_32x32x16_bf16 {vr(O,16)}, {vr(Vb[T%2],4)}, {vr(Pf,4)}, {vr(O,16) if T else '0'}")
            for e in range(12, 16): k(f"v_exp_f32 v{s+e}, v{s+e}")
            summ(T, 0)
            for e in range(4, 8): k(f"v_cvt_pk_bf16_f32 v{Pf+e}, v{s+2*e}, v{s+2*e+1}")
            k(f"v_mfma_f32_32x32x16_bf16 {vr(O,16)}, {vr(Vb[T%2]+4,4)}, {vr(Pf+4,4)}, {vr(O,16)}")
            summ(T, 1)
        else:
            E = lambda a, b: [k(f"v_exp_f32 v{s+e}, v{s+e}") for e in range(a, b)]
            C = lambda a, b: [k(f"v_cvt_pk_bf16_f32 v{Pf+e}, v{s+2*e}, v{s+2*e+1}") for e in range(a, b)]
            if T: k(f"v_mfma_f32_32x32x16_bf16 {vr(O,16)}, {vr(Vb[(T-1)%2]+4,4)}, {vr(Pf+4,4)}, {vr(O,16)}")
            E(0, 3)
            if T + 1 < NTILE:
                k.wait(lg=("k", T + 1)); qk(T + 1, 0)
            E(3, 6)
            if T: summ(T - 1, 1)
            if T + 1 < NTILE: vread(T + 1)
            E(6, 8)
            if T + 1 < NTILE: qk(T + 1, 1)
            C(0, 4)
            E(8, 9)
            if T + 2 < NTILE: kread(T + 2)
            k.wait(lg=("v", T))
            k(f"v_mfma_f32_32x32x16_bf16 {vr(O,16)}, {vr(Vb[T%2],4)}, {vr(Pf,4)}, {vr(O,16) if T else '0'}")
            E(9, 12)
            summ(T, 0)
            if jj is not None: cs(jj); cs2(jj)
            if pend is not None: pf(pend + 2 - R); dma(pend)
            E(12, 16)
            C(4, 8)
    if ASCHED:
        T = NTILE
        k(f"v_mfma_f32_32x32x16_bf16 {vr(O,16)}, {vr(Vb[(T-1)%2]+4,4)}, {vr(Pf+4,4)}, {vr(O,16)}")
        summ(T - 1, 1)
    starts.append(len(k.L))
    blocks = [k.L[starts[i]:starts[i+1]] for i in range(len(starts) - 1)]
    del k.L[base:]
    compress_loop(k, blocks, R if not NOLOOP else 99, scnt, name + "_L")
    stamp(k)
    k.label(name + "_CHK")
    k(f"v_max3_f32 v{t}, |v{O}|, |v{O+1}|, |v{O+2}|")
    for e in range(3, 15, 2): k(f"v_max3_f32 v{t}, v{t}, |v{O+e}|, |v{O+e+1}|")
    k(f"v_max_f32 v{t}, v{t}, |v{O+15}|".replace("v_max_f32", "v_max_f32_e64"))
    k(f"s_mov_b32 s{st}, {f32(2.0**100)}\ns_mov_b32 s{st2}, 0x7f7fffff")
    k(f"v_cmp_nle_f32 vcc, v{Lr}, s{st}".replace("v_cmp_nle_f32", "v_cmp_nle_f32_e64"))
    sx = k.s(2)
    k(f"v_cmp_nle_f32_e64 {sr(sx,2)}, v{t}, s{st2}")
    k(f"v_add_f32 v{t2}, v{O}, v{O+1}")
    for e in range(2, 16): k(f"v_add_f32 v{t2}, v{t2}, v{O+e}")
    sy = k.s(2)
    k(f"v_cmp_u_f32_e64 {sr(sy,2)}, v{t2}, v{t2}")
    k(f"s_or_b64 vcc, vcc, {sr(sx,2)}\ns_or_b64 vcc, vcc, {sr(sy,2)}\ns_cbranch_scc1 {name}_SLOW")
    k.label(name + "_OUT")
    k(f"v_rcp_f32 v{t}, v{Lr}")
    k(f"s_lshl_b32 s{st}, s{sqb}, 6\ns_add_u32 s{st}, s{st}, s{shd}\ns_lshl_b32 s{st}, s{st}, 10\ns_add_u32 s{st}, s{st}, {WS_O}")
    k(f"v_and_b32 v{t2}, 15, v{lane}\nv_lshlrev_b32 v{t2}, 4, v{t2}\nv_bfe_u32 v{vD}, v{lane}, 4, 1\nv_lshl_add_u32 v{t2}, v{vD}, 15, v{t2}\nv_lshrrev_b32 v{vD}, 5, v{lane}\nv_lshl_add_u32 v{t2}, v{vD}, 8, v{t2}")
    for e in range(16): k(f"v_mul_f32 v{O+e}, v{O+e}, v{t}")
    for e in range(8): k(f"v_cvt_pk_bf16_f32 v{Pf+e}, v{O+2*e}, v{O+2*e+1}")
    for i in range(2): k.vm(f"buffer_store_dwordx4 {vr(Pf+4*i,4)}, v{t2}, {sr(S_ws,4)}, s{st} offen offset:{512*i}")
    tend(k)
    k("s_endpgm")
    k.vmq = []; k.lgq = []
    k.label(name + "_SLOW")
    mx = k.v()
    k(f"v_mov_b32 v{mx}, 0xff800000\ns_mov_b32 s{sKV}, s{sKV0}\ns_mov_b32 s{scnt}, {NTILE}")
    k.label(name + "_S1")
    for i in range(2): k.vm(f"buffer_load_dwordx4 {vr(Kb[0]+4*i,4)}, v{vT}, {sr(S_ws,4)}, s{sKV} offen offset:{1024*i}")
    k.wait(vm="all")
    qk(0, 0, "0"); qk(0, 1)
    rowmax16(S[0], t)
    k(f"v_max_f32 v{mx}, v{mx}, v{t}")
    k(f"s_add_u32 s{sKV}, s{sKV}, 4096\ns_sub_u32 s{scnt}, s{scnt}, 1\ns_cmp_lg_u32 s{scnt}, 0\ns_cbranch_scc1 {name}_S1")
    k(f"v_mov_b32 v{t2}, v{mx}\nv_permlane32_swap_b32 v{mx}, v{t2}\nv_max_f32 v{mx}, v{mx}, v{t2}")
    for e in range(16): k(f"v_sub_f32 v{NEG+e}, 0, v{mx}")
    for e in range(16): k(f"v_mov_b32 v{O+e}, 0")
    for e in range(4): k(f"v_mov_b32 v{Lr+e}, 0")
    k(f"s_mov_b32 s{sKV}, s{sKV0}\ns_mov_b32 s{scnt}, {NTILE}")
    k.label(name + "_S2")
    for i in range(2): k.vm(f"buffer_load_dwordx4 {vr(Kb[0]+4*i,4)}, v{vT}, {sr(S_ws,4)}, s{sKV} offen offset:{1024*i}")
    for i in range(2): k.vm(f"buffer_load_dwordx4 {vr(Vb[0]+4*i,4)}, v{vT}, {sr(S_ws,4)}, s{sKV} offen offset:{2048+1024*i}")
    k.wait(vm="all")
    qk(0, 0); qk(0, 1)
    s = S[0]
    for e in range(16): k(f"v_exp_f32 v{s+e}, v{s+e}")
    for e in range(8): k(f"v_cvt_pk_bf16_f32 v{Pf+e}, v{s+2*e}, v{s+2*e+1}")
    for i in range(2):
        k(f"v_mfma_f32_32x32x16_bf16 {vr(O,16)}, {vr(Vb[0]+4*i,4)}, {vr(Pf+4*i,4)}, {vr(O,16)}")
        k(f"v_mfma_f32_16x16x32_bf16 {vr(Lr,4)}, {vr(ONE,4)}, {vr(Pf+4*i,4)}, {vr(Lr,4)}")
    k(f"s_add_u32 s{sKV}, s{sKV}, 4096\ns_sub_u32 s{scnt}, s{scnt}, 1\ns_cmp_lg_u32 s{scnt}, 0\ns_cbranch_scc1 {name}_S2")
    k(f"s_nop 15\ns_branch {name}_OUT")
    finish(k, False)
    return k

OPT = {"wo": dict(R=8, DA=8, DW=3), "ffn1": dict(), "ffn2": dict(R=6, DA=6, DW=3), "qkv": dict()}
def build(out):
    import g16
    ks = [gen_ln("ln1_kernel", False, 0, WS_XN), gen_qkv("qkv_kernel"), gen_attn("attn_kernel"),
          g16.gen_res16("wo_kernel", 1024, P_WO, WS_O, False, **OPT["wo"]),
          g16.gen_ffn1_16("ffn1_kernel", **OPT["ffn1"]), g16.gen_res16("ffn2_kernel", 3584, P_WD, WS_ACT, True, **OPT["ffn2"])]
    ref = open("cdna_kernels/" + NAME + ".s.ref").read().split("\n")
    head = [l for l in ref if l.startswith(";") and not l.startswith("; @launch") and not l.startswith("; Override") and not l.startswith("; grid=")]
    txt = "\n".join(head) + "\n"
    for k in ks:
        txt += f"; @launch kernel={k.name} grid=({k.grid[0]},{k.grid[1]},{k.grid[2]}) block=({k.block[0]},{k.block[1]},{k.block[2]}) lds={k.lds}\n"
    txt += '.amdgcn_target "amdgcn-amd-amdhsa--gfx950"\n'
    descs = ""
    for k in ks:
        c, d = k.text(); txt += c; descs += d
        print(k.name, "vgpr", k.nv, "lines", c.count("\n"), "lds", k.lds, file=sys.stderr)
    txt += descs
    open(out, "w").write(txt)

if __name__ == "__main__":
    sys.modules["gen"] = sys.modules["__main__"]
    if "--timing" in sys.argv: TIMING = True; sys.argv.remove("--timing")
    if "--nopf" in sys.argv: PF = False; sys.argv.remove("--nopf")
    for a in list(sys.argv):
        if a.startswith("-D"):
            n, v = a[2:].split("=")
            if "." in n: n1, n2 = n.split("."); OPT[n1][n2] = int(v)
            else: globals()[n] = int(v)
            sys.argv.remove(a)
    if "--dbg" in sys.argv: TIMING = 2; sys.argv.remove("--dbg")
    build(sys.argv[1] if len(sys.argv) > 1 else "cdna_kernels/" + NAME + ".s")
```

```python
import re

TRANS = ("v_exp_f32", "v_log_f32", "v_rcp_f32", "v_rsq_f32", "v_sqrt_f32", "v_sin_f32", "v_cos_f32")

def vr(a, n=1):
    return f"v{a}" if n == 1 else f"v[{a}:{a+n-1}]"
def sr(a, n=1):
    return f"s{a}" if n == 1 else f"s[{a}:{a+n-1}]"

_reg_re = re.compile(r"^(-?)(abs\()?\|?([vsa])(?:(\d+)|\[(\d+):(\d+)\])\|?\)?$")
def regs_of(op):
    op = op.strip()
    if op == "vcc": return {("s", 106), ("s", 107)}
    if op == "vcc_lo": return {("s", 106)}
    if op == "vcc_hi": return {("s", 107)}
    if op == "exec": return {("s", 126), ("s", 127)}
    if op == "exec_lo": return {("s", 126)}
    if op == "exec_hi": return {("s", 127)}
    if op == "m0": return {("s", 124)}
    m = _reg_re.match(op)
    if not m: return set()
    k = m.group(3)
    if m.group(4) is not None:
        return {(k, int(m.group(4)))}
    return {(k, i) for i in range(int(m.group(5)), int(m.group(6)) + 1)}

def split_ops(rest):
    ops, depth, cur = [], 0, ""
    for ch in rest:
        if ch in "[(": depth += 1
        if ch in "])": depth -= 1
        if ch == "," and depth == 0:
            ops.append(cur.strip()); cur = ""
        else:
            cur += ch
    if cur.strip(): ops.append(cur.strip())
    return ops

class Ins:
    __slots__ = ("text", "mn", "kind", "rd", "wr", "passes", "srcA", "srcB", "srcC", "dpp", "wide_store", "lds_dma", "states", "data")
    def __init__(self, text):
        self.text = text
        t = text.split(";")[0].strip()
        self.rd = set(); self.wr = set(); self.passes = 0; self.dpp = False
        self.wide_store = False; self.lds_dma = False; self.states = 1; self.data = set()
        self.srcA = self.srcB = self.srcC = set()
        if not t or t.endswith(":") or t.startswith("."):
            self.kind = "label" if t.endswith(":") else "none"; self.mn = t; self.states = 0
            return
        parts = t.split(None, 1)
        mn = parts[0]; self.mn = mn
        rest = parts[1] if len(parts) > 1 else ""
        ops = split_ops(rest)
        mods = ""
        if ops:
            lp = ops[-1].split()
            ops[-1] = lp[0]; mods = " ".join(lp[1:])
        R = [regs_of(o) for o in ops]
        if mn == "s_nop":
            self.kind = "nop"; self.states = int(ops[0], 0) + 1
        elif mn.startswith("v_mfma"):
            self.kind = "mfma"
            self.passes = 8 if "32x32" in mn else 4
            self.wr = R[0]; self.srcA = R[1]; self.srcB = R[2]; self.srcC = R[3]
            self.rd = R[1] | R[2] | R[3]
        elif mn.startswith("v_"):
            self.kind = "trans" if mn.replace("_e32", "").replace("_e64", "") in TRANS else "valu"
            if "quad_perm" in mods or "row_" in mods or "_dpp" in mn: self.dpp = True
            if mn.startswith("v_permlane") and "swap" in mn:
                self.wr = R[0] | R[1]; self.rd = R[0] | R[1]; self.kind = "permlane"
            elif mn.startswith("v_cmp"):
                self.wr = R[0]; self.rd = set().union(*R[1:])
            elif mn.startswith("v_readfirstlane") or mn.startswith("v_readlane"):
                self.wr = R[0]; self.rd = set().union(*R[1:]); self.kind = "readlane"
            elif mn.startswith("v_add_co") or mn.startswith("v_addc_co") or mn.startswith("v_sub_co"):
                self.wr = R[0] | R[1]; self.rd = set().union(*R[2:])
            else:
                self.wr = R[0]; self.rd = set().union(*R[1:]) if len(R) > 1 else set()
                if mn.startswith("v_fmac") or mn.startswith("v_dot2c") or self.dpp or mn.startswith("v_pk_fmac"):
                    self.rd |= R[0]
                if mn.startswith("v_cndmask") and len(ops) == 3:
                    self.rd |= regs_of("vcc")
                if mn.startswith("v_dot"): self.kind = "dot"
        elif mn.startswith("buffer_") or mn.startswith("global_"):
            self.kind = "vmem"
            is_lds = " lds" in (" " + mods)
            if mn.startswith("buffer_"):
                if is_lds:
                    self.lds_dma = True; self.rd = set().union(*R) | regs_of("m0")
                elif "load" in mn:
                    self.wr = R[0]; self.rd = set().union(*R[1:])
                else:
                    self.rd = set().union(*R); self.data = R[0]
                    if "x4" in mn or "x3" in mn: self.wide_store = True
            else:
                if "load" in mn:
                    self.wr = R[0]; self.rd = set().union(*R[1:])
                else:
                    self.rd = set().union(*R); self.data = R[1]
                    if "x4" in mn or "x3" in mn: self.wide_store = True
        elif mn.startswith("ds_"):
            self.kind = "ds"
            if "read" in mn or "permute" in mn or "swizzle" in mn:
                self.wr = R[0]; self.rd = set().union(*R[1:])
            else:
                self.rd = set().union(*R)
        elif mn.startswith("s_"):
            self.kind = "salu"
            if mn.startswith("s_cmp") or mn.startswith("s_cbranch") or mn in ("s_branch", "s_barrier", "s_waitcnt", "s_endpgm", "s_setprio", "s_sleep"):
                self.rd = set().union(*R) if R else set()
            else:
                self.wr = R[0] if R else set(); self.rd = set().union(*R[1:]) if len(R) > 1 else set()
                if "saveexec" in mn: self.wr = self.wr | regs_of("exec")
        else:
            raise ValueError("unknown instr: " + text)

VALUK = ("valu", "trans", "permlane", "readlane", "dot")
def isv(s): return {r for r in s if r[0] in "va"}
def iss(s): return {r for r in s if r[0] == "s"}

def need(p, c):
    n = 0
    if p.kind in VALUK:
        pv = isv(p.wr); ps = iss(p.wr)
        if c.kind == "mfma" and pv & c.rd: n = max(n, 2)
        if p.kind == "trans" and c.kind in VALUK and c.kind != "trans" and pv & c.rd: n = max(n, 1)
        if p.kind == "trans" and c.kind == "trans" and pv & c.rd: n = max(n, 1)
        if c.kind == "readlane" and pv & c.rd: n = max(n, 1)
        if (c.kind == "permlane" or c.dpp) and pv & c.rd: n = max(n, 2)
        if ps:
            if c.kind in VALUK and ps & c.rd: n = max(n, 4 if c.kind == "readlane" else 2)
            if c.kind == "vmem" and ps & c.rd: n = max(n, 5)
            if ps & regs_of("exec"):
                if c.kind == "mfma": n = max(n, 4)
                if c.dpp: n = max(n, 5)
        if p.kind == "dot" and pv:
            if c.kind == "dot" and c.mn == p.mn:
                pass
            elif c.kind in VALUK + ("mfma", "vmem", "ds") and pv & (c.rd | c.wr): n = max(n, 3)
    if p.kind == "mfma":
        big = 12 if p.passes == 8 else 8
        if c.kind == "mfma":
            if p.wr & (c.srcA | c.srcB): n = max(n, big)
            if p.wr & c.srcC and not (p.wr == c.srcC and p.passes == c.passes):
                n = max(n, 10 if p.passes == 8 else 6)
        elif c.kind in VALUK:
            if p.wr & (c.rd | c.wr): n = max(n, big)
            if p.srcC & c.wr: n = max(n, 7 if p.passes == 8 else 3)
        elif c.kind in ("vmem", "ds"):
            if p.wr & (c.rd | c.wr): n = max(n, big)
    if p.kind == "vmem" and p.wide_store:
        if c.kind in VALUK and p.data & c.wr: n = max(n, 2)
        elif p.data & c.wr: n = max(n, 1)
    if p.kind == "salu" and (p.wr & regs_of("m0")) and c.kind == "vmem" and c.lds_dma: n = max(n, 1)
    return n

MAXD = 13
def pad_linear(lines):
    out = []
    for t in lines:
        c = Ins(t)
        if c.states:
            req = 0; dist = 0
            for p in reversed(out):
                if dist >= MAXD: break
                if p.states:
                    k = need(p, c) - dist
                    if k > req: req = k
                    dist += p.states
            while req > 0:
                n = min(req, 16)
                out.append(Ins(f"    s_nop {n-1}")); req -= n
        out.append(c)
    return out

def check_branches(ins):
    labels = {i.mn[:-1]: idx for idx, i in enumerate(ins) if i.kind == "label"}
    idx = 0
    while idx < len(ins):
        b = ins[idx]
        if b.mn.startswith("s_cbranch") or b.mn == "s_branch":
            tgt = b.text.split(";")[0].split()[-1]
            labels = {i.mn[:-1]: k for k, i in enumerate(ins) if i.kind == "label"}
            if tgt in labels:
                pre = [p for p in ins[max(0, idx - 40):idx + 1] if p.states]
                post = [p for p in ins[labels[tgt]:labels[tgt] + 40] if p.states]
                req = 0
                dpost = 0
                for c in post:
                    if dpost >= MAXD: break
                    dist = dpost
                    for p in reversed(pre):
                        if dist >= MAXD: break
                        k = need(p, c) - dist
                        if k > req: req = k
                        dist += p.states
                    dpost += c.states
                if req > 0:
                    ins.insert(idx, Ins(f"    s_nop {req-1}")); idx += 1
        idx += 1
    return ins

class K:
    def __init__(self, name, grid, block, lds):
        self.name = name; self.grid = grid; self.block = block; self.lds = lds
        self.L = []
        self.vmq = []
        self.lgq = []
        self.nv = 0; self.ns = 0
        self._v = 1; self._s = 4
        self.uid = 0
    def v(self, n=1, align=None):
        if align is None: align = 2 if n >= 2 else 1
        a = (self._v + align - 1) // align * align
        self._v = a + n
        return a
    def s(self, n=1, align=None):
        if align is None: align = 4 if n >= 4 else (2 if n == 2 else 1)
        a = (self._s + align - 1) // align * align
        self._s = a + n
        assert self._s <= 100
        return a
    def __call__(self, t):
        for line in t.split("\n"):
            line = line.strip()
            if line: self.L.append("    " + line)
    def label(self, n): self.L.append(n + ":")
    def c(self, t): self.L.append("    ; " + t)
    def vm(self, t, tag=None):
        self(t); self.vmq.append(tag)
    def ds(self, t, tag=None):
        self(t); self.lgq.append(tag)
    def _cnt(self, q, tag):
        idx = None
        for i, x in enumerate(q):
            if x == tag: idx = i
        if idx is None: return None
        return len(q) - 1 - idx, idx
    def wait(self, vm=None, lg=None):
        parts = []
        if vm is not None:
            if vm == "all":
                if self.vmq: parts.append("vmcnt(0)"); self.vmq = []
            else:
                r = self._cnt(self.vmq, vm)
                if r is not None:
                    n, idx = r
                    n2 = min(n, 63)
                    parts.append(f"vmcnt({n2})"); self.vmq = self.vmq[len(self.vmq) - n2:] if n2 else []
        if lg is not None:
            if lg == "all":
                if self.lgq: parts.append("lgkmcnt(0)"); self.lgq = []
            else:
                r = self._cnt(self.lgq, lg)
                if r is not None:
                    n, idx = r
                    n2 = min(n, 15)
                    parts.append(f"lgkmcnt({n2})"); self.lgq = self.lgq[len(self.lgq) - n2:] if n2 else []
        if parts: self("s_waitcnt " + " ".join(parts))
    def mark(self): return len(self.L)
    def srd(self, d, base, nbytes):
        self(f"s_mov_b32 s{d}, s{base}\ns_mov_b32 s{d+1}, s{base+1}\ns_mov_b32 s{d+2}, {nbytes}\ns_mov_b32 s{d+3}, 0x20000")
    def warm(self, nw=8):
        self.nwarm = nw
        self("s_mov_b64 exec, 0")
        for w in range(nw): self(f"s_cmp_eq_u32 s{self.sw}, {w}\ns_cbranch_scc1 @W{w}")
        self.label(f"{self.name}_WRET")
        self("s_mov_b64 exec, -1")
    def add_stubs(self, ins, sizes):
        real = [i for i in ins if i.states]
        assert len(real) == len(sizes), (self.name, len(real), len(sizes))
        out = []; addr = 0; n = 0; on = False; page = 0; stubs = []
        lim = getattr(self, "warm_end", None)
        for i in ins:
            if i.kind == "label" and i.mn == f"{self.name}_WRET:": on = True
            if i.kind == "label" and lim and i.mn == lim + ":": on = False
            if i.states:
                if addr // 4096 > page:
                    page = addr // 4096
                    if on:
                        stubs.append(len(out)); out.append(None); addr += 4
                addr += sizes[n]; n += 1
            out.append(i)
        nw = self.nwarm; ns = len(stubs)
        res = []
        for idx, i in enumerate(out):
            if i is None:
                q = stubs.index(idx)
                tgt = f"{self.name}_WS{q+nw}" if q + nw < ns else f"{self.name}_WRET"
                res.append(Ins(f"{self.name}_WS{q}:")); res.append(Ins(f"    s_cbranch_execz {tgt}"))
            else: res.append(i)
        self.nstub = ns
        return res
    def text(self, sizes=None):
        L0 = self.L
        self.L = [re.sub(r"@W\d+", f"{self.name}_WRET", l) for l in L0]
        ins = pad_linear(self.L)
        ins = check_branches(ins)
        self.L = L0
        if sizes is not None and hasattr(self, "nwarm"):
            ins = self.add_stubs(ins, sizes)
            w = 0
            for j, i in enumerate(ins):
                if i.mn == "s_cbranch_scc1" and i.text.split()[-1] == f"{self.name}_WRET":
                    if w < self.nstub: ins[j] = Ins(f"    s_cbranch_scc1 {self.name}_WS{w}")
                    w += 1
        mx = 0
        for i in ins:
            for r in (i.rd | i.wr):
                if r[0] == "v": mx = max(mx, r[1])
        nv = mx + 1
        self.nv = nv
        acc = (nv + 3) // 4 * 4
        body = "\n".join(i.text for i in ins)
        code = f""".text
.globl {self.name}
.p2align {getattr(self, 'align', 12)}
.type {self.name},@function
{self.name}:
{body}
"""
        desc = f""".section .rodata,"a"
.p2align 6
.amdhsa_kernel {self.name}
  .amdhsa_next_free_vgpr {acc}
  .amdhsa_next_free_sgpr 102
  .amdhsa_accum_offset {acc}
  .amdhsa_group_segment_fixed_size 0
  .amdhsa_kernarg_size 80
  .amdhsa_user_sgpr_count 2
  .amdhsa_user_sgpr_kernarg_segment_ptr 1
  .amdhsa_system_sgpr_workgroup_id_x 1
.end_amdhsa_kernel
"""
        return code, desc

def compress_loop(k, blocks, period, scnt, lname):
    n = len(blocks)
    best = (0, 0)
    for st in range(n):
        reps = 1
        while st + (reps + 1) * period <= n and all(blocks[st + reps * period + i] == blocks[st + i] for i in range(period)):
            reps += 1
        if reps > best[1] and st + period <= n: best = (st, reps)
    st, reps = best
    if reps < 2:
        for b in blocks: k.L.extend(b)
        return 1
    for b in blocks[:st]: k.L.extend(b)
    k(f"s_mov_b32 s{scnt}, {reps}")
    k.label(lname)
    for b in blocks[st:st + period]: k.L.extend(b)
    k(f"s_sub_u32 s{scnt}, s{scnt}, 1\ns_cmp_lg_u32 s{scnt}, 0\ns_cbranch_scc1 {lname}")
    for b in blocks[st + reps * period:]: k.L.extend(b)
    return reps
```

```python
import math
from asmlib import *
import gen as G
from gen import MB, f32, sr, vr, stamp, finish, tstart, WS_SIZE, P_X, P_WQKV, P_WO, P_WG, P_WU, P_WD, P_OUT, LdsBases
WS_XN, WS_Q, WS_KV, WS_O, WS_H, WS_ACT = 0, 4*MB, 8*MB, 16*MB, 20*MB, 28*MB
WS_ST = 24*MB
WS_CS = 25*MB
MF = "v_mfma_f32_16x16x32_bf16"

def start2(k, nwg):
    k(f"s_cmp_ge_u32 s2, {nwg}\ns_cbranch_scc1 {k.name}_END")
    P = k.s(16, 4); P2 = k.s(4, 4)
    k(f"s_load_dwordx16 {sr(P,16)}, s[0:1], 0\ns_load_dwordx4 {sr(P2,4)}, s[0:1], 64")
    lane = k.v(); sw = k.s()
    k(f"v_lshrrev_b32 v{lane}, 6, v0")
    k(f"v_readfirstlane_b32 s{sw}, v{lane}")
    k(f"v_and_b32 v{lane}, 63, v0")
    k.P = P; k.PWS = P2 + 2; k.lane = lane; k.sw = sw
    tstart(k)
def karg(k):
    k("s_waitcnt lgkmcnt(0)")
    if not G.XS: stamp(k)

def mainloop16(k, order, MT, KPS, NST, R, DA, DW, ndma, dma, aload, wread, mfma, lname, pro, period,
               fill=None, lpm=1, lag=2, mid=None, do_pro=True, win=None, il=0, prio=0, bars=None, extra=(), gap=1, urg=None, cap=99):
    NB = DW + 1
    n = len(order)
    KS = KPS * NST
    first_use = {}; last_use = {}; first_stage = {}
    for i, (u, t) in enumerate(order):
        first_use.setdefault(u, i); last_use[u] = i
        first_stage.setdefault(u // KPS, i)
    if bars is None: bars = set(range(NST))
    grp = {j: max(b for b in bars if b <= j) for j in range(NST)}
    barpos = {j: max(-1, first_stage[j] - DW) if j else -1 for j in bars}
    todo = []
    for j in range(NST):
        for q in range(ndma):
            jj = j - R + lag
            if jj >= 0:
                jj = min(b for b in bars if b >= jj); assert jj < grp[j], (j, jj)
            todo.append((barpos[grp[j]], barpos[jj] if jj >= 0 else -2, "d", j, q))
    for u in range(KS):
        for i in range(MT):
            todo.append((first_use[u], last_use[u - DA] if u >= DA else -2, "a", u, i))
    for n_, (need_, f_) in enumerate(extra): todo.append((need_, -2, "x", n_, 0))
    todo.sort(key=lambda x: (x[0], x[2] == "a", x[3], x[4]))
    if urg is None: urg = 2*DW + 8
    X = G.XF if lname.startswith(G.XK[G.XI]) else 0
    def issue(e):
        if e[2] == "d" and (X & 1) and e[3] >= R: return
        if e[2] == "a" and (X & 2) and e[3] >= DA: return
        if e[2] == "x": return extra[e[3]][1]()
        (dma if e[2] == "d" else aload)(e[3], e[4])
    for p in pro:
        if p == "bar":
            if do_pro: k("s_barrier")
            continue
        if p == "warm":
            if do_pro and G.WARM: k.warm()
            continue
        e = [x for x in todo if x[2:] == p][0]; todo.remove(e)
        if do_pro: issue(e)
    if do_pro:
        if mid: mid()
        stamp(k)
        if G.WARM and "warm" not in pro: k.warm()
    if do_pro == "only": return
    scnt = k.s()
    def barwait(j):
        last = max(x for x in range(NST) if grp[x] == j)
        k.wait(vm=("dma", last))
    barwait(0); k("s_barrier")
    stamp(k); G.tl(k)
    done_bar = {0}
    def do_read(m, part):
        u, t = order[m]
        j = u // KPS
        if grp[j] not in done_bar:
            starts.append(len(k.L))
            barwait(grp[j])
            if not (X & 4): k("s_barrier")
            G.tl(k)
            done_bar.add(grp[j])
        if not (X & 8) or m < 16: wread(j, u % KPS, t, m % NB, m, part)
    base = len(k.L); starts = [base]
    for m in range(min(DW, n)): do_read(m, 0); do_read(m, 1)
    seen_a = set()
    bp = sorted(set(barpos.values())) + [n]
    lastp = None; lastl = -9; cnt = {}
    for i, (u, t) in enumerate(order):
        b0 = max(x for x in bp if x <= i); b1 = min(x for x in bp if x > i)
        pos, ln = i - b0, b1 - b0
        if not il and i + DW < n: do_read(i + DW, 0); do_read(i + DW, 1)
        k.wait(vm=("a", u) if u not in seen_a else None, lg=("w", i)); seen_a.add(u)
        if il:
            assert MT == 2
            mfma(u, t, i % NB, 0)
            if i + DW < n: do_read(i + DW, 0)
            mfma(u, t, i % NB, 1)
            if i + DW < n: do_read(i + DW, 1)
        else:
            for ii in range(MT): mfma(u, t, i % NB, ii)
        if prio:
            p = 3 - min(3, pos * 4 // ln)
            if p != lastp: k(f"s_setprio {p}"); lastp = p
        c = 0
        while c < lpm:
            e = next((x for x in todo if x[1] <= i), None)
            if e is None: break
            urgent = e[0] - i <= urg
            if not urgent:
                if win and not win(pos, ln) and not (gap == 1 and cap == 99 and e[1] == -2): break
                if i - lastl < gap: break
                if cnt.get(b0, 0) >= cap: break
            lastl = i; cnt[b0] = cnt.get(b0, 0) + 1
            todo.remove(e); issue(e); c += 1
        if fill and not (X & 16): fill(i, (u, t))
        if G.XS and i == G.XS: stamp(k)
    assert not todo, todo[:4]
    starts.append(len(k.L))
    blocks = [k.L[starts[i]:starts[i+1]] for i in range(len(starts) - 1)]
    del k.L[base:]
    reps = compress_loop(k, blocks, period, scnt, lname)
    stamp(k); G.tl(k)
    return reps

def dual(k, body, two=True):
    if not two:
        body(0); finish(k); return
    snap = (list(k.vmq), list(k.lgq), k._v, k._s, k.nst); tli = k.tli
    k(f"s_cmp_ge_u32 s{k.sw}, 4\ns_cbranch_scc1 {k.name}_P1")
    body(0); G.tend(k); k("s_endpgm")
    k.vmq, k.lgq, k._v, k._s, k.nst = list(snap[0]), list(snap[1]), snap[2], snap[3], snap[4]
    k.tli = tli
    if hasattr(k, "TV"): del k.TV
    k.label(f"{k.name}_P1")
    body(1); finish(k)

def mkwin(mode, ph):
    if mode == 0: return None
    if mode == 1: return lambda pos, n: (pos * 2 // n) == ph
    if mode == 2: return lambda pos, n: (pos * 2 // n) == ph and pos % 2 == 1
    if mode == 3: return lambda pos, n: pos % 2 == ph
    if mode == 4: return lambda pos, n: (pos * 4 // n) % 2 == ph
    if mode == 6: return lambda pos, n: pos % 3 == ph
    if mode == 7: return lambda pos, n: (pos * 2 // n) == ph and pos % 3 != 2
    if mode == 8: return lambda pos, n: (pos * 2 // n) == ph and pos % 4 != 3
    if mode == 9: return lambda pos, n: (pos * 2 // n) == 1 - ph
    if mode == 5: return lambda pos, n: pos % 3 == 0 and ((pos // 3) % 2 == ph)

def lane_parts(k):
    lane = k.lane
    g = k.v(); r = k.v(); cc = k.v()
    k(f"v_lshrrev_b32 v{g}, 4, v{lane}\nv_bfe_u32 v{r}, v{lane}, 2, 2\nv_and_b32 v{cc}, 3, v{lane}")
    return g, r, cc

def a_loader16(k, S_ws, vA, Abuf, MT, DA, base_off):
    sA = k.s()
    k(f"s_mov_b32 s{sA}, {base_off}")
    def aload(u, i):
        k.vm(f"buffer_load_dwordx4 {vr(Abuf + 4*((u % DA)*MT + i), 4)}, v{vA[i]}, {sr(S_ws,4)}, s{sA} offen offset:{1024*(u%4)}", ("a", u))
        if u % 4 == 3 and i == MT - 1: k(f"s_add_u32 s{sA}, s{sA}, 4096")
    return aload

def xg_reduce(k, regs, tmp):
    for r in regs:
        k(f"v_mov_b32 v{tmp}, v{r}\nv_permlane16_swap_b32 v{r}, v{tmp}\nv_add_f32 v{r}, v{r}, v{tmp}")
        k(f"v_mov_b32 v{tmp}, v{r}\nv_permlane32_swap_b32 v{r}, v{tmp}\nv_add_f32 v{r}, v{r}, v{tmp}")

def gen_res16(name, KTOT, wptr, a_off, is_down, R=6, DA=6, DW=4, NPRO=2, lpm=1):
    KPS, NT, MT = 2, 4, 2
    KSH = KTOT // 64
    NST = KSH // KPS
    SLOT = 16384
    R = min(R, NST)
    k = K(name, (256, 1, 1), (512, 1, 1), R * SLOT + 32768)
    start2(k, 256)
    lane, sw = k.lane, k.sw
    S_w = k.s(4); S_ws = k.s(4); S_x = k.s(4)
    smt = k.s(); snt = k.s(); smbl = k.s(); skh = k.s(); sm16 = k.s(); st = k.s(); st2 = k.s()
    k(f"s_and_b32 s{smt}, s2, 3\ns_lshl_b32 s{smt}, s{smt}, 2\ns_bfe_u32 s{st}, s2, 0x20003\ns_add_u32 s{smt}, s{smt}, s{st}")
    k(f"s_bfe_u32 s{snt}, s2, 0x10002\ns_lshl_b32 s{snt}, s{snt}, 3\ns_lshr_b32 s{st}, s2, 5\ns_add_u32 s{snt}, s{snt}, s{st}")
    k(f"s_and_b32 s{smbl}, s{sw}, 3\ns_lshr_b32 s{skh}, s{sw}, 2")
    k(f"s_lshl_b32 s{sm16}, s{smt}, 3\ns_lshl_b32 s{st}, s{smbl}, 1\ns_add_u32 s{sm16}, s{sm16}, s{st}\ns_add_u32 s{sm16}, s{sm16}, s{skh}")
    vd = [k.v(), k.v()]; t = k.v(); t2 = k.v()
    k(f"v_lshrrev_b32 v{t}, 3, v{lane}\nv_lshlrev_b32 v{vd[0]}, 11, v{t}\nv_bfe_u32 v{t}, v{lane}, 4, 2\nv_lshlrev_b32 v{t}, 1, v{t}\nv_and_b32 v{t2}, 7, v{lane}\nv_xor_b32 v{t}, v{t}, v{t2}\nv_lshl_add_u32 v{vd[0]}, v{t}, 4, v{vd[0]}")
    k(f"s_mul_i32 s{st}, s{skh}, {KTOT//2}\ns_lshl_b32 s{st2}, s{smbl}, 4\ns_add_u32 s{st}, s{st}, s{st2}\ns_lshl_b32 s{st}, s{st}, 11\ns_lshl_b32 s{st2}, s{snt}, 7\ns_add_u32 s{st}, s{st}, s{st2}")
    k(f"v_add_u32 v{vd[0]}, s{st}, v{vd[0]}\nv_add_u32 v{vd[1]}, {8*2048}, v{vd[0]}")
    sW = k.s(); sL = k.s()
    k(f"s_mov_b32 s{sW}, 0\ns_lshl_b32 s{sL}, s{sw}, 11")
    def dma(j, i):
        k(f"s_add_u32 m0, s{sL}, {(j % R)*SLOT + i*1024}")
        k.vm(f"buffer_load_dwordx4 v{vd[i]}, {sr(S_w,4)}, s{sW} offen lds", ("dma", j))
        if i == 1: k(f"s_add_u32 s{sW}, s{sW}, {64*2048}")
    vA = [k.v(), k.v()]; vT = k.v()
    k(f"v_lshlrev_b32 v{vT}, 4, v{lane}")
    k(f"s_mul_i32 s{st2}, s{skh}, {KSH*1024}")
    k(f"s_mul_i32 s{st}, s{sm16}, {KTOT//32*1024}\ns_add_u32 s{st}, s{st}, s{st2}\nv_add_u32 v{vA[0]}, s{st}, v{vT}")
    k(f"s_xor_b32 s{st}, s{sm16}, 1\ns_mul_i32 s{st}, s{st}, {KTOT//32*1024}\ns_add_u32 s{st}, s{st}, s{st2}\nv_add_u32 v{vA[1]}, s{st}, v{vT}")
    Abuf = k.v(4*MT*DA, 4)
    aload = a_loader16(k, S_ws, vA, Abuf, MT, DA, a_off)
    g, r, cc = lane_parts(k)
    ra = [k.v() for _ in range(4)]
    if is_down: k(f"v_lshl_add_u32 v{t}, v{g}, 2, v{r}")
    else: k(f"v_lshrrev_b32 v{t}, 1, v{g}\nv_lshlrev_b32 v{t}, 4, v{t}\nv_and_b32 v{t2}, 1, v{g}\nv_lshl_add_u32 v{t}, v{t2}, 2, v{t}\nv_add_u32 v{t}, v{t}, v{r}")
    k(f"s_lshl_b32 s{st}, s{skh}, 13\nv_lshlrev_b32 v{t2}, 7, v{t}\nv_lshl_add_u32 v{t2}, v{cc}, 3, v{t2}\nv_add_u32 v{t2}, s{st}, v{t2}")
    k(f"v_bfe_u32 v{t}, v{t}, 1, 2")
    for tt in range(4):
        k(f"v_xor_b32 v{ra[tt]}, {tt}, v{t}\nv_lshl_add_u32 v{ra[tt]}, v{ra[tt]}, 5, v{t2}")
    RB = [LdsBases(k, ra[tt], R*SLOT - 1) for tt in range(4)]
    HOFF = 2048 if is_down else 1024
    Wb = k.v(4*(DW+1), 4)
    ACC = k.v(32, 4)
    RES = k.v(8, 4)
    vx = k.v(); sh = k.s(); vs = k.v()
    k(f"s_lshl_b32 s{st}, s{sm16}, 15\ns_lshl_b32 s{st2}, s{snt}, 7\ns_add_u32 s{st}, s{st}, s{st2}")
    k(f"v_and_b32 v{vx}, 15, v{lane}\nv_lshlrev_b32 v{vs}, 7, v{vx}\nv_lshlrev_b32 v{vx}, 11, v{vx}\nv_and_b32 v{t}, 1, v{g}\nv_lshl_add_u32 v{vx}, v{t}, 5, v{vx}\nv_lshrrev_b32 v{t}, 1, v{g}\nv_lshl_add_u32 v{vx}, v{t}, 4, v{vx}\nv_add_u32 v{vx}, s{st}, v{vx}")
    k(f"s_lshl_b32 s{sh}, s{sm16}, 15\ns_lshl_b32 s{st2}, s{snt}, 11\ns_add_u32 s{sh}, s{sh}, s{st2}\ns_add_u32 s{sh}, s{sh}, {WS_H}")
    if not is_down:
        k(f"s_lshl_b32 s{st}, s{sm16}, 11\ns_lshl_b32 s{st2}, s{snt}, 3\ns_add_u32 s{st}, s{st}, s{st2}\ns_add_u32 s{st}, s{st}, {WS_ST}")
        k(f"v_lshl_add_u32 v{vs}, v{g}, 28, v{vs}\nv_add_u32 v{vs}, s{st}, v{vs}")
    vw = k.v(); vrd = k.v()
    k(f"s_lshl_b32 s{st}, s{sw}, 12\ns_add_u32 s{st}, s{st}, {R*SLOT}\nv_add_u32 v{vw}, s{st}, v{vT}")
    k(f"s_xor_b32 s{st}, s{sw}, 4\ns_lshl_b32 s{st}, s{st}, 12\ns_add_u32 s{st}, s{st}, {R*SLOT}\nv_add_u32 v{vrd}, s{st}, v{vT}")
    karg(k)
    k.srd(S_w, k.P + wptr, KTOT * 2048); k.srd(S_ws, k.PWS, WS_SIZE)
    k.srd(S_x, k.P + (P_OUT if is_down else P_X), 4*MB)
    def res_load():
        if is_down:
            for i in range(2): k.vm(f"buffer_load_dwordx4 {vr(RES+4*i,4)}, v{vT}, {sr(S_ws,4)}, s{sh} offen offset:{1024*i}", "res")
        else:
            for i in range(2): k.vm(f"buffer_load_dwordx4 {vr(RES+4*i,4)}, v{vx}, {sr(S_x,4)}, 0 offen offset:{64*i}", "res")
    def wread(j, uu, t, b, tag, part):
        off = (j % R)*SLOT + uu*4096
        k.ds(f"ds_read_b64_tr_b16 {vr(Wb+4*b+2*part,2)}, {RB[t].at(off+HOFF*part)}", ("w", tag))
    def mfma(u, t, b, i):
        a = vr(Abuf + 4*((u % DA)*MT + i), 4); w = vr(Wb + 4*b, 4); d = vr(ACC + 16*i + 4*t, 4)
        k(f"{MF} {d}, {w}, {a}, {d if u > 0 else '0'}")
    order = [(u, t) for u in range(KSH) for t in range(NT)]
    pro = []
    for j in range(NPRO):
        pro += [("d", j, q) for q in range(2)] + [("a", KPS*j + uu, i) for uu in range(KPS) for i in range(MT)]
    nsl = len(order)
    def fill(i, s):
        if i == nsl - 6*NT: res_load()
    period = math.lcm(R, DA // math.gcd(DA, KPS), 2, (DW + 1) // math.gcd(DW + 1, KPS*NT))
    reps = mainloop16(k, order, MT, KPS, NST, R, DA, DW, 2, dma, aload, wread, mfma, name + "_L", pro, period, fill, lpm)
    for i in range(4): k.ds(f"ds_write_b128 v{vw}, {vr(ACC+16+4*i,4)} offset:{1024*i}")
    k.wait(vm="res")
    F = Abuf
    if not is_down:
        for p in range(2):
            k(f"v_permlane16_swap_b32 v{RES+4*p}, v{RES+4*p+2}\nv_permlane16_swap_b32 v{RES+4*p+1}, v{RES+4*p+3}")
    for e in range(8):
        k(f"v_lshlrev_b32 v{F+2*e}, 16, v{RES+e}\nv_and_b32 v{F+2*e+1}, 0xffff0000, v{RES+e}")
    for e in range(16): k(f"v_add_f32 v{ACC+e}, v{ACC+e}, v{F+e}")
    k.wait(lg="all"); k("s_barrier")
    for i in range(4): k.ds(f"ds_read_b128 {vr(ACC+16+4*i,4)}, v{vrd} offset:{1024*i}", i)
    SM = k.v(2, 2)
    for p in range(2):
        k.wait(lg=2*p+1)
        for e in range(8): k(f"v_add_f32 v{ACC+8*p+e}, v{ACC+8*p+e}, v{ACC+16+8*p+e}")
        o = Wb + 4*p
        for e in range(4): k(f"v_cvt_pk_bf16_f32 v{o+e}, v{ACC+8*p+2*e}, v{ACC+8*p+2*e+1}")
        if is_down:
            k(f"v_permlane16_swap_b32 v{o}, v{o+2}\nv_permlane16_swap_b32 v{o+1}, v{o+3}")
            k.vm(f"buffer_store_dwordx4 {vr(o,4)}, v{vx}, {sr(S_x,4)}, 0 offen offset:{64*p}")
        else:
            k.vm(f"buffer_store_dwordx4 {vr(o,4)}, v{vT}, {sr(S_ws,4)}, s{sh} offen offset:{1024*p}")
    if not is_down:
        k(f"v_add_f32 v{SM}, v{ACC}, v{ACC+1}\nv_mul_f32 v{SM+1}, v{ACC}, v{ACC}\nv_add_f32 v{t}, v{ACC+2}, v{ACC+3}\nv_mul_f32 v{t2}, v{ACC+1}, v{ACC+1}")
        for e in range(2, 16):
            k(f"v_fmac_f32 v{SM+1 if e % 2 == 0 else t2}, v{ACC+e}, v{ACC+e}")
            if e >= 4: k(f"v_add_f32 v{SM if e % 2 == 0 else t}, v{SM if e % 2 == 0 else t}, v{ACC+e}")
        k(f"v_add_f32 v{SM}, v{SM}, v{t}\nv_add_f32 v{SM+1}, v{SM+1}, v{t2}")
        k(f"v_mov_b32 v{t}, v{SM}\nv_mov_b32 v{t2}, v{SM+1}\nv_permlane16_swap_b32 v{SM}, v{t}\nv_permlane16_swap_b32 v{SM+1}, v{t2}\nv_add_f32 v{SM}, v{SM}, v{t}\nv_add_f32 v{SM+1}, v{SM+1}, v{t2}")
        k(f"v_mov_b32 v{t}, v{SM}\nv_mov_b32 v{t2}, v{SM+1}\nv_permlane32_swap_b32 v{SM}, v{t}\nv_permlane32_swap_b32 v{SM+1}, v{t2}\nv_add_f32 v{SM}, v{SM}, v{t}\nv_add_f32 v{SM+1}, v{SM+1}, v{t2}")
        k.vm(f"buffer_store_dwordx2 {vr(SM,2)}, v{vs}, {sr(S_ws,4)}, 0 offen")
    finish(k)
    return k

def gen_ffn1_16(name, R=5, DA=6, DW=4, TAIL=0, lpm=1, WIN=0, IL=0, PRIO=0, BAR2=0, SP=0, PRO=0, STS=6, GAP=1, URG=None, CAP=99):
    KPS, NST, NT, MT = 2, 16, 14, 2
    UPO = 14336
    SLOT = 28672
    CS = R * SLOT
    k = K(name, (256, 1, 1), (512, 1, 1), R * SLOT + 1024)
    start2(k, 256)
    lane, sw = k.lane, k.sw
    S_w = k.s(4); S_ws = k.s(4)
    smat = k.s(); swq = k.s(); snt = k.s(); sm16 = k.s(); st = k.s(); st2 = k.s(); sodd = k.s()
    k(f"s_lshr_b32 s{smat}, s{sw}, 2\ns_and_b32 s{swq}, s{sw}, 3")
    k(f"s_and_b32 s{snt}, s2, 7\ns_lshl_b32 s{snt}, s{snt}, 2\ns_bfe_u32 s{st}, s2, 0x20003\ns_add_u32 s{snt}, s{snt}, s{st}\ns_and_b32 s{sodd}, s{snt}, 1")
    k(f"s_lshr_b32 s{sm16}, s2, 5\ns_lshl_b32 s{sm16}, s{sm16}, 3\ns_add_u32 s{sm16}, s{sm16}, s{sw}\ns_lshl_b32 s{sm16}, s{sm16}, 1")
    vd = [k.v() for _ in range(4)]; q = k.v(); rr = k.v(); t = k.v(); sm = k.s(); sp = k.s()
    k(f"s_mov_b32 s{sm}, 4682\ns_mov_b32 s{sp}, 7168")
    k(f"s_mul_i32 s{st}, s{swq}, {16*7168}\ns_mul_i32 s{st2}, s{snt}, 224\ns_add_u32 s{st}, s{st}, s{st2}")
    for i in range(4):
        k(f"v_add_u32 v{q}, {64*i}, v{lane}\nv_mul_lo_u32 v{rr}, v{q}, s{sm}\nv_lshrrev_b32 v{rr}, 16, v{rr}")
        k(f"v_mul_u32_u24 v{t}, 14, v{rr}\nv_sub_u32 v{t}, v{q}, v{t}\nv_lshlrev_b32 v{t}, 4, v{t}\nv_mul_lo_u32 v{rr}, v{rr}, s{sp}\nv_add3_u32 v{vd[i]}, v{rr}, v{t}, s{st}")
    sW = k.s(); sL = k.s()
    k(f"s_mov_b32 s{sW}, 0\ns_mul_i32 s{sL}, s{smat}, {UPO}\ns_mul_i32 s{st}, s{swq}, 3584\ns_add_u32 s{sL}, s{sL}, s{st}")
    def dma(j, i):
        k(f"s_add_u32 m0, s{sL}, {(j % R)*SLOT + i*1024}")
        if i == 3: k("s_mov_b32 exec_hi, 0")
        k.vm(f"buffer_load_dwordx4 v{vd[i]}, {sr(S_w,4)}, s{sW} offen lds", ("dma", j))
        if i == 3: k(f"s_mov_b32 exec_hi, -1\ns_add_u32 s{sW}, s{sW}, {64*7168}")
    vA = [k.v(), k.v()]; vT = k.v()
    k(f"v_lshlrev_b32 v{vT}, 4, v{lane}\ns_lshl_b32 s{st}, s{sm16}, 15\nv_add_u32 v{vA[0]}, s{st}, v{vT}\nv_add_u32 v{vA[1]}, 32768, v{vA[0]}")
    Abuf = k.v(4*MT*DA, 4)
    aload = a_loader16(k, S_ws, vA, Abuf, MT, DA, WS_H)
    g, r, cc = lane_parts(k)
    a1 = k.v(); a2 = k.v(); c1 = k.v(); c2 = k.v()
    k(f"v_lshl_add_u32 v{a2}, v{g}, 2, v{r}\nv_mul_u32_u24 v{a2}, 224, v{a2}\nv_lshl_add_u32 v{a2}, v{cc}, 3, v{a2}")
    k(f"s_lshl_b32 s{st}, s{sodd}, 5\nv_add_u32 v{a1}, s{st}, v{a2}\ns_mul_i32 s{st}, s{sodd}, 192\ns_sub_u32 s{st}, 192, s{st}\nv_add_u32 v{a2}, s{st}, v{a2}")
    k(f"s_lshl_b32 s{st}, s{st}, 1\ns_add_u32 s{st}, s{st}, {CS}\nv_lshl_add_u32 v{c2}, v{g}, 4, s{st}\ns_lshl_b32 s{st}, s{sodd}, 6\ns_add_u32 s{st}, s{st}, {CS}\nv_lshl_add_u32 v{c1}, v{g}, 4, s{st}")
    B1 = LdsBases(k, a1, R*SLOT - 1); B2 = LdsBases(k, a2, R*SLOT - 1)
    vs = k.v(); ss = k.s(); vc = k.v()
    k(f"v_and_b32 v{vs}, 15, v{lane}\nv_lshlrev_b32 v{vs}, 7, v{vs}\nv_lshl_add_u32 v{vs}, v{g}, 5, v{vs}\ns_lshl_b32 s{ss}, s{sm16}, 11\ns_add_u32 s{ss}, s{ss}, {WS_ST}")
    k(f"v_cmp_le_u32 vcc, 28, v{lane}\nv_mov_b32 v{t}, {3584*4 - 448}\nv_cndmask_b32 v{vc}, 0, v{t}, vcc\nv_add_u32 v{vc}, v{vc}, v{vT}")
    k(f"v_cmp_le_u32 vcc, 56, v{lane}\nv_mov_b32 v{t}, 0x10000000\nv_cndmask_b32 v{vc}, v{vc}, v{t}, vcc")
    sc = k.s(); k(f"s_mul_i32 s{sc}, s{snt}, 448\ns_add_u32 s{sc}, s{sc}, {WS_CS}")
    so = k.s(); so6 = k.s(); v6 = k.v()
    k(f"s_mul_i32 s{so}, s{sm16}, 112\ns_lshr_b32 s{st}, s{snt}, 1\ns_mul_i32 s{st}, s{st}, 7\ns_add_u32 s{so}, s{so}, s{st}\ns_add_u32 s{so6}, s{so}, 3\ns_lshl_b32 s{st}, s{sodd}, 2\ns_add_u32 s{so}, s{so}, s{st}")
    k(f"s_lshl_b32 s{so}, s{so}, 10\ns_add_u32 s{so}, s{so}, {WS_ACT}\ns_lshl_b32 s{so6}, s{so6}, 10\ns_add_u32 s{so6}, s{so6}, {WS_ACT}")
    vO1 = k.v(); v61 = k.v()
    k(f"s_lshl_b32 s{st}, s{sodd}, 3\nv_add_u32 v{v6}, s{st}, v{vT}\nv_add_u32 v{vO1}, {112*1024}, v{vT}\nv_add_u32 v{v61}, {112*1024}, v{v6}")
    Wb = k.v(4*(DW+1), 4)
    ACC = k.v(112, 4)
    STT = k.v(16, 4)
    NM = k.v(2, 2); VAR = k.v(2, 2); CE = k.v(2, 2)
    OUT = k.v(8, 4)
    karg(k)
    k(f"s_cmp_eq_u32 s{smat}, 0\ns_cselect_b32 s{S_w}, s{k.P+P_WG}, s{k.P+P_WU}\ns_cselect_b32 s{S_w+1}, s{k.P+P_WG+1}, s{k.P+P_WU+1}\ns_mov_b32 s{S_w+2}, {7*MB}\ns_mov_b32 s{S_w+3}, 0x20000")
    k.srd(S_ws, k.PWS, WS_SIZE)
    def stl(i, hh):
        k.vm(f"buffer_load_dwordx4 {vr(STT+8*i+4*hh,4)}, v{vs}, {sr(S_ws,4)}, s{ss} offen offset:{2048*i+16*hh}", "st")
    def csl():
        k(f"s_mov_b32 m0, {CS}")
        k.vm(f"buffer_load_dwordx4 v{vc}, {sr(S_ws,4)}, s{sc} offen lds", ("dma", 2 if PRO else 1))
    def mid():
        for i in range(2):
            for hh in range(2): stl(i, hh)
        csl()
    def wread(j, uu, t, b, tag, part):
        p, mat = divmod(t, 2)
        off = (j % R)*SLOT + uu*7168 + mat*UPO + (32*p if p < 6 else 0)
        B = B1 if p < 6 else B2
        k.ds(f"ds_read_b64_tr_b16 {vr(Wb+4*b+2*part,2)}, {B.at(off+3584*part)}", ("w", tag))
    def mfma(u, t, b, i):
        a = vr(Abuf + 4*((u % DA)*MT + i), 4); w = vr(Wb + 4*b, 4); d = vr(ACC + 8*t + 4*i, 4)
        k(f"{MF} {d}, {w}, {a}, {d if u > 0 else '0'}")
    KS = KPS * NST
    order = [(u, t) for u in range(KS - TAIL) for t in range(NT)]
    if TAIL:
        for p in range(7):
            for u in range(KS - TAIL, KS):
                order += [(u, 2*p), (u, 2*p+1)]
    fills = {}
    def at(i, f): fills.setdefault(i, []).append(f)
    def spread(i0, lines, per):
        for n, l in enumerate(lines):
            at(i0 + n // per, l if callable(l) else (lambda l=l: k(l)))
        return i0 + (len(lines) + per - 1) // per
    L = [lambda: k.wait(vm="st")]
    for i in range(2):
        S = STT + 8*i
        L += [f"v_add_f32 v{S}, v{S}, v{S+2}", f"v_add_f32 v{S+1}, v{S+1}, v{S+3}", f"v_add_f32 v{S+4}, v{S+4}, v{S+6}", f"v_add_f32 v{S+5}, v{S+5}, v{S+7}",
              f"v_add_f32 v{S}, v{S}, v{S+4}", f"v_add_f32 v{S+1}, v{S+1}, v{S+5}"]
    for sw_ in ("v_permlane16_swap_b32", "v_permlane32_swap_b32"):
        regs = [STT, STT+1, STT+8, STT+9]
        L += [f"v_mov_b32 v{x+2}, v{x}" for x in regs]
        L += [f"{sw_} v{x}, v{x+2}" for x in regs]
        L += [f"v_add_f32 v{x}, v{x}, v{x+2}" for x in regs]
    for i in range(2):
        S = STT + 8*i
        L += [f"v_mul_f32 v{NM+i}, {f32(-1/1024)}, v{S}", f"v_mul_f32 v{VAR+i}, {f32(1/1024)}, v{S+1}"]
    for i in range(2): L += [f"v_fma_f32 v{VAR+i}, -v{NM+i}, v{NM+i}, v{VAR+i}"]
    for i in range(2): L += [f"v_max_f32 v{VAR+i}, 0, v{VAR+i}"]
    for i in range(2): L += [f"v_add_f32 v{VAR+i}, {f32(1e-5)}, v{VAR+i}"]
    for i in range(2): L += [f"v_rsq_f32 v{CE+i}, v{VAR+i}"]
    for i in range(2): L += [f"v_mul_f32 v{CE+i}, {f32(-math.log2(math.e))}, v{CE+i}"]
    e = spread(STS, L, 2)
    i0 = (4 if PRO else 2)*NT + DW + 2
    i0 = max(i0, e + 3)
    for t_ in range(NT):
        p, mat = divmod(t_, 2)
        b = i0 + 4*t_
        while any(min((order[b+d][1] - t_) % NT, (t_ - order[b+d][1]) % NT) < 3 for d in range(1, 5)): b += 1
        Q = STT + 4*(t_ % 4)
        at(b - 3, lambda Q=Q, p=p, mat=mat, t_=t_: k.ds(f"ds_read_b128 {vr(Q,4)}, v{c1 if p < 6 else c2} offset:{448*mat + (64*p if p < 6 else 0)}", ("cs", t_)))
        Lc = [lambda t_=t_: k.wait(lg=("cs", t_))]
        Lf = [f"v_fmac_f32 v{ACC+8*t_+4*i+e}, v{NM+i}, v{Q+e}" for i in range(2) for e in range(4)]
        at(b + 1, Lc[0]); spread(b + 1, Lf, 2)
        i0 = b - 4*t_
    def epi(p):
        Gs = [ACC + 16*p + e for e in range(8)]; Us = [ACC + 16*p + 8 + e for e in range(8)]
        E = STT
        L = [f"v_mul_f32 v{E+e}, v{CE + e//4}, v{Gs[e]}" for e in range(8)]
        L += [f"v_exp_f32 v{E+e}, v{E+e}" for e in range(8)]
        L += [f"v_mul_f32 v{Gs[e]}, v{Gs[e]}, v{Us[e]}" for e in range(8)]
        L += [f"v_fma_f32 v{E+e}, v{E+e}, v{VAR + e//4}, v{VAR + e//4}" for e in range(8)]
        L += [f"v_rcp_f32 v{E+e}, v{E+e}" for e in range(8)]
        L += [f"v_mul_f32 v{Gs[e]}, v{Gs[e]}, v{E+e}" for e in range(8)]
        for i in range(2):
            o = OUT + 4*i + 2*(p % 2)
            L += [f"v_cvt_pk_bf16_f32 v{o}, v{Gs[4*i]}, v{Gs[4*i+1]}", f"v_cvt_pk_bf16_f32 v{o+1}, v{Gs[4*i+2]}, v{Gs[4*i+3]}"]
        if p == 6:
            for i in range(2): L += [lambda i=i: k.vm(f"buffer_store_dwordx2 {vr(OUT+4*i,2)}, v{v61 if i else v6}, {sr(S_ws,4)}, s{so6} offen")]
        elif p % 2:
            for i in range(2): L += [lambda i=i: k.vm(f"buffer_store_dwordx4 {vr(OUT+4*i,4)}, v{vO1 if i else vT}, {sr(S_ws,4)}, s{so} offen offset:{1024*(p//2)}")]
        return L
    if TAIL:
        b0 = (KS - TAIL) * NT
        for p in range(6):
            L = epi(p)
            per = -(-len(L) // (2*TAIL - 1))
            spread(b0 + (p + 1)*2*TAIL + 1, L, per)
    used = set()
    def fill(i, s):
        used.add(i)
        for f in fills.get(i, []): f()
    pro = [("d", 0, q) for q in range(4)] + [("a", 0, 0), ("a", 0, 1), ("a", 1, 0), ("a", 1, 1)]
    extra = []
    if PRO:
        D = lambda j: [("d", j, q) for q in range(4)]
        A_ = lambda u: [("a", u, 0), ("a", u, 1)]
        pro = {1: D(0) + A_(0) + ["bar"] + A_(1) + D(1) + A_(2),
               2: D(0) + A_(0) + ["bar"] + A_(1) + D(1),
               3: D(0) + A_(0) + A_(1) + D(1),
               4: D(0) + A_(0) + ["bar"] + A_(1) + D(1) + A_(2) + A_(3),
               5: D(0) + A_(0) + A_(1),
               6: D(0) + A_(0) + ["warm"] + A_(1) + D(1),
               7: D(0) + A_(0) + ["warm", "bar"] + A_(1) + D(1),
               8: D(0) + A_(0) + ["warm"] + A_(1) + D(1) + A_(2)}[PRO]
        mid = None
        extra = [(STS - 1, lambda i=i, hh=hh: stl(i, hh)) for i in range(2) for hh in range(2)] + [(2*NT*2 - DW - 1, csl)]
    period = math.lcm(R, DA // math.gcd(DA, KPS), 2, (DW + 1) // math.gcd(DW + 1, KPS*NT))
    bars = None
    if BAR2: bars = {0, 1} | set(range(2, NST, 2)); period = period // 2 if period % 2 == 0 else period
    args = (k, order, MT, KPS, NST, R, DA, DW, 4, dma, aload, wread, mfma)
    mainloop16(*args, name + "_L", pro, period, mid=mid, do_pro="only", bars=bars, extra=extra)
    def body(ph):
        if SP and ph == SP - 1: k("s_setprio 1")
        mainloop16(*args, name + f"_L{ph}", pro, period, fill, lpm, do_pro=False, win=mkwin(WIN, ph), il=IL, prio=PRIO, bars=bars, extra=extra, gap=GAP, urg=URG, cap=CAP)
        assert G.XF or not (set(fills) - used)
        for p in range(6 if TAIL else 0, 7):
            for l in epi(p): l() if callable(l) else k(l)
    dual(k, body, WIN or SP)
    return k
```

```python
import sys, math
from asmlib import *

NAME = "sequential_preLN__mha_block__swiglu_ffn__prompt"
MB = 1 << 20
WS_XN, WS_Q, WS_KV, WS_O, WS_H, WS_HN, WS_ACT = 0, 4*MB, 8*MB, 16*MB, 20*MB, 24*MB, 28*MB
WS_SIZE = 64*MB
P_X, P_WQKV, P_WO, P_BX, P_WG, P_WU, P_WD, P_OUT = 0, 2, 4, 6, 8, 10, 12, 14
def f32(x):
    import struct
    return "0x%08x" % struct.unpack("<I", struct.pack("<f", x))[0]

def start(k, nwg):
    k(f"s_cmp_ge_u32 s2, {nwg}\ns_cbranch_scc1 {k.name}_END")
    P = k.s(16, 4); P2 = k.s(4, 4)
    k(f"s_load_dwordx16 {sr(P,16)}, s[0:1], 0\ns_load_dwordx4 {sr(P2,4)}, s[0:1], 64")
    lane = k.v(); sw = k.s()
    k(f"v_lshrrev_b32 v{lane}, 6, v0")
    k(f"v_readfirstlane_b32 s{sw}, v{lane}")
    k(f"v_and_b32 v{lane}, 63, v0")
    k.P = P; k.PWS = P2 + 2; k.lane = lane; k.sw = sw
    tstart(k)
    k("s_waitcnt lgkmcnt(0)")
    if STK: stamp(k)
TIMING = False
PF = True
STK = True
APRIO = 0
ASCHED = 1
V2 = 1
NOLOOP = 0
XF = 0
XI = 0
XS = 0
TL = 0
WARM = 1
XK = ['ffn1', 'ffn2', 'wo', 'qkv']
WS_TIM = 60*MB
KIDX = [0]
NKERN = 7
def tstart(k):
    k.nst = 0; k.tli = 0
    if not TIMING: return
    k.T = k.s(16, 4); k.kidx = KIDX[0]; KIDX[0] += 1
    k(f"s_memtime {sr(k.T,2)}\ns_memrealtime {sr(k.T+2,2)}")
    if TL:
        k.TLs = k.s(2, 2); k.TLi = k.s(); k.TLv = k.v()
        k(f"s_mov_b32 s{k.TLi}, 0\ns_mov_b32 s{k.TLs}, 0\nv_mov_b32 v{k.TLv}, 0")
def tl(k):
    if not (TIMING and TL): return
    k(f"v_writelane_b32 v{k.TLv}, s{k.TLs}, {min(k.tli, 63)}\ns_memtime {sr(k.TLs,2)}"); k.tli += 1
    k.lgq.append("stamp")
def stamp(k):
    if TIMING != 1: return
    k(f"s_memtime {sr(k.T+8+2*k.nst,2)}"); k.nst += 1
    assert k.nst <= 4
    k.lgq.append("stamp")
def tend(k):
    if not TIMING: return
    if TIMING == 2: return dbg_end(k)
    T = k.T
    if not hasattr(k, "TV"): k.TV = k.v(8, 4); k.TA = k.v(); k.TS = k.s(4, 4)
    k(f"s_waitcnt vmcnt(0)\ns_memtime {sr(T+4,2)}\ns_memrealtime {sr(T+6,2)}\ns_waitcnt lgkmcnt(0)")
    k.srd(k.TS, k.PWS, WS_SIZE)
    k(f"v_mov_b32 v{k.TV}, s{T}\nv_mov_b32 v{k.TV+1}, s{T+4}\nv_mov_b32 v{k.TV+2}, s{T+2}\nv_mov_b32 v{k.TV+3}, s{T+6}")
    for i in range(4): k(f"v_mov_b32 v{k.TV+4+i}, s{T+8+2*i if i < k.nst else T}")
    k(f"s_lshl_b32 s{T}, s2, 3\ns_add_u32 s{T}, s{T}, s{k.sw}\ns_lshl_b32 s{T}, s{T}, 5\ns_add_u32 s{T}, s{T}, {WS_TIM + k.kidx*256*8*32}")
    if TL:
        k(f"v_writelane_b32 v{k.TLv}, s{k.TLs}, {min(k.tli, 63)}\ns_sub_u32 s{T+1}, s{T}, {WS_TIM}\ns_lshl_b32 s{T+1}, s{T+1}, 3\ns_add_u32 s{T+1}, s{T+1}, {61*MB}\nv_lshlrev_b32 v{k.TA}, 2, v{k.lane}")
        k(f"buffer_store_dword v{k.TLv}, v{k.TA}, {sr(k.TS,4)}, s{T+1} offen")
    k(f"v_mov_b32 v{k.TA}, 0\nbuffer_store_dwordx4 {vr(k.TV,4)}, v{k.TA}, {sr(k.TS,4)}, s{T} offen\nbuffer_store_dwordx4 {vr(k.TV+4,4)}, v{k.TA}, {sr(k.TS,4)}, s{T} offen offset:16")
def dbg_end(k):
    T = k.T
    if not hasattr(k, "TV"): k.TV = k.v(4, 4); k.TA = k.v(); k.TS = k.s(4, 4)
    lab = f"{k.name}_DBG{k.uid}"; k.uid += 1
    k(f"s_waitcnt vmcnt(0)\ns_memrealtime {sr(T+6,2)}\ns_and_b32 s{T}, s2, 15\ns_or_b32 s{T}, s{T}, s{k.sw}\ns_cmp_lg_u32 s{T}, 0\ns_cbranch_scc1 {lab}")
    k(f"s_add_u32 s{k.TS}, s{k.PWS-2}, {512*(NKERN-1-k.kidx)}\ns_addc_u32 s{k.TS+1}, s{k.PWS-1}, 0\ns_mov_b32 s{k.TS+2}, 256\ns_mov_b32 s{k.TS+3}, 0x20000\ns_waitcnt lgkmcnt(0)")
    k(f"s_not_b32 s{T+2}, s{T+2}\nv_mov_b32 v{k.TV}, s{T+2}\nv_mov_b32 v{k.TV+1}, s{T+6}\nv_mov_b32 v{k.TA}, {8*k.kidx}\ns_mov_b64 exec, 1")
    k(f"buffer_atomic_umax v{k.TV}, v{k.TA}, {sr(k.TS,4)}, 0 offen\nbuffer_atomic_umax v{k.TV+1}, v{k.TA}, {sr(k.TS,4)}, 0 offen offset:4")
    k.label(lab)
def finish(k, endt=True):
    if endt: tend(k)
    k.label(f"{k.name}_END")
    k("s_endpgm")

def gen_ln(name, in_T, src_off, dst_off):
    k = K(name, (256, 1, 1), (256, 1, 1), 1024)
    start(k, 256)
    lane, sw = k.lane, k.sw
    S_in = k.s(4); S_ws = k.s(4)
    k.srd(S_ws, k.PWS, WS_SIZE)
    if not in_T: k.srd(S_in, k.P + P_X, 4*MB)
    row = k.v(); c = k.v(); vo = k.v(); vi = k.v(); t = k.v(); t2 = k.v()
    sa = k.s(); sb = k.s(); so = [k.s() for _ in range(4)]; si = [k.s() for _ in range(4)]
    k(f"v_lshrrev_b32 v{row}, 3, v{lane}\nv_and_b32 v{c}, 7, v{lane}")
    k(f"s_lshr_b32 s{sa}, s2, 2\ns_lshl_b32 s{sa}, s{sa}, 16\ns_lshl_b32 s{sb}, s{sw}, 14\ns_add_u32 s{sa}, s{sa}, s{sb}")
    k(f"s_and_b32 s{sb}, s2, 3\ns_lshl_b32 s{sb}, s{sb}, 7\ns_add_u32 s{sa}, s{sa}, s{sb}")
    k(f"v_lshrrev_b32 v{t}, 1, v{c}\nv_lshlrev_b32 v{t}, 10, v{t}\nv_and_b32 v{t2}, 1, v{c}\nv_lshlrev_b32 v{t2}, 9, v{t2}")
    k(f"v_add_u32 v{vo}, v{t}, v{t2}\nv_lshlrev_b32 v{t}, 4, v{row}\nv_add_u32 v{vo}, v{vo}, v{t}\nv_add_u32 v{vo}, s{sa}, v{vo}")
    X = k.v(16, 4); F = k.v(32, 4)
    for i in range(4):
        k(f"s_mov_b32 s{so[i]}, {dst_off + 4096*i}")
    if in_T:
        for i in range(4):
            k(f"s_mov_b32 s{si[i]}, {src_off + 4096*i}")
        for i in range(4):
            k.vm(f"buffer_load_dwordx4 {vr(X+4*i,4)}, v{vo}, {sr(S_ws,4)}, s{si[i]} offen", i)
    else:
        k(f"s_lshl_b32 s{sa}, s2, 14\ns_lshl_b32 s{sb}, s{sw}, 9\ns_add_u32 s{sa}, s{sa}, s{sb}")
        k(f"v_lshlrev_b32 v{vi}, 11, v{row}\nv_lshlrev_b32 v{t}, 4, v{c}\nv_add_u32 v{vi}, v{vi}, v{t}\nv_add_u32 v{vi}, s{sa}, v{vi}")
        for i in range(4):
            k.vm(f"buffer_load_dwordx4 {vr(X+4*i,4)}, v{vi}, {sr(S_in,4)}, 0 offen offset:{128*i}", i)
        if PF:
            S_pf = k.s(4); k.srd(S_pf, k.P + P_WQKV, 6*MB); vp = k.v(); D = k.v(4, 4); sp = k.s()
            k(f"s_lshl_b32 s{sp}, s2, 12\nv_lshlrev_b32 v{vp}, 4, v0\nv_add_u32 v{vp}, s{sp}, v{vp}")
            for i in range(6):
                k(f"s_mov_b32 s{sp}, {i*MB}")
                k.vm(f"buffer_load_dwordx4 {vr(D,4)}, v{vp}, {sr(S_pf,4)}, s{sp} offen", "pf")
    sm = k.v(); m2 = k.v()
    for i in range(4):
        k.wait(vm=i)
        for j in range(4):
            r = 4*i + j
            k(f"v_lshlrev_b32 v{F+2*r}, 16, v{X+r}\nv_and_b32 v{F+2*r+1}, 0xffff0000, v{X+r}")
        for j in range(8):
            e = F + 8*i + j
            if i == 0 and j == 0: continue
            if i == 0 and j == 1: k(f"v_add_f32 v{sm}, v{F}, v{F+1}")
            elif j % 2 == 0: k(f"v_add_f32 v{sm}, v{sm}, v{e}")
            else:
                if i == 0 and j == 3: k(f"v_mov_b32 v{m2}, v{e}")
                else: k(f"v_add_f32 v{m2}, v{m2}, v{e}")
    k(f"v_add_f32 v{sm}, v{sm}, v{m2}")
    def red8(r):
        k(f"v_add_f32_dpp v{r}, v{r}, v{r} quad_perm:[1,0,3,2] row_mask:0xf bank_mask:0xf")
        k(f"v_add_f32_dpp v{r}, v{r}, v{r} quad_perm:[2,3,0,1] row_mask:0xf bank_mask:0xf")
        k(f"v_add_f32_dpp v{r}, v{r}, v{r} row_half_mirror row_mask:0xf bank_mask:0xf")
    red8(sm)
    pr = k.v(2, 2)
    k(f"v_mul_f32 v{pr}, {f32(1/256)}, v{sm}")
    for e in range(32): k(f"v_sub_f32 v{F+e}, v{F+e}, v{pr}")
    k(f"v_mul_f32 v{pr+1}, v{F}, v{F}\nv_mul_f32 v{m2}, v{F+1}, v{F+1}")
    for e in range(2, 32):
        k(f"v_fmac_f32 v{pr+1 if e%2==0 else m2}, v{F+e}, v{F+e}")
    k(f"v_add_f32 v{pr+1}, v{pr+1}, v{m2}")
    red8(pr+1)
    k(f"v_lshlrev_b32 v{t}, 5, v{row}\ns_lshl_b32 s{sb}, s{sw}, 3\nv_add_u32 v{t2}, s{sb}, v{t}")
    k.ds(f"ds_write_b64 v{t2}, {vr(pr,2)}")
    k.wait(lg="all"); k("s_barrier")
    Q = X
    k.ds(f"ds_read_b128 {vr(Q,4)}, v{t}"); k.ds(f"ds_read_b128 {vr(Q+4,4)}, v{t} offset:16")
    k.wait(lg="all")
    mean = k.v(); var = k.v()
    k(f"v_add_f32 v{mean}, v{Q}, v{Q+2}\nv_add_f32 v{t}, v{Q+4}, v{Q+6}\nv_add_f32 v{mean}, v{mean}, v{t}\nv_mul_f32 v{mean}, 0.25, v{mean}".replace("0.25", f32(0.25)))
    k(f"v_add_f32 v{var}, v{Q+1}, v{Q+3}\nv_add_f32 v{t}, v{Q+5}, v{Q+7}\nv_add_f32 v{var}, v{var}, v{t}")
    k(f"v_mov_b32 v{t2}, 0")
    for j in range(4):
        k(f"v_sub_f32 v{t}, v{Q+2*j}, v{mean}\nv_fmac_f32 v{t2}, v{t}, v{t}")
    k(f"v_mul_f32 v{t2}, {f32(256.0)}, v{t2}\nv_add_f32 v{var}, v{var}, v{t2}")
    k(f"v_mul_f32 v{var}, {f32(1/1024)}, v{var}\nv_add_f32 v{var}, {f32(1e-5)}, v{var}\nv_rsq_f32 v{var}, v{var}")
    k(f"v_sub_f32 v{t}, v{pr}, v{mean}\nv_mul_f32 v{t}, v{t}, v{var}")
    for i in range(4):
        for j in range(8):
            e = F + 8*i + j
            k(f"v_fma_f32 v{e}, v{e}, v{var}, v{t}")
        for j in range(4):
            k(f"v_cvt_pk_bf16_f32 v{X+4*i+j}, v{F+8*i+2*j}, v{F+8*i+2*j+1}")
        k.vm(f"buffer_store_dwordx4 {vr(X+4*i,4)}, v{vo}, {sr(S_ws,4)}, s{so[i]} offen")
    finish(k)
    return k

def mainloop(k, NT, KPS, NST, R, DA, DW, ndma, dma, aload, wread, mfma, lname, mid=None):
    NB = DW + 1
    KS = KPS * NST
    nslots = KS * NT
    scnt = k.s()
    au = 0
    for j in range(min(R, NST)):
        for i in range(ndma): dma(j, i)
        for _ in range(KPS):
            if au < min(DA, KS): aload(au); au += 1
    while au < min(DA, KS): aload(au); au += 1
    if mid: mid()
    stamp(k)
    k.wait(vm=("dma", 0)); k("s_barrier")
    stamp(k)
    for i in range(min(DW, nslots)):
        u, t = divmod(i, NT); wread(u // KPS, u % KPS, t, i % NB, i)
    blocks = []; base = len(k.L); starts = [base]
    pend = []
    for i in range(nslots):
        u, t = divmod(i, NT)
        n = i + DW
        if n < nslots:
            un, tn = divmod(n, NT)
            if tn == 0 and un % KPS == 0:
                j = un // KPS
                starts.append(len(k.L))
                k.wait(vm=("dma", j)); k("s_barrier")
                if j >= 2 and j - 2 + R < NST:
                    pend += [(j - 2 + R, q) for q in range(ndma)]
            wread(un // KPS, un % KPS, tn, n % NB, n)
        k.wait(vm=("a", u) if t == 0 else None, lg=("w", i))
        mfma(u, t, i % NB)
        if t == NT - 1 and u + DA < KS: aload(u + DA)
        elif pend: dma(*pend.pop(0))
    assert not pend
    starts.append(len(k.L))
    blocks = [k.L[starts[i]:starts[i+1]] for i in range(len(starts) - 1)]
    del k.L[base:]
    period = R * KPS * NT
    period = math.lcm(R * KPS * NT, DA * NT, NB, 4 * NT) // (KPS * NT)
    reps = compress_loop(k, blocks, period, scnt, lname)
    stamp(k)
    return reps

class LdsBases:
    def __init__(self, k, base, maxoff):
        self.regs = [base]
        for w in range(1, maxoff // 65536 + 1):
            r = k.v(); k(f"v_add_u32 v{r}, {65536*w}, v{base}"); self.regs.append(r)
    def at(self, off):
        return f"v{self.regs[off // 65536]} offset:{off % 65536}"

def a_loader(k, S_ws, vA, Abuf, DA, base_off):
    sA = k.s()
    k(f"s_mov_b32 s{sA}, {base_off}")
    def aload(u):
        k.vm(f"buffer_load_dwordx4 {vr(Abuf + 4*(u % DA), 4)}, v{vA}, {sr(S_ws,4)}, s{sA} offen offset:{1024*(u%4)}", ("a", u))
        if u % 4 == 3: k(f"s_add_u32 s{sA}, s{sA}, 4096")
    return aload

def tr_lane_parts(k):
    lane = k.lane
    h = k.v(); g1 = k.v(); r = k.v(); cc = k.v()
    k(f"v_lshrrev_b32 v{h}, 5, v{lane}\nv_bfe_u32 v{g1}, v{lane}, 4, 1\nv_bfe_u32 v{r}, v{lane}, 2, 2\nv_and_b32 v{cc}, 3, v{lane}")
    return h, g1, r, cc

def tr_addr128(k, hrows, skh_bytes, spar):
    h, g1, r, cc = tr_lane_parts(k)
    a = k.v(); b = k.v(); t = k.v()
    k(f"v_mul_u32_u24 v{a}, {hrows}, v{h}\nv_add_u32 v{a}, v{a}, v{r}\nv_lshlrev_b32 v{a}, 7, v{a}")
    k(f"v_lshlrev_b32 v{t}, 5, v{g1}\nv_add_u32 v{a}, v{a}, v{t}")
    k(f"v_lshlrev_b32 v{t}, 3, v{cc}\nv_add_u32 v{a}, v{a}, v{t}")
    k(f"v_lshrrev_b32 v{t}, 1, v{r}\nv_lshlrev_b32 v{t}, 6, v{t}\nv_add_u32 v{a}, v{a}, v{t}")
    k(f"v_xor_b32 v{a}, s{spar}, v{a}\nv_add_u32 v{a}, s{skh_bytes}, v{a}\nv_xor_b32 v{b}, 64, v{a}")
    return a, b

def dma_voff128(k, pitch):
    lane = k.lane
    a = k.v(); t = k.v(); t2 = k.v(); sp = k.s()
    k(f"s_mov_b32 s{sp}, {pitch}")
    k(f"v_lshrrev_b32 v{t}, 3, v{lane}\nv_mul_lo_u32 v{a}, v{t}, s{sp}")
    k(f"v_and_b32 v{t}, 2, v{t}\nv_lshlrev_b32 v{t}, 1, v{t}\nv_and_b32 v{t2}, 7, v{lane}\nv_xor_b32 v{t}, v{t}, v{t2}\nv_lshlrev_b32 v{t}, 4, v{t}\nv_add_u32 v{a}, v{a}, v{t}")
    return a

def gen_qkv(name):
    R, KPS, NST, NT, DA, DW = 6, 2, 16, 6, 6, 3
    SLOT = 24576
    k = K(name, (256, 1, 1), (512, 1, 1), R * SLOT)
    start(k, 256)
    lane, sw = k.lane, k.sw
    S_w = k.s(4); S_ws = k.s(4)
    k.srd(S_w, k.P + P_WQKV, 6*MB); k.srd(S_ws, k.PWS, WS_SIZE)
    shp = k.s(); smt = k.s(); smbl = k.s(); skh = k.s(); smb = k.s(); st = k.s(); st2 = k.s()
    k(f"s_and_b32 s{shp}, s2, 7\ns_lshl_b32 s{shp}, s{shp}, 1\ns_bfe_u32 s{st}, s2, 0x10003\ns_add_u32 s{shp}, s{shp}, s{st}\ns_lshr_b32 s{smt}, s2, 4")
    k(f"s_and_b32 s{smbl}, s{sw}, 3\ns_lshr_b32 s{skh}, s{sw}, 2\ns_lshl_b32 s{smb}, s{smt}, 2\ns_add_u32 s{smb}, s{smb}, s{smbl}")
    vd = [dma_voff128(k, 6144), k.v(), k.v()]
    k(f"s_lshl_b32 s{st}, s{skh}, 9\ns_lshl_b32 s{st2}, s{smbl}, 3\ns_add_u32 s{st}, s{st}, s{st2}\ns_mul_i32 s{st}, s{st}, 6144\ns_lshl_b32 s{st2}, s{shp}, 7\ns_add_u32 s{st}, s{st}, s{st2}")
    k(f"v_add_u32 v{vd[0]}, s{st}, v{vd[0]}\nv_add_u32 v{vd[1]}, 2048, v{vd[0]}\nv_add_u32 v{vd[2]}, 4096, v{vd[0]}")
    sW = k.s(); sL = k.s()
    k(f"s_mov_b32 s{sW}, 0\ns_mul_i32 s{sL}, s{skh}, 12288\ns_lshl_b32 s{st}, s{smbl}, 10\ns_add_u32 s{sL}, s{sL}, s{st}")
    def dma(j, i):
        k(f"s_add_u32 m0, s{sL}, {(j % R)*SLOT + i*4096}")
        k.vm(f"buffer_load_dwordx4 v{vd[i]}, {sr(S_w,4)}, s{sW} offen lds", ("dma", j))
        if i == 2: k(f"s_add_u32 s{sW}, s{sW}, {32*6144}")
    vA = k.v()
    k(f"s_lshl_b32 s{st}, s{smb}, 16\ns_lshl_b32 s{st2}, s{skh}, 15\ns_add_u32 s{st}, s{st}, s{st2}\nv_lshlrev_b32 v{vA}, 4, v{lane}\nv_add_u32 v{vA}, s{st}, v{vA}")
    Abuf = k.v(4*DA, 4)
    aload = a_loader(k, S_ws, vA, Abuf, DA, WS_XN)
    skb = k.s(); spar = k.s()
    k(f"s_mul_i32 s{skb}, s{skh}, 12288\ns_lshl_b32 s{spar}, s{skh}, 6")
    ak, asend = tr_addr128(k, 8, skb, spar)
    BK = LdsBases(k, ak, R*SLOT - 1); BS = LdsBases(k, asend, R*SLOT - 1)
    Wb = k.v(4*(DW+1), 4)
    ACC = k.v(96, 4)
    def wread(j, uu, t, b, tag):
        B = BK if t < 3 else BS
        off = (j % R)*SLOT + (t % 3)*4096 + uu*2048
        k.ds(f"ds_read_b64_tr_b16 {vr(Wb+4*b,2)}, {B.at(off)}", ("w", tag))
        k.ds(f"ds_read_b64_tr_b16 {vr(Wb+4*b+2,2)}, {B.at(off+512)}", ("w", tag))
    def mfma(u, t, b):
        a = vr(Abuf + 4*(u % DA), 4); w = vr(Wb + 4*b, 4); d = vr(ACC + 16*t, 16)
        c = d if u > 0 else "0"
        if t % 3 == 2: k(f"v_mfma_f32_32x32x16_bf16 {d}, {a}, {w}, {c}")
        else: k(f"v_mfma_f32_32x32x16_bf16 {d}, {w}, {a}, {c}")
    mainloop(k, NT, KPS, NST, R, DA, DW, 3, dma, aload, wread, mfma, name + "_L")
    free = [(NST + i) % R for i in range(R - 2)]
    assert free == [4, 5, 0, 1]
    vw = k.v(); vrd = k.v()
    def region(dst, swv):
        k(f"s_mul_i32 s{dst}, s{swv}, 12288\ns_add_u32 s{dst}, s{dst}, {4*SLOT}\ns_cmp_ge_u32 s{dst}, {6*SLOT}\ns_cselect_b32 s{skb}, {6*SLOT}, 0\ns_sub_u32 s{dst}, s{dst}, s{skb}")
    region(st, sw)
    k(f"s_xor_b32 s{spar}, s{sw}, 4"); region(st2, spar)
    k(f"v_lshlrev_b32 v{vw}, 4, v{lane}\nv_add_u32 v{vrd}, s{st2}, v{vw}\nv_add_u32 v{vw}, s{st}, v{vw}")
    for i in range(12):
        k.ds(f"ds_write_b128 v{vw}, {vr(ACC+48+4*i,4)} offset:{1024*i}")
    k.wait(lg="all"); k("s_barrier")
    for i in range(12):
        k.ds(f"ds_read_b128 {vr(ACC+48+4*i,4)}, v{vrd} offset:{1024*i}", i)
    shd = k.s(); sq = k.s(); skv = k.s()
    k(f"s_lshl_b32 s{shd}, s{shp}, 1\ns_add_u32 s{shd}, s{shd}, s{skh}\ns_lshl_b32 s{shd}, s{shd}, 6\ns_add_u32 s{shd}, s{shd}, s{smb}")
    k(f"s_lshl_b32 s{sq}, s{shd}, 11\ns_add_u32 s{sq}, s{sq}, {WS_Q}\ns_lshl_b32 s{skv}, s{shd}, 12\ns_add_u32 s{skv}, s{skv}, {WS_KV}")
    k(f"v_lshlrev_b32 v{vw}, 4, v{lane}")
    sc = k.s(); k(f"s_mov_b32 s{sc}, {f32(32**-0.5 * math.log2(math.e))}")
    for tt in range(3):
        for hf in range(2):
            i0 = 16*tt + 8*hf
            k.wait(lg=i0//4 + 1)
            for e in range(8):
                k(f"v_add_f32 v{ACC+i0+e}, v{ACC+i0+e}, v{ACC+48+i0+e}")
            if tt == 0:
                for e in range(8): k(f"v_mul_f32 v{ACC+i0+e}, s{sc}, v{ACC+i0+e}")
            o = Wb + 4*((2*tt+hf) % (DW+1))
            for e in range(4):
                k(f"v_cvt_pk_bf16_f32 v{o+e}, v{ACC+i0+2*e}, v{ACC+i0+2*e+1}")
            if tt == 0: k.vm(f"buffer_store_dwordx4 {vr(o,4)}, v{vw}, {sr(S_ws,4)}, s{sq} offen offset:{1024*hf}")
            else: k.vm(f"buffer_store_dwordx4 {vr(o,4)}, v{vw}, {sr(S_ws,4)}, s{skv} offen offset:{2048*(tt-1)+1024*hf}")
    finish(k)
    return k

def gen_res(name, KTOT, wptr, a_off, is_down):
    R, KPS, NT, DA, DW = 4, 4, 2, 16, 3
    KSH = KTOT // 32
    NST = KSH // KPS
    SLOT = 16384
    k = K(name, (256, 1, 1), (512, 1, 1), R * SLOT + 32768)
    start(k, 256)
    lane, sw = k.lane, k.sw
    S_w = k.s(4); S_ws = k.s(4); S_x = k.s(4)
    k.srd(S_w, k.P + wptr, KTOT * 2048); k.srd(S_ws, k.PWS, WS_SIZE)
    k.srd(S_x, k.P + (P_OUT if is_down else P_X), 4*MB)
    smt = k.s(); snt = k.s(); smbl = k.s(); skh = k.s(); smb = k.s(); st = k.s(); st2 = k.s()
    k(f"s_and_b32 s{smt}, s2, 3\ns_lshl_b32 s{smt}, s{smt}, 2\ns_bfe_u32 s{st}, s2, 0x20003\ns_add_u32 s{smt}, s{smt}, s{st}")
    k(f"s_bfe_u32 s{snt}, s2, 0x10002\ns_lshl_b32 s{snt}, s{snt}, 3\ns_lshr_b32 s{st}, s2, 5\ns_add_u32 s{snt}, s{snt}, s{st}")
    k(f"s_and_b32 s{smbl}, s{sw}, 3\ns_lshr_b32 s{skh}, s{sw}, 2\ns_lshl_b32 s{smb}, s{smt}, 2\ns_add_u32 s{smb}, s{smb}, s{smbl}")
    vd = [dma_voff128(k, 2048), k.v()]
    k(f"s_mul_i32 s{st}, s{skh}, {KTOT//2}\ns_lshl_b32 s{st2}, s{smbl}, 4\ns_add_u32 s{st}, s{st}, s{st2}\ns_lshl_b32 s{st}, s{st}, 11\ns_lshl_b32 s{st2}, s{snt}, 7\ns_add_u32 s{st}, s{st}, s{st2}")
    k(f"v_add_u32 v{vd[0]}, s{st}, v{vd[0]}\nv_add_u32 v{vd[1]}, {8*2048}, v{vd[0]}")
    sW = k.s(); sL = k.s()
    k(f"s_mov_b32 s{sW}, 0\ns_lshl_b32 s{sL}, s{sw}, 11")
    def dma(j, i):
        k(f"s_add_u32 m0, s{sL}, {(j % R)*SLOT + i*1024}")
        k.vm(f"buffer_load_dwordx4 v{vd[i]}, {sr(S_w,4)}, s{sW} offen lds", ("dma", j))
        if i == 1: k(f"s_add_u32 s{sW}, s{sW}, {64*2048}")
    vA = k.v()
    k(f"s_mul_i32 s{st}, s{smb}, {KTOT//16*1024}\ns_mul_i32 s{st2}, s{skh}, {KSH*1024}\ns_add_u32 s{st}, s{st}, s{st2}\nv_lshlrev_b32 v{vA}, 4, v{lane}\nv_add_u32 v{vA}, s{st}, v{vA}")
    Abuf = k.v(4*DA, 4)
    aload = a_loader(k, S_ws, vA, Abuf, DA, a_off)
    skb = k.s(); spar = k.s()
    k(f"s_lshl_b32 s{skb}, s{skh}, 13\ns_lshl_b32 s{spar}, s{skh}, 6")
    ak, asend = tr_addr128(k, 4, skb, spar)
    Wb = k.v(4*(DW+1), 4)
    ACC = k.v(32, 4)
    RES = k.v(8, 4)
    vx = k.v(); vT = k.v(); sh = k.s(); t = k.v()
    k(f"s_lshl_b32 s{st}, s{smb}, 16\ns_lshl_b32 s{st2}, s{snt}, 7\ns_add_u32 s{st}, s{st}, s{st2}\ns_add_u32 s{st}, s{st}, s{spar}")
    k(f"v_and_b32 v{vx}, 31, v{lane}\nv_lshlrev_b32 v{vx}, 11, v{vx}\nv_lshrrev_b32 v{t}, 5, v{lane}\nv_lshlrev_b32 v{t}, {4 if is_down else 3}, v{t}\nv_add_u32 v{vx}, v{vx}, v{t}\nv_add_u32 v{vx}, s{st}, v{vx}")
    k(f"s_lshl_b32 s{sh}, s{smb}, 6\ns_lshl_b32 s{st2}, s{snt}, 2\ns_add_u32 s{sh}, s{sh}, s{st2}\ns_lshl_b32 s{st2}, s{skh}, 1\ns_add_u32 s{sh}, s{sh}, s{st2}\ns_lshl_b32 s{sh}, s{sh}, 10\ns_add_u32 s{sh}, s{sh}, {WS_H}")
    k(f"v_lshlrev_b32 v{vT}, 4, v{lane}")
    def mid():
        if is_down:
            for i in range(2): k.vm(f"buffer_load_dwordx4 {vr(RES+4*i,4)}, v{vT}, {sr(S_ws,4)}, s{sh} offen offset:{1024*i}", "res")
        else:
            for j in range(4): k.vm(f"buffer_load_dwordx2 {vr(RES+2*j,2)}, v{vx}, {sr(S_x,4)}, 0 offen offset:{16*j}", "res")
    def wread(j, uu, t, b, tag):
        B = ak if t == 0 else asend
        off = (j % R)*SLOT + uu*2048
        k.ds(f"ds_read_b64_tr_b16 {vr(Wb+4*b,2)}, v{B} offset:{off}", ("w", tag))
        k.ds(f"ds_read_b64_tr_b16 {vr(Wb+4*b+2,2)}, v{B} offset:{off+1024}", ("w", tag))
    def mfma(u, t, b):
        a = vr(Abuf + 4*(u % DA), 4); w = vr(Wb + 4*b, 4); d = vr(ACC + 16*t, 16)
        c = d if u > 0 else "0"
        k(f"v_mfma_f32_32x32x16_bf16 {d}, {w}, {a}, {c}")
    mainloop(k, NT, KPS, NST, R, DA, DW, 2, dma, aload, wread, mfma, name + "_L", mid)
    vw = k.v(); vrd = k.v()
    k(f"s_lshl_b32 s{st}, s{sw}, 12\ns_add_u32 s{st}, s{st}, {R*SLOT}\ns_xor_b32 s{st2}, s{st}, {4*4096}")
    assert (R*SLOT) % (8*4096) == 0
    k(f"v_add_u32 v{vw}, s{st}, v{vT}\nv_add_u32 v{vrd}, s{st2}, v{vT}")
    for i in range(4): k.ds(f"ds_write_b128 v{vw}, {vr(ACC+16+4*i,4)} offset:{1024*i}")
    k.wait(lg="all"); k("s_barrier")
    for i in range(4): k.ds(f"ds_read_b128 {vr(ACC+16+4*i,4)}, v{vrd} offset:{1024*i}", i)
    k.wait(vm="res")
    F = Abuf
    for e in range(8):
        k(f"v_lshlrev_b32 v{F+2*e}, 16, v{RES+e}\nv_and_b32 v{F+2*e+1}, 0xffff0000, v{RES+e}")
    for e in range(16): k(f"v_add_f32 v{ACC+e}, v{ACC+e}, v{F+e}")
    for hf in range(2):
        k.wait(lg=2*hf+1)
        for e in range(8): k(f"v_add_f32 v{ACC+8*hf+e}, v{ACC+8*hf+e}, v{ACC+16+8*hf+e}")
        o = Wb + 4*hf
        for e in range(4): k(f"v_cvt_pk_bf16_f32 v{o+e}, v{ACC+8*hf+2*e}, v{ACC+8*hf+2*e+1}")
        if is_down:
            k(f"v_permlane32_swap_b32 v{o}, v{o+2}\nv_permlane32_swap_b32 v{o+1}, v{o+3}")
            k.vm(f"buffer_store_dwordx4 {vr(o,4)}, v{vx}, {sr(S_x,4)}, 0 offen offset:{32*hf}")
        else:
            k.vm(f"buffer_store_dwordx4 {vr(o,4)}, v{vT}, {sr(S_ws,4)}, s{sh} offen offset:{1024*hf}")
    finish(k)
    return k

def gen_ffn1(name):
    R, KPS, NST, NT, DA, DW = 4, 4, 16, 7, 8, 3
    UPO = 14336 + 128
    SLOT = 28928
    k = K(name, (256, 1, 1), (512, 1, 1), R * SLOT)
    start(k, 256)
    lane, sw = k.lane, k.sw
    S_w = k.s(4); S_ws = k.s(4)
    smat = k.s(); swq = k.s(); snt = k.s(); smb = k.s(); st = k.s(); st2 = k.s()
    k(f"s_lshr_b32 s{smat}, s{sw}, 2\ns_and_b32 s{swq}, s{sw}, 3")
    k(f"s_cmp_eq_u32 s{smat}, 0\ns_cselect_b32 s{S_w}, s{k.P+P_WG}, s{k.P+P_WU}\ns_cselect_b32 s{S_w+1}, s{k.P+P_WG+1}, s{k.P+P_WU+1}\ns_mov_b32 s{S_w+2}, {7*MB}\ns_mov_b32 s{S_w+3}, 0x20000")
    k.srd(S_ws, k.PWS, WS_SIZE)
    k(f"s_and_b32 s{snt}, s2, 7\ns_lshl_b32 s{snt}, s{snt}, 2\ns_bfe_u32 s{st}, s2, 0x20003\ns_add_u32 s{snt}, s{snt}, s{st}")
    k(f"s_lshr_b32 s{smb}, s2, 5\ns_lshl_b32 s{smb}, s{smb}, 3\ns_add_u32 s{smb}, s{smb}, s{sw}")
    vd = [k.v() for _ in range(4)]; q = k.v(); rr = k.v(); t = k.v(); sm = k.s(); sp = k.s()
    k(f"s_mov_b32 s{sm}, 4682\ns_mov_b32 s{sp}, 7168")
    k(f"s_mul_i32 s{st}, s{swq}, {16*7168}\ns_mul_i32 s{st2}, s{snt}, 224\ns_add_u32 s{st}, s{st}, s{st2}")
    for i in range(4):
        k(f"v_add_u32 v{q}, {64*i}, v{lane}\nv_mul_lo_u32 v{rr}, v{q}, s{sm}\nv_lshrrev_b32 v{rr}, 16, v{rr}")
        k(f"v_mul_u32_u24 v{t}, 14, v{rr}\nv_sub_u32 v{t}, v{q}, v{t}\nv_lshlrev_b32 v{t}, 4, v{t}\nv_mul_lo_u32 v{rr}, v{rr}, s{sp}\nv_add3_u32 v{vd[i]}, v{rr}, v{t}, s{st}")
    for qq in range(256): assert (qq*4682) >> 16 == qq // 14
    sW = k.s(); sL = k.s()
    k(f"s_mov_b32 s{sW}, 0\ns_mul_i32 s{sL}, s{smat}, {UPO}\ns_mul_i32 s{st}, s{swq}, 3584\ns_add_u32 s{sL}, s{sL}, s{st}")
    def dma(j, i):
        k(f"s_add_u32 m0, s{sL}, {(j % R)*SLOT + i*1024}")
        if i == 3: k("s_mov_b32 exec_hi, 0")
        k.vm(f"buffer_load_dwordx4 v{vd[i]}, {sr(S_w,4)}, s{sW} offen lds", ("dma", j))
        if i == 3: k(f"s_mov_b32 exec_hi, -1\ns_add_u32 s{sW}, s{sW}, {64*7168}")
    vA = k.v()
    k(f"s_lshl_b32 s{st}, s{smb}, 16\nv_lshlrev_b32 v{vA}, 4, v{lane}\nv_add_u32 v{vA}, s{st}, v{vA}")
    Abuf = k.v(4*DA, 4)
    aload = a_loader(k, S_ws, vA, Abuf, DA, WS_HN)
    h, g1, r, cc = tr_lane_parts(k)
    a = k.v()
    k(f"v_lshl_add_u32 v{a}, v{h}, 2, v{r}\nv_mul_u32_u24 v{a}, 224, v{a}\nv_lshrrev_b32 v{t}, 1, v{cc}\nv_mul_u32_u24 v{t}, {UPO}, v{t}\nv_add_u32 v{a}, v{a}, v{t}")
    k(f"v_lshlrev_b32 v{t}, 4, v{g1}\nv_add_u32 v{a}, v{a}, v{t}\nv_and_b32 v{t}, 1, v{cc}\nv_lshlrev_b32 v{t}, 3, v{t}\nv_add_u32 v{a}, v{a}, v{t}")
    B = LdsBases(k, a, R*SLOT - 1)
    Wb = k.v(4*(DW+1), 4)
    ACC = k.v(112, 4)
    def wread(j, uu, t, b, tag):
        off = (j % R)*SLOT + uu*3584 + t*32
        k.ds(f"ds_read_b64_tr_b16 {vr(Wb+4*b,2)}, {B.at(off)}", ("w", tag))
        k.ds(f"ds_read_b64_tr_b16 {vr(Wb+4*b+2,2)}, {B.at(off+1792)}", ("w", tag))
    def mfma(u, t, b):
        aa = vr(Abuf + 4*(u % DA), 4); w = vr(Wb + 4*b, 4); d = vr(ACC + 16*t, 16)
        c = d if u > 0 else "0"
        k(f"v_mfma_f32_32x32x16_bf16 {d}, {w}, {aa}, {c}")
    mainloop(k, NT, KPS, NST, R, DA, DW, 4, dma, aload, wread, mfma, name + "_L")
    so = k.s(); sc = k.s(); vT = k.v()
    k(f"s_mul_i32 s{so}, s{smb}, 224\ns_mul_i32 s{st}, s{snt}, 7\ns_add_u32 s{so}, s{so}, s{st}\ns_lshl_b32 s{so}, s{so}, 10\ns_add_u32 s{so}, s{so}, {WS_ACT}")
    k(f"v_lshlrev_b32 v{vT}, 4, v{lane}\ns_mov_b32 s{sc}, {f32(-math.log2(math.e))}")
    E = Abuf
    for tt in range(7):
        D = ACC + 16*tt
        pairs = [(D+i, D+4+i) for i in range(4)] + [(D+8+i, D+12+i) for i in range(4)]
        for e, (g, u) in enumerate(pairs): k(f"v_mul_f32 v{E+e}, s{sc}, v{g}")
        for e in range(8): k(f"v_exp_f32 v{E+e}, v{E+e}")
        for e, (g, u) in enumerate(pairs): k(f"v_mul_f32 v{g}, v{g}, v{u}")
        for e in range(8): k(f"v_add_f32 v{E+e}, 1.0, v{E+e}")
        for e in range(8): k(f"v_rcp_f32 v{E+e}, v{E+e}")
        for e, (g, u) in enumerate(pairs): k(f"v_mul_f32 v{g}, v{g}, v{E+e}")
        o = Wb + 4*(tt % (DW+1))
        for e in range(4): k(f"v_cvt_pk_bf16_f32 v{o+e}, v{pairs[2*e][0]}, v{pairs[2*e+1][0]}")
        k.vm(f"buffer_store_dwordx4 {vr(o,4)}, v{vT}, {sr(S_ws,4)}, s{so} offen offset:{1024*(tt%4)}")
        if tt == 3: k(f"s_add_u32 s{so}, s{so}, 4096")
    finish(k)
    return k

def gen_attn(name):
    R, TPS, NST = 4, 4, 16
    SLOT = 16384
    NTILE = TPS * NST
    k = K(name, (256, 1, 1), (512, 1, 1), R * SLOT + 2048)
    start(k, 256)
    lane, sw = k.lane, k.sw
    S_ws = k.s(4); k.srd(S_ws, k.PWS, WS_SIZE)
    shd = k.s(); sqb = k.s(); st = k.s(); st2 = k.s(); sKV = k.s(); sKV0 = k.s(); sL = k.s(); scnt = k.s()
    k(f"s_and_b32 s{shd}, s2, 7\ns_lshl_b32 s{shd}, s{shd}, 2\ns_bfe_u32 s{st}, s2, 0x20003\ns_add_u32 s{shd}, s{shd}, s{st}")
    k(f"s_lshr_b32 s{sqb}, s2, 5\ns_lshl_b32 s{sqb}, s{sqb}, 3\ns_add_u32 s{sqb}, s{sqb}, s{sw}")
    vT = k.v(); vD = k.v(); t = k.v(); t2 = k.v()
    k(f"v_lshlrev_b32 v{vT}, 4, v{lane}\ns_lshl_b32 s{sL}, s{sw}, 11\nv_add_u32 v{vD}, s{sL}, v{vT}")
    k(f"s_lshl_b32 s{sKV0}, s{shd}, 18\ns_add_u32 s{sKV0}, s{sKV0}, {WS_KV}\ns_mov_b32 s{sKV}, s{sKV0}")
    def dma(j):
        k(f"s_add_u32 m0, s{sL}, {(j % R)*SLOT}")
        k.vm(f"buffer_load_dwordx4 v{vD}, {sr(S_ws,4)}, s{sKV} offen lds", ("dma", j))
        k.vm(f"buffer_load_dwordx4 v{vD}, {sr(S_ws,4)}, s{sKV} offen offset:1024 lds", ("dma", j))
        k(f"s_add_u32 s{sKV}, s{sKV}, {SLOT}")
    Q = k.v(8, 4); S = [k.v(16, 4), k.v(16, 4)]; NEG = k.v(16, 4); O = k.v(16, 4); Lr = k.v(4, 4); ONE = k.v(4, 4)
    Pf = k.v(8, 4); Kb = [k.v(8, 4), k.v(8, 4)]; Vb = [k.v(8, 4), k.v(8, 4)]
    dma(0)
    k(f"s_lshl_b32 s{st}, s{shd}, 6\ns_add_u32 s{st}, s{st}, s{sqb}\ns_lshl_b32 s{st}, s{st}, 11\ns_add_u32 s{st}, s{st}, {WS_Q}")
    for i in range(2): k.vm(f"buffer_load_dwordx4 {vr(Q+4*i,4)}, v{vT}, {sr(S_ws,4)}, s{st} offen offset:{1024*i}", "q")
    for j in range(1, R): dma(j)
    S_pf = k.s(4); vp = k.v(); PD = k.v(4, 4); spf = k.s()
    k.srd(S_pf, k.P + P_WO, 2*MB)
    k(f"s_lshl_b32 s{spf}, s2, 13\nv_lshlrev_b32 v{vp}, 4, v0\nv_add_u32 v{vp}, s{spf}, v{vp}")
    if PF: k.vm(f"buffer_load_dwordx4 {vr(PD,4)}, v{vp}, {sr(S_pf,4)}, 0 offen", "pf")
    k(f"s_nop 4")
    k.srd(S_pf, k.P + P_WD, 7*MB)
    S_gu = k.s(4); vg = k.v(); CD = [k.v(4, 4), k.v(4, 4)]; CA = k.v(4, 4); SEL = k.v(4, 4); sgu = k.s(); scol = k.s(); vcw = k.v(); vcr = k.v(); vcs = k.v()
    k(f"s_lshr_b32 s{st}, s2, 3\ns_cmp_ge_u32 s{st}, 14\ns_cselect_b32 s{S_gu}, s{k.P+P_WU}, s{k.P+P_WG}\ns_cselect_b32 s{S_gu+1}, s{k.P+P_WU+1}, s{k.P+P_WG+1}\ns_mov_b32 s{S_gu+2}, {7*MB}\ns_mov_b32 s{S_gu+3}, 0x20000")
    k(f"s_cselect_b32 s{st2}, 14, 0\ns_cselect_b32 s{sgu}, {3584*4}, 0\ns_sub_u32 s{scol}, s{st}, s{st2}\ns_lshl_b32 s{scol}, s{scol}, 5\ns_and_b32 s{st2}, s2, 7\ns_mul_i32 s{st2}, s{st2}, 448\ns_add_u32 s{scol}, s{scol}, s{st2}")
    k(f"s_cmp_ge_u32 s{st}, 28\ns_cselect_b32 s{st}, 0x4000000, 0\ns_add_u32 s{scol}, s{scol}, s{st}")
    k(f"s_mul_i32 s{st}, s{sw}, {128*7168}\ns_lshl_b32 s{st2}, s{scol}, 1\ns_add_u32 s{st}, s{st}, s{st2}\ns_mov_b32 s{st2}, 7168")
    k(f"v_lshrrev_b32 v{vg}, 2, v{lane}\nv_mul_lo_u32 v{vg}, v{vg}, s{st2}\nv_and_b32 v{t}, 3, v{lane}\nv_lshl_add_u32 v{vg}, v{t}, 4, v{vg}\nv_add_u32 v{vg}, s{st}, v{vg}")
    k(f"s_lshl_b32 s{st}, s{sw}, 8\ns_add_u32 s{st}, s{st}, {R*SLOT}\nv_lshl_add_u32 v{vcw}, v{t}, 4, s{st}\nv_lshrrev_b32 v{t2}, 4, v{lane}\nv_lshl_add_u32 v{vcw}, v{t2}, 6, v{vcw}")
    k(f"v_and_b32 v{vcr}, 31, v{lane}\nv_lshlrev_b32 v{vcr}, 2, v{vcr}\nv_lshrrev_b32 v{t2}, 5, v{lane}\nv_lshl_add_u32 v{vcr}, v{t2}, 10, v{vcr}\nv_add_u32 v{vcr}, {R*SLOT}, v{vcr}")
    k(f"v_bfe_u32 v{vcs}, v{lane}, 2, 2\nv_lshl_add_u32 v{vcs}, v{vcs}, 3, v{t}\nv_bfe_u32 v{t2}, v{lane}, 4, 1\nv_lshl_add_u32 v{vcs}, v{t2}, 2, v{vcs}\nv_add_u32 v{vcs}, s{scol}, v{vcs}\nv_lshlrev_b32 v{vcs}, 2, v{vcs}\nv_add_u32 v{vcs}, s{sgu}, v{vcs}")
    k(f"v_and_b32 v{t}, 1, v{lane}\nv_lshlrev_b32 v{t}, 4, v{t}\nv_mov_b32 v{t2}, 0x3f80\nv_lshlrev_b32 v{t2}, v{t}, v{t2}\nv_bfe_u32 v{t}, v{lane}, 1, 3")
    for e in range(4): k(f"v_cmp_eq_u32 vcc, {e}, v{t}\nv_cndmask_b32 v{SEL+e}, 0, v{t2}, vcc")
    k(f"s_mov_b32 s{sgu}, 0")
    def pf(j):
        if 2 <= j < 10:
            k.vm(f"buffer_load_dwordx4 {vr(CD[j%2],4)}, v{vg}, {sr(S_gu,4)}, s{sgu} offen", "pf")
            k(f"s_add_u32 s{sgu}, s{sgu}, {16*7168}")
        elif 10 <= j < 14 and PF:
            k(f"s_mov_b32 s{spf}, {(j-10)*2*MB}")
            k.vm(f"buffer_load_dwordx4 {vr(PD,4)}, v{vp}, {sr(S_pf,4)}, s{spf} offen", "pf")
    def cs(j):
        if 4 <= j < 12: k(f"v_mfma_f32_16x16x32_bf16 {vr(CA,4)}, {vr(SEL,4)}, {vr(CD[j%2],4)}, {vr(CA,4) if j > 4 else '0'}")
    def cs2(j):
        if j == 12:
            for rot in (4, 8):
                for e in range(4): k(f"v_add_f32_dpp v{CA+e}, v{CA+e}, v{CA+e} row_ror:{rot} row_mask:0xf bank_mask:0xf")
            k.ds(f"ds_write_b128 v{vcw}, {vr(CA,4)}", "csw")
        if j == 14:
            for e in range(4): k.ds(f"ds_read_b32 v{CA+e}, v{vcr} offset:{256*e}", "csr")
        if j == 15:
            k.wait(lg="csr")
            k(f"v_add_f32 v{CA}, v{CA}, v{CA+1}\nv_add_f32 v{CA+2}, v{CA+2}, v{CA+3}\nv_add_f32 v{CA}, v{CA}, v{CA+2}\nv_mov_b32 v{CA+1}, v{CA}\nv_permlane32_swap_b32 v{CA}, v{CA+1}\nv_add_f32 v{CA}, v{CA}, v{CA+1}")
            k(f"s_mov_b32 s{sgu}, {25*MB}")
            k.vm(f"buffer_store_dword v{CA}, v{vcs}, {sr(S_ws,4)}, s{sgu} offen")
    k(f"v_lshrrev_b32 v{t}, 2, v{lane}\nv_lshrrev_b32 v{t2}, 4, v{lane}\nv_xor_b32 v{t}, v{t}, v{t2}\nv_and_b32 v{t}, 1, v{t}\nv_cmp_eq_u32 vcc, 0, v{t}")
    k(f"v_mov_b32 v{t2}, 0x3f803f80")
    for e in range(4): k(f"v_cndmask_b32 v{ONE+e}, 0, v{t2}, vcc")
    def kread(T):
        off = ((T // TPS) % R)*SLOT + (T % TPS)*4096
        for i in range(2): k.ds(f"ds_read_b128 {vr(Kb[T%2]+4*i,4)}, v{vT} offset:{off+1024*i}", ("k", T))
    def vread(T):
        off = ((T // TPS) % R)*SLOT + (T % TPS)*4096 + 2048
        for i in range(2): k.ds(f"ds_read_b128 {vr(Vb[T%2]+4*i,4)}, v{vT} offset:{off+1024*i}", ("v", T))
    def qk(T, i, c=None):
        d = vr(S[T%2], 16)
        cc = (vr(NEG, 16) if c is None else c) if i == 0 else d
        k(f"v_mfma_f32_32x32x16_bf16 {d}, {vr(Kb[T%2]+4*i,4)}, {vr(Q+4*i,4)}, {cc}")
    def rowmax16(src, dst):
        k(f"v_max3_f32 v{dst}, v{src}, v{src+1}, v{src+2}")
        for e in range(3, 15, 2): k(f"v_max3_f32 v{dst}, v{dst}, v{src+e}, v{src+e+1}")
        k(f"v_max_f32 v{dst}, v{dst}, v{src+15}")
    stamp(k)
    k.wait(vm="q"); k("s_barrier")
    stamp(k)
    kread(0); kread(1); vread(0)
    k.wait(lg=("k", 0))
    qk(0, 0, "0"); qk(0, 1)
    rowmax16(S[0], t)
    k(f"v_mov_b32 v{t2}, v{t}\nv_permlane32_swap_b32 v{t}, v{t2}\nv_max_f32 v{t}, v{t}, v{t2}")
    for e in range(16): k(f"v_sub_f32 v{NEG+e}, 0, v{t}")
    for e in range(16): k(f"v_sub_f32 v{S[0]+e}, v{S[0]+e}, v{t}")
    base = len(k.L); starts = [base]
    def summ(T, i):
        k(f"v_mfma_f32_16x16x32_bf16 {vr(Lr,4)}, {vr(ONE,4)}, {vr(Pf+4*i,4)}, {vr(Lr,4) if (T or i) else '0'}")
    for T in range(NTILE):
        s = S[T % 2]
        pend = None; jj = None
        if T + 2 < NTILE:
            if (T + 2) % TPS == 0:
                j = (T + 2) // TPS
                starts.append(len(k.L))
                k.wait(vm=("dma", j)); k("s_barrier")
                if j >= 2 and j - 2 + R < NST: pend = j - 2 + R
                jj = j
        if APRIO: k(f"s_setprio {3 - (T + 2) % TPS}")
        if ASCHED == 0:
            if T + 2 < NTILE: kread(T + 2)
            if T + 1 < NTILE:
                vread(T + 1)
                k.wait(lg=("k", T + 1)); qk(T + 1, 0)
            for e in range(8): k(f"v_exp_f32 v{s+e}, v{s+e}")
            if T + 1 < NTILE: qk(T + 1, 1)
            for e in range(4): k(f"v_cvt_pk_bf16_f32 v{Pf+e}, v{s+2*e}, v{s+2*e+1}")
            if jj is not None: cs(jj); cs2(jj)
            if pend is not None: pf(pend + 2 - R); dma(pend)
            for e in range(8, 12): k(f"v_exp_f32 v{s+e}, v{s+e}")
            k.wait(lg=("v", T))
            k(f"v_mfma_f32_32x32x16_bf16 {vr(O,16)}, {vr(Vb[T%2],4)}, {vr(Pf,4)}, {vr(O,16) if T else '0'}")
            for e in range(12, 16): k(f"v_exp_f32 v{s+e}, v{s+e}")
            summ(T, 0)
            for e in range(4, 8): k(f"v_cvt_pk_bf16_f32 v{Pf+e}, v{s+2*e}, v{s+2*e+1}")
            k(f"v_mfma_f32_32x32x16_bf16 {vr(O,16)}, {vr(Vb[T%2]+4,4)}, {vr(Pf+4,4)}, {vr(O,16)}")
            summ(T, 1)
        else:
            E = lambda a, b: [k(f"v_exp_f32 v{s+e}, v{s+e}") for e in range(a, b)]
            C = lambda a, b: [k(f"v_cvt_pk_bf16_f32 v{Pf+e}, v{s+2*e}, v{s+2*e+1}") for e in range(a, b)]
            if T: k(f"v_mfma_f32_32x32x16_bf16 {vr(O,16)}, {vr(Vb[(T-1)%2]+4,4)}, {vr(Pf+4,4)}, {vr(O,16)}")
            E(0, 3)
            if T + 1 < NTILE:
                k.wait(lg=("k", T + 1)); qk(T + 1, 0)
            E(3, 6)
            if T: summ(T - 1, 1)
            if T + 1 < NTILE: vread(T + 1)
            E(6, 8)
            if T + 1 < NTILE: qk(T + 1, 1)
            C(0, 4)
            E(8, 9)
            if T + 2 < NTILE: kread(T + 2)
            k.wait(lg=("v", T))
            k(f"v_mfma_f32_32x32x16_bf16 {vr(O,16)}, {vr(Vb[T%2],4)}, {vr(Pf,4)}, {vr(O,16) if T else '0'}")
            E(9, 12)
            summ(T, 0)
            if jj is not None: cs(jj); cs2(jj)
            if pend is not None: pf(pend + 2 - R); dma(pend)
            E(12, 16)
            C(4, 8)
    if ASCHED:
        T = NTILE
        k(f"v_mfma_f32_32x32x16_bf16 {vr(O,16)}, {vr(Vb[(T-1)%2]+4,4)}, {vr(Pf+4,4)}, {vr(O,16)}")
        summ(T - 1, 1)
    starts.append(len(k.L))
    blocks = [k.L[starts[i]:starts[i+1]] for i in range(len(starts) - 1)]
    del k.L[base:]
    compress_loop(k, blocks, R if not NOLOOP else 99, scnt, name + "_L")
    stamp(k)
    k.label(name + "_CHK")
    k(f"v_max3_f32 v{t}, |v{O}|, |v{O+1}|, |v{O+2}|")
    for e in range(3, 15, 2): k(f"v_max3_f32 v{t}, v{t}, |v{O+e}|, |v{O+e+1}|")
    k(f"v_max_f32 v{t}, v{t}, |v{O+15}|".replace("v_max_f32", "v_max_f32_e64"))
    k(f"s_mov_b32 s{st}, {f32(2.0**100)}\ns_mov_b32 s{st2}, 0x7f7fffff")
    k(f"v_cmp_nle_f32 vcc, v{Lr}, s{st}".replace("v_cmp_nle_f32", "v_cmp_nle_f32_e64"))
    sx = k.s(2)
    k(f"v_cmp_nle_f32_e64 {sr(sx,2)}, v{t}, s{st2}")
    k(f"v_add_f32 v{t2}, v{O}, v{O+1}")
    for e in range(2, 16): k(f"v_add_f32 v{t2}, v{t2}, v{O+e}")
    sy = k.s(2)
    k(f"v_cmp_u_f32_e64 {sr(sy,2)}, v{t2}, v{t2}")
    k(f"s_or_b64 vcc, vcc, {sr(sx,2)}\ns_or_b64 vcc, vcc, {sr(sy,2)}\ns_cbranch_scc1 {name}_SLOW")
    k.label(name + "_OUT")
    k(f"v_rcp_f32 v{t}, v{Lr}")
    k(f"s_lshl_b32 s{st}, s{sqb}, 6\ns_add_u32 s{st}, s{st}, s{shd}\ns_lshl_b32 s{st}, s{st}, 10\ns_add_u32 s{st}, s{st}, {WS_O}")
    k(f"v_and_b32 v{t2}, 15, v{lane}\nv_lshlrev_b32 v{t2}, 4, v{t2}\nv_bfe_u32 v{vD}, v{lane}, 4, 1\nv_lshl_add_u32 v{t2}, v{vD}, 15, v{t2}\nv_lshrrev_b32 v{vD}, 5, v{lane}\nv_lshl_add_u32 v{t2}, v{vD}, 8, v{t2}")
    for e in range(16): k(f"v_mul_f32 v{O+e}, v{O+e}, v{t}")
    for e in range(8): k(f"v_cvt_pk_bf16_f32 v{Pf+e}, v{O+2*e}, v{O+2*e+1}")
    for i in range(2): k.vm(f"buffer_store_dwordx4 {vr(Pf+4*i,4)}, v{t2}, {sr(S_ws,4)}, s{st} offen offset:{512*i}")
    tend(k)
    k("s_endpgm")
    k.vmq = []; k.lgq = []
    k.label(name + "_SLOW")
    mx = k.v()
    k(f"v_mov_b32 v{mx}, 0xff800000\ns_mov_b32 s{sKV}, s{sKV0}\ns_mov_b32 s{scnt}, {NTILE}")
    k.label(name + "_S1")
    for i in range(2): k.vm(f"buffer_load_dwordx4 {vr(Kb[0]+4*i,4)}, v{vT}, {sr(S_ws,4)}, s{sKV} offen offset:{1024*i}")
    k.wait(vm="all")
    qk(0, 0, "0"); qk(0, 1)
    rowmax16(S[0], t)
    k(f"v_max_f32 v{mx}, v{mx}, v{t}")
    k(f"s_add_u32 s{sKV}, s{sKV}, 4096\ns_sub_u32 s{scnt}, s{scnt}, 1\ns_cmp_lg_u32 s{scnt}, 0\ns_cbranch_scc1 {name}_S1")
    k(f"v_mov_b32 v{t2}, v{mx}\nv_permlane32_swap_b32 v{mx}, v{t2}\nv_max_f32 v{mx}, v{mx}, v{t2}")
    for e in range(16): k(f"v_sub_f32 v{NEG+e}, 0, v{mx}")
    for e in range(16): k(f"v_mov_b32 v{O+e}, 0")
    for e in range(4): k(f"v_mov_b32 v{Lr+e}, 0")
    k(f"s_mov_b32 s{sKV}, s{sKV0}\ns_mov_b32 s{scnt}, {NTILE}")
    k.label(name + "_S2")
    for i in range(2): k.vm(f"buffer_load_dwordx4 {vr(Kb[0]+4*i,4)}, v{vT}, {sr(S_ws,4)}, s{sKV} offen offset:{1024*i}")
    for i in range(2): k.vm(f"buffer_load_dwordx4 {vr(Vb[0]+4*i,4)}, v{vT}, {sr(S_ws,4)}, s{sKV} offen offset:{2048+1024*i}")
    k.wait(vm="all")
    qk(0, 0); qk(0, 1)
    s = S[0]
    for e in range(16): k(f"v_exp_f32 v{s+e}, v{s+e}")
    for e in range(8): k(f"v_cvt_pk_bf16_f32 v{Pf+e}, v{s+2*e}, v{s+2*e+1}")
    for i in range(2):
        k(f"v_mfma_f32_32x32x16_bf16 {vr(O,16)}, {vr(Vb[0]+4*i,4)}, {vr(Pf+4*i,4)}, {vr(O,16)}")
        k(f"v_mfma_f32_16x16x32_bf16 {vr(Lr,4)}, {vr(ONE,4)}, {vr(Pf+4*i,4)}, {vr(Lr,4)}")
    k(f"s_add_u32 s{sKV}, s{sKV}, 4096\ns_sub_u32 s{scnt}, s{scnt}, 1\ns_cmp_lg_u32 s{scnt}, 0\ns_cbranch_scc1 {name}_S2")
    k(f"s_nop 15\ns_branch {name}_OUT")
    finish(k, False)
    return k

OPT = {"wo": dict(R=8, DA=8, DW=3), "ffn1": dict(IL=1, PRIO=1, STS=34, PRO=6, WIN=6, CAP=20, TAIL=6), "ffn2": dict(R=6, DA=6, DW=3), "qkv": dict()}
def build(out):
    import g16
    ks = [gen_ln("ln1_kernel", False, 0, WS_XN), gen_qkv("qkv_kernel"), gen_attn("attn_kernel"),
          g16.gen_res16("wo_kernel", 1024, P_WO, WS_O, False, **OPT["wo"]),
          g16.gen_ffn1_16("ffn1_kernel", **OPT["ffn1"]), g16.gen_res16("ffn2_kernel", 3584, P_WD, WS_ACT, True, **OPT["ffn2"])]
    ref = open("cdna_kernels/" + NAME + ".s.ref").read().split("\n")
    head = [l for l in ref if l.startswith(";") and not l.startswith("; @launch") and not l.startswith("; Override") and not l.startswith("; grid=")]
    txt = "\n".join(head) + "\n"
    for k in ks:
        txt += f"; @launch kernel={k.name} grid=({k.grid[0]},{k.grid[1]},{k.grid[2]}) block=({k.block[0]},{k.block[1]},{k.block[2]}) lds={k.lds}\n"
    txt += '.amdgcn_target "amdgcn-amd-amdhsa--gfx950"\n'
    def emit(sizes):
        t = txt; descs = ""
        for k in ks:
            c, d = k.text(sizes.get(k.name) if sizes else None); t += c; descs += d
            if sizes: print(k.name, "vgpr", k.nv, "lines", c.count("\n"), "lds", k.lds, "stubs", getattr(k, "nstub", 0), file=sys.stderr)
        return t + descs
    import subprocess, re, os
    open("_p1.s", "w").write(emit(None))
    subprocess.run(["clang", "-c", "-x", "assembler", "-target", "amdgcn-amd-amdhsa", "-mcpu=gfx950", "_p1.s", "-o", "_p1.o"], check=True)
    dis = subprocess.run(["llvm-objdump", "-d", "-z", "--mcpu=gfx950", "_p1.o"], capture_output=True, text=True).stdout
    sizes = {}; cur = None
    names = {k.name for k in ks}
    for l in dis.split("\n"):
        m = re.match(r"^[0-9a-f]+ <(.*)>:", l)
        if m:
            if m.group(1) in names: cur = sizes.setdefault(m.group(1), [])
            continue
        m = re.search(r"// [0-9A-F]+: ((?:[0-9A-F]{8} ?)+)", l)
        if m and cur is not None: cur.append((l.split()[0], 4 * len(m.group(1).split())))
    for n in sizes:
        L = sizes[n]; last = max(i for i, x in enumerate(L) if x[0] == "s_endpgm"); sizes[n] = [x[1] for x in L[:last + 1]]
    open(out, "w").write(emit(sizes))

if __name__ == "__main__":
    sys.modules["gen"] = sys.modules["__main__"]
    if "--timing" in sys.argv: TIMING = True; sys.argv.remove("--timing")
    if "--nopf" in sys.argv: PF = False; sys.argv.remove("--nopf")
    for a in list(sys.argv):
        if a.startswith("-D"):
            n, v = a[2:].split("=")
            if "." in n: n1, n2 = n.split("."); OPT[n1][n2] = int(v)
            else: globals()[n] = int(v)
            sys.argv.remove(a)
    if "--dbg" in sys.argv: TIMING = 2; sys.argv.remove("--dbg")
    build(sys.argv[1] if len(sys.argv) > 1 else "cdna_kernels/" + NAME + ".s")
```

```python
import re

TRANS = ("v_exp_f32", "v_log_f32", "v_rcp_f32", "v_rsq_f32", "v_sqrt_f32", "v_sin_f32", "v_cos_f32")

def vr(a, n=1):
    return f"v{a}" if n == 1 else f"v[{a}:{a+n-1}]"
def sr(a, n=1):
    return f"s{a}" if n == 1 else f"s[{a}:{a+n-1}]"

_reg_re = re.compile(r"^(-?)(abs\()?\|?([vsa])(?:(\d+)|\[(\d+):(\d+)\])\|?\)?$")
def regs_of(op):
    op = op.strip()
    if op == "vcc": return {("s", 106), ("s", 107)}
    if op == "vcc_lo": return {("s", 106)}
    if op == "vcc_hi": return {("s", 107)}
    if op == "exec": return {("s", 126), ("s", 127)}
    if op == "exec_lo": return {("s", 126)}
    if op == "exec_hi": return {("s", 127)}
    if op == "m0": return {("s", 124)}
    m = _reg_re.match(op)
    if not m: return set()
    k = m.group(3)
    if m.group(4) is not None:
        return {(k, int(m.group(4)))}
    return {(k, i) for i in range(int(m.group(5)), int(m.group(6)) + 1)}

def split_ops(rest):
    ops, depth, cur = [], 0, ""
    for ch in rest:
        if ch in "[(": depth += 1
        if ch in "])": depth -= 1
        if ch == "," and depth == 0:
            ops.append(cur.strip()); cur = ""
        else:
            cur += ch
    if cur.strip(): ops.append(cur.strip())
    return ops

class Ins:
    __slots__ = ("text", "mn", "kind", "rd", "wr", "passes", "srcA", "srcB", "srcC", "dpp", "wide_store", "lds_dma", "states", "data")
    def __init__(self, text):
        self.text = text
        t = text.split(";")[0].strip()
        self.rd = set(); self.wr = set(); self.passes = 0; self.dpp = False
        self.wide_store = False; self.lds_dma = False; self.states = 1; self.data = set()
        self.srcA = self.srcB = self.srcC = set()
        if not t or t.endswith(":") or t.startswith("."):
            self.kind = "label" if t.endswith(":") else "none"; self.mn = t; self.states = 0
            return
        parts = t.split(None, 1)
        mn = parts[0]; self.mn = mn
        rest = parts[1] if len(parts) > 1 else ""
        ops = split_ops(rest)
        mods = ""
        if ops:
            lp = ops[-1].split()
            ops[-1] = lp[0]; mods = " ".join(lp[1:])
        R = [regs_of(o) for o in ops]
        if mn == "s_nop":
            self.kind = "nop"; self.states = int(ops[0], 0) + 1
        elif mn.startswith("v_mfma"):
            self.kind = "mfma"
            self.passes = 8 if "32x32" in mn else 4
            self.wr = R[0]; self.srcA = R[1]; self.srcB = R[2]; self.srcC = R[3]
            self.rd = R[1] | R[2] | R[3]
        elif mn.startswith("v_"):
            self.kind = "trans" if mn.replace("_e32", "").replace("_e64", "") in TRANS else "valu"
            if "quad_perm" in mods or "row_" in mods or "_dpp" in mn: self.dpp = True
            if mn.startswith("v_permlane") and "swap" in mn:
                self.wr = R[0] | R[1]; self.rd = R[0] | R[1]; self.kind = "permlane"
            elif mn.startswith("v_cmp"):
                self.wr = R[0]; self.rd = set().union(*R[1:])
            elif mn.startswith("v_readfirstlane") or mn.startswith("v_readlane"):
                self.wr = R[0]; self.rd = set().union(*R[1:]); self.kind = "readlane"
            elif mn.startswith("v_add_co") or mn.startswith("v_addc_co") or mn.startswith("v_sub_co"):
                self.wr = R[0] | R[1]; self.rd = set().union(*R[2:])
            else:
                self.wr = R[0]; self.rd = set().union(*R[1:]) if len(R) > 1 else set()
                if mn.startswith("v_fmac") or mn.startswith("v_dot2c") or self.dpp or mn.startswith("v_pk_fmac"):
                    self.rd |= R[0]
                if mn.startswith("v_cndmask") and len(ops) == 3:
                    self.rd |= regs_of("vcc")
                if mn.startswith("v_dot"): self.kind = "dot"
        elif mn.startswith("buffer_") or mn.startswith("global_"):
            self.kind = "vmem"
            is_lds = " lds" in (" " + mods)
            if mn.startswith("buffer_"):
                if is_lds:
                    self.lds_dma = True; self.rd = set().union(*R) | regs_of("m0")
                elif "load" in mn:
                    self.wr = R[0]; self.rd = set().union(*R[1:])
                else:
                    self.rd = set().union(*R); self.data = R[0]
                    if "x4" in mn or "x3" in mn: self.wide_store = True
            else:
                if "load" in mn:
                    self.wr = R[0]; self.rd = set().union(*R[1:])
                else:
                    self.rd = set().union(*R); self.data = R[1]
                    if "x4" in mn or "x3" in mn: self.wide_store = True
        elif mn.startswith("ds_"):
            self.kind = "ds"
            if "read" in mn or "permute" in mn or "swizzle" in mn:
                self.wr = R[0]; self.rd = set().union(*R[1:])
            else:
                self.rd = set().union(*R)
        elif mn.startswith("s_"):
            self.kind = "salu"
            if mn.startswith("s_cmp") or mn.startswith("s_cbranch") or mn in ("s_branch", "s_barrier", "s_waitcnt", "s_endpgm", "s_setprio", "s_sleep"):
                self.rd = set().union(*R) if R else set()
            else:
                self.wr = R[0] if R else set(); self.rd = set().union(*R[1:]) if len(R) > 1 else set()
                if "saveexec" in mn: self.wr = self.wr | regs_of("exec")
        else:
            raise ValueError("unknown instr: " + text)

VALUK = ("valu", "trans", "permlane", "readlane", "dot")
def isv(s): return {r for r in s if r[0] in "va"}
def iss(s): return {r for r in s if r[0] == "s"}

def need(p, c):
    n = 0
    if p.kind in VALUK:
        pv = isv(p.wr); ps = iss(p.wr)
        if c.kind == "mfma" and pv & c.rd: n = max(n, 2)
        if p.kind == "trans" and c.kind in VALUK and c.kind != "trans" and pv & c.rd: n = max(n, 1)
        if p.kind == "trans" and c.kind == "trans" and pv & c.rd: n = max(n, 1)
        if c.kind == "readlane" and pv & c.rd: n = max(n, 1)
        if (c.kind == "permlane" or c.dpp) and pv & c.rd: n = max(n, 2)
        if ps:
            if c.kind in VALUK and ps & c.rd: n = max(n, 4 if c.kind == "readlane" else 2)
            if c.kind == "vmem" and ps & c.rd: n = max(n, 5)
            if ps & regs_of("exec"):
                if c.kind == "mfma": n = max(n, 4)
                if c.dpp: n = max(n, 5)
        if p.kind == "dot" and pv:
            if c.kind == "dot" and c.mn == p.mn:
                pass
            elif c.kind in VALUK + ("mfma", "vmem", "ds") and pv & (c.rd | c.wr): n = max(n, 3)
    if p.kind == "mfma":
        big = 12 if p.passes == 8 else 8
        if c.kind == "mfma":
            if p.wr & (c.srcA | c.srcB): n = max(n, big)
            if p.wr & c.srcC and not (p.wr == c.srcC and p.passes == c.passes):
                n = max(n, 10 if p.passes == 8 else 6)
        elif c.kind in VALUK:
            if p.wr & (c.rd | c.wr): n = max(n, big)
            if p.srcC & c.wr: n = max(n, 7 if p.passes == 8 else 3)
        elif c.kind in ("vmem", "ds"):
            if p.wr & (c.rd | c.wr): n = max(n, big)
    if p.kind == "vmem" and p.wide_store:
        if c.kind in VALUK and p.data & c.wr: n = max(n, 2)
        elif p.data & c.wr: n = max(n, 1)
    if p.kind == "salu" and (p.wr & regs_of("m0")) and c.kind == "vmem" and c.lds_dma: n = max(n, 1)
    return n

MAXD = 13
def pad_linear(lines):
    out = []
    for t in lines:
        c = Ins(t)
        if c.states:
            req = 0; dist = 0
            for p in reversed(out):
                if dist >= MAXD: break
                if p.states:
                    k = need(p, c) - dist
                    if k > req: req = k
                    dist += p.states
            while req > 0:
                n = min(req, 16)
                out.append(Ins(f"    s_nop {n-1}")); req -= n
        out.append(c)
    return out

def check_branches(ins):
    labels = {i.mn[:-1]: idx for idx, i in enumerate(ins) if i.kind == "label"}
    idx = 0
    while idx < len(ins):
        b = ins[idx]
        if b.mn.startswith("s_cbranch") or b.mn == "s_branch":
            tgt = b.text.split(";")[0].split()[-1]
            labels = {i.mn[:-1]: k for k, i in enumerate(ins) if i.kind == "label"}
            if tgt in labels:
                pre = [p for p in ins[max(0, idx - 40):idx + 1] if p.states]
                post = [p for p in ins[labels[tgt]:labels[tgt] + 40] if p.states]
                req = 0
                dpost = 0
                for c in post:
                    if dpost >= MAXD: break
                    dist = dpost
                    for p in reversed(pre):
                        if dist >= MAXD: break
                        k = need(p, c) - dist
                        if k > req: req = k
                        dist += p.states
                    dpost += c.states
                if req > 0:
                    ins.insert(idx, Ins(f"    s_nop {req-1}")); idx += 1
        idx += 1
    return ins

class K:
    def __init__(self, name, grid, block, lds):
        self.name = name; self.grid = grid; self.block = block; self.lds = lds
        self.L = []
        self.vmq = []
        self.lgq = []
        self.nv = 0; self.ns = 0
        self._v = 1; self._s = 4
        self.uid = 0
    def v(self, n=1, align=None):
        if align is None: align = 2 if n >= 2 else 1
        a = (self._v + align - 1) // align * align
        self._v = a + n
        return a
    def s(self, n=1, align=None):
        if align is None: align = 4 if n >= 4 else (2 if n == 2 else 1)
        a = (self._s + align - 1) // align * align
        self._s = a + n
        assert self._s <= 100
        return a
    def __call__(self, t):
        for line in t.split("\n"):
            line = line.strip()
            if line: self.L.append("    " + line)
    def label(self, n): self.L.append(n + ":")
    def c(self, t): self.L.append("    ; " + t)
    def vm(self, t, tag=None):
        self(t); self.vmq.append(("@st", tag) if "_store" in t else tag)
    def ds(self, t, tag=None):
        self(t); self.lgq.append(tag)
    def _cnt(self, q, tag):
        idx = None
        for i, x in enumerate(q):
            if x == tag: idx = i
        if idx is None: return None
        return len(q) - 1 - idx, idx
    def wait(self, vm=None, lg=None):
        parts = []
        if vm is not None:
            if vm == "all":
                if self.vmq: parts.append("vmcnt(0)"); self.vmq = []
            else:
                r = self._cnt(self.vmq, vm)
                if r is not None:
                    n, idx = r
                    rest = self.vmq[idx + 1:]
                    n2 = min(sum(1 for x in rest if not (isinstance(x, tuple) and x[0] == "@st")), 63)
                    parts.append(f"vmcnt({n2})"); self.vmq = rest if n2 else []
        if lg is not None:
            if lg == "all":
                if self.lgq: parts.append("lgkmcnt(0)"); self.lgq = []
            else:
                r = self._cnt(self.lgq, lg)
                if r is not None:
                    n, idx = r
                    n2 = min(n, 15)
                    parts.append(f"lgkmcnt({n2})"); self.lgq = self.lgq[len(self.lgq) - n2:] if n2 else []
        if parts: self("s_waitcnt " + " ".join(parts))
    def mark(self): return len(self.L)
    def srd(self, d, base, nbytes):
        self(f"s_mov_b32 s{d}, s{base}\ns_mov_b32 s{d+1}, s{base+1}\ns_mov_b32 s{d+2}, {nbytes}\ns_mov_b32 s{d+3}, 0x20000")
    def warm(self, nw=8):
        self.nwarm = nw
        self("s_mov_b64 exec, 0")
        for w in range(nw): self(f"s_cmp_eq_u32 s{self.sw}, {w}\ns_cbranch_scc1 @W{w}")
        self.label(f"{self.name}_WRET")
        self("s_mov_b64 exec, -1")
    def add_stubs(self, ins, sizes):
        real = [i for i in ins if i.states]
        assert len(real) == len(sizes), (self.name, len(real), len(sizes))
        out = []; addr = 0; n = 0; on = False; page = 0; stubs = []
        lim = getattr(self, "warm_end", None)
        for i in ins:
            if i.kind == "label" and i.mn == f"{self.name}_WRET:": on = True
            if i.kind == "label" and lim and i.mn == lim + ":": on = False
            if i.states:
                if addr // 4096 > page:
                    page = addr // 4096
                    if on:
                        stubs.append(len(out)); out.append(None); addr += 4
                addr += sizes[n]; n += 1
            out.append(i)
        nw = self.nwarm; ns = len(stubs)
        res = []
        for idx, i in enumerate(out):
            if i is None:
                q = stubs.index(idx)
                tgt = f"{self.name}_WS{q+nw}" if q + nw < ns else f"{self.name}_WRET"
                res.append(Ins(f"{self.name}_WS{q}:")); res.append(Ins(f"    s_cbranch_execz {tgt}"))
            else: res.append(i)
        self.nstub = ns
        return res
    def text(self, sizes=None):
        L0 = self.L
        self.L = [re.sub(r"@W\d+", f"{self.name}_WRET", l) for l in L0]
        ins = pad_linear(self.L)
        ins = check_branches(ins)
        self.L = L0
        if sizes is not None and hasattr(self, "nwarm"):
            ins = self.add_stubs(ins, sizes)
            w = 0
            for j, i in enumerate(ins):
                if i.mn == "s_cbranch_scc1" and i.text.split()[-1] == f"{self.name}_WRET":
                    if w < self.nstub: ins[j] = Ins(f"    s_cbranch_scc1 {self.name}_WS{w}")
                    w += 1
        mx = 0
        for i in ins:
            for r in (i.rd | i.wr):
                if r[0] == "v": mx = max(mx, r[1])
        nv = mx + 1
        self.nv = nv
        acc = (nv + 3) // 4 * 4
        body = "\n".join(i.text for i in ins)
        code = f""".text
.globl {self.name}
.p2align {getattr(self, 'align', 12)}
.type {self.name},@function
{self.name}:
{body}
"""
        desc = f""".section .rodata,"a"
.p2align 6
.amdhsa_kernel {self.name}
  .amdhsa_next_free_vgpr {acc}
  .amdhsa_next_free_sgpr 102
  .amdhsa_accum_offset {acc}
  .amdhsa_group_segment_fixed_size 0
  .amdhsa_kernarg_size 80
  .amdhsa_user_sgpr_count 2
  .amdhsa_user_sgpr_kernarg_segment_ptr 1
  .amdhsa_system_sgpr_workgroup_id_x 1
.end_amdhsa_kernel
"""
        return code, desc

def compress_loop(k, blocks, period, scnt, lname):
    n = len(blocks)
    best = (0, 0)
    for st in range(n):
        reps = 1
        while st + (reps + 1) * period <= n and all(blocks[st + reps * period + i] == blocks[st + i] for i in range(period)):
            reps += 1
        if reps > best[1] and st + period <= n: best = (st, reps)
    st, reps = best
    if reps < 2:
        for b in blocks: k.L.extend(b)
        return 1
    for b in blocks[:st]: k.L.extend(b)
    k(f"s_mov_b32 s{scnt}, {reps}")
    k.label(lname)
    for b in blocks[st:st + period]: k.L.extend(b)
    k(f"s_sub_u32 s{scnt}, s{scnt}, 1\ns_cmp_lg_u32 s{scnt}, 0\ns_cbranch_scc1 {lname}")
    for b in blocks[st + reps * period:]: k.L.extend(b)
    return reps
```

```python
import math
from asmlib import *
import gen as G
from gen import MB, f32, sr, vr, stamp, finish, tstart, WS_SIZE, P_X, P_WQKV, P_WO, P_WG, P_WU, P_WD, P_OUT, LdsBases
WS_XN, WS_Q, WS_KV, WS_O, WS_H, WS_ACT = 0, 4*MB, 8*MB, 16*MB, 20*MB, 28*MB
WS_ST = 24*MB
WS_CS = 25*MB
MF = "v_mfma_f32_16x16x32_bf16"

def start2(k, nwg):
    k(f"s_cmp_ge_u32 s2, {nwg}\ns_cbranch_scc1 {k.name}_END")
    P = k.s(16, 4); P2 = k.s(4, 4)
    k(f"s_load_dwordx16 {sr(P,16)}, s[0:1], 0\ns_load_dwordx4 {sr(P2,4)}, s[0:1], 64")
    lane = k.v(); sw = k.s()
    k(f"v_lshrrev_b32 v{lane}, 6, v0")
    k(f"v_readfirstlane_b32 s{sw}, v{lane}")
    k(f"v_and_b32 v{lane}, 63, v0")
    k.P = P; k.PWS = P2 + 2; k.lane = lane; k.sw = sw
    tstart(k)
def karg(k):
    k("s_waitcnt lgkmcnt(0)")
    if not G.XS: stamp(k)

def mainloop16(k, order, MT, KPS, NST, R, DA, DW, ndma, dma, aload, wread, mfma, lname, pro, period,
               fill=None, lpm=1, lag=2, mid=None, do_pro=True, win=None, il=0, prio=0, bars=None, extra=(), gap=1, urg=None, cap=99, xall=-2, prebar=None):
    NB = DW + 1
    n = len(order)
    stg = [o[2] if len(o) > 2 else o[0] // KPS for o in order]
    order = [(o[0], o[1]) for o in order]
    KS = max(o[0] for o in order) + 1
    dl = ndma if callable(ndma) else (lambda j: range(ndma))
    first_use = {}; last_use = {}; first_stage = {}
    for i, (u, t) in enumerate(order):
        first_use.setdefault(u, i); last_use[u] = i
        first_stage.setdefault(stg[i], i)
    if bars is None: bars = set(range(NST))
    grp = {j: max(b for b in bars if b <= j) for j in range(NST)}
    barpos = {j: max(-1, first_stage[j] - DW) if j else -1 for j in bars}
    todo = []
    for j in range(NST):
        for q in dl(j):
            jj = j - R + lag
            if jj >= 0:
                jj = min(b for b in bars if b >= jj); assert jj < grp[j], (j, jj)
            todo.append((barpos[grp[j]], barpos[jj] if jj >= 0 else -2, "d", j, q))
    for u in range(KS):
        for i in range(MT):
            todo.append((first_use[u], last_use[u - DA] if u >= DA else -2, "a", u, i))
    for n_, (need_, f_) in enumerate(extra): todo.append((need_, xall, "x", n_, 0))
    todo.sort(key=lambda x: (x[0], x[2] == "a", x[3], x[4]))
    if urg is None: urg = 2*DW + 8
    X = G.XF if lname.startswith(G.XK[G.XI]) else 0
    def issue(e):
        if e[2] == "d" and (X & 1) and e[3] >= R: return
        if e[2] == "a" and (X & 2) and e[3] >= DA: return
        if e[2] == "x": return extra[e[3]][1]()
        (dma if e[2] == "d" else aload)(e[3], e[4])
    for p in pro:
        if p == "bar":
            if do_pro: k("s_barrier")
            continue
        if p == "warm":
            if do_pro and G.WARM: k.warm()
            continue
        e = [x for x in todo if x[2:] == p][0]; todo.remove(e)
        if do_pro: issue(e)
    if do_pro:
        if mid: mid()
        stamp(k)
        if G.WARM and "warm" not in pro: k.warm()
    if do_pro == "only": return
    scnt = k.s()
    def barwait(j):
        last = max(x for x in range(NST) if grp[x] == j)
        k.wait(vm=("dma", last))
    barwait(0); k("s_barrier")
    stamp(k); G.tl(k)
    done_bar = {0}
    def do_read(m, part):
        u, t = order[m]
        j = stg[m]
        if grp[j] not in done_bar:
            starts.append(len(k.L))
            barwait(grp[j])
            if prebar: prebar(grp[j])
            if not (X & 4): k("s_barrier")
            G.tl(k)
            done_bar.add(grp[j])
        if not (X & 8) or m < 16: wread(j, u % KPS, t, m % NB, m, part)
    base = len(k.L); starts = [base]
    for m in range(min(DW, n)): do_read(m, 0); do_read(m, 1)
    seen_a = set()
    bp = sorted(set(barpos.values())) + [n]
    lastp = None; lastl = -9; cnt = {}
    for i, (u, t) in enumerate(order):
        b0 = max(x for x in bp if x <= i); b1 = min(x for x in bp if x > i)
        pos, ln = i - b0, b1 - b0
        if not il and i + DW < n: do_read(i + DW, 0); do_read(i + DW, 1)
        k.wait(vm=("a", u) if u not in seen_a else None, lg=("w", i)); seen_a.add(u)
        if il:
            assert MT == 2
            mfma(u, t, i % NB, 0)
            if i + DW < n: do_read(i + DW, 0)
            mfma(u, t, i % NB, 1)
            if i + DW < n: do_read(i + DW, 1)
        else:
            for ii in range(MT): mfma(u, t, i % NB, ii)
        if prio:
            p = 3 - min(3, pos * 4 // ln)
            if p != lastp: k(f"s_setprio {p}"); lastp = p
        c = 0
        while c < lpm:
            e = next((x for x in todo if x[1] <= i), None)
            if e is None: break
            urgent = e[0] - i <= urg
            if not urgent:
                if win and not win(pos, ln) and not (gap == 1 and cap == 99 and e[1] == -2): break
                if i - lastl < gap: break
                if cnt.get(b0, 0) >= cap: break
            lastl = i; cnt[b0] = cnt.get(b0, 0) + 1
            todo.remove(e); issue(e); c += 1
        if fill and not (X & 16): fill(i, (u, t))
        if G.XS and i == G.XS: stamp(k)
    assert not todo, todo[:4]
    starts.append(len(k.L))
    blocks = [k.L[starts[i]:starts[i+1]] for i in range(len(starts) - 1)]
    del k.L[base:]
    reps = compress_loop(k, blocks, period, scnt, lname)
    stamp(k); G.tl(k)
    return reps

def dual(k, body, two=True):
    if not two:
        body(0); finish(k); return
    snap = (list(k.vmq), list(k.lgq), k._v, k._s, k.nst); tli = k.tli
    k(f"s_cmp_ge_u32 s{k.sw}, 4\ns_cbranch_scc1 {k.name}_P1")
    body(0); G.tend(k); k("s_endpgm")
    k.vmq, k.lgq, k._v, k._s, k.nst = list(snap[0]), list(snap[1]), snap[2], snap[3], snap[4]
    k.tli = tli
    if hasattr(k, "TV"): del k.TV
    k.label(f"{k.name}_P1")
    body(1); finish(k)

def mkwin(mode, ph):
    if mode == 0: return None
    if mode == 1: return lambda pos, n: (pos * 2 // n) == ph
    if mode == 2: return lambda pos, n: (pos * 2 // n) == ph and pos % 2 == 1
    if mode == 3: return lambda pos, n: pos % 2 == ph
    if mode == 4: return lambda pos, n: (pos * 4 // n) % 2 == ph
    if mode == 6: return lambda pos, n: pos % 3 == ph
    if mode == 7: return lambda pos, n: (pos * 2 // n) == ph and pos % 3 != 2
    if mode == 8: return lambda pos, n: (pos * 2 // n) == ph and pos % 4 != 3
    if mode == 9: return lambda pos, n: (pos * 2 // n) == 1 - ph
    if mode == 5: return lambda pos, n: pos % 3 == 0 and ((pos // 3) % 2 == ph)

def lane_parts(k):
    lane = k.lane
    g = k.v(); r = k.v(); cc = k.v()
    k(f"v_lshrrev_b32 v{g}, 4, v{lane}\nv_bfe_u32 v{r}, v{lane}, 2, 2\nv_and_b32 v{cc}, 3, v{lane}")
    return g, r, cc

def a_loader16(k, S_ws, vA, Abuf, MT, DA, base_off):
    sA = k.s()
    k(f"s_mov_b32 s{sA}, {base_off}")
    def aload(u, i):
        k.vm(f"buffer_load_dwordx4 {vr(Abuf + 4*((u % DA)*MT + i), 4)}, v{vA[i]}, {sr(S_ws,4)}, s{sA} offen offset:{1024*(u%4)}", ("a", u))
        if u % 4 == 3 and i == MT - 1:
            k(f"s_add_u32 s{sA}, s{sA}, 4096")
            if (G.XF & 32) and k.name.startswith(G.XK[G.XI]): k(f"s_and_b32 s{sA}, s{sA}, 0xffff3fff")
    return aload

def xg_reduce(k, regs, tmp):
    for r in regs:
        k(f"v_mov_b32 v{tmp}, v{r}\nv_permlane16_swap_b32 v{r}, v{tmp}\nv_add_f32 v{r}, v{r}, v{tmp}")
        k(f"v_mov_b32 v{tmp}, v{r}\nv_permlane32_swap_b32 v{r}, v{tmp}\nv_add_f32 v{r}, v{r}, v{tmp}")

def gen_res16(name, KTOT, wptr, a_off, is_down, R=6, DA=6, DW=4, NPRO=2, lpm=1, NX=0, CW=0):
    KPS, NT, MT = 2, 4, 2
    KSH = KTOT // 64
    NST = KSH // KPS
    SLOT = 16384
    R = min(R, NST)
    k = K(name, (256, 1, 1), (512, 1, 1), R * SLOT + 32768)
    start2(k, 256)
    lane, sw = k.lane, k.sw
    S_w = k.s(4); S_ws = k.s(4); S_x = k.s(4)
    smt = k.s(); snt = k.s(); smbl = k.s(); skh = k.s(); sm16 = k.s(); st = k.s(); st2 = k.s()
    k(f"s_and_b32 s{smt}, s2, 3\ns_lshl_b32 s{smt}, s{smt}, 2\ns_bfe_u32 s{st}, s2, 0x20003\ns_add_u32 s{smt}, s{smt}, s{st}")
    k(f"s_bfe_u32 s{snt}, s2, 0x10002\ns_lshl_b32 s{snt}, s{snt}, 3\ns_lshr_b32 s{st}, s2, 5\ns_add_u32 s{snt}, s{snt}, s{st}")
    if NX: k(f"s_xor_b32 s{snt}, s{snt}, {NX}")
    k(f"s_and_b32 s{smbl}, s{sw}, 3\ns_lshr_b32 s{skh}, s{sw}, 2")
    k(f"s_lshl_b32 s{sm16}, s{smt}, 3\ns_lshl_b32 s{st}, s{smbl}, 1\ns_add_u32 s{sm16}, s{sm16}, s{st}\ns_add_u32 s{sm16}, s{sm16}, s{skh}")
    vd = [k.v(), k.v()]; t = k.v(); t2 = k.v()
    k(f"v_lshrrev_b32 v{t}, 3, v{lane}\nv_lshlrev_b32 v{vd[0]}, 11, v{t}\nv_bfe_u32 v{t}, v{lane}, 4, 2\nv_lshlrev_b32 v{t}, 1, v{t}\nv_and_b32 v{t2}, 7, v{lane}\nv_xor_b32 v{t}, v{t}, v{t2}\nv_lshl_add_u32 v{vd[0]}, v{t}, 4, v{vd[0]}")
    k(f"s_mul_i32 s{st}, s{skh}, {KTOT//2}\ns_lshl_b32 s{st2}, s{smbl}, 4\ns_add_u32 s{st}, s{st}, s{st2}\ns_lshl_b32 s{st}, s{st}, 11\ns_lshl_b32 s{st2}, s{snt}, 7\ns_add_u32 s{st}, s{st}, s{st2}")
    k(f"v_add_u32 v{vd[0]}, s{st}, v{vd[0]}\nv_add_u32 v{vd[1]}, {8*2048}, v{vd[0]}")
    sW = k.s(); sL = k.s()
    k(f"s_mov_b32 s{sW}, 0\ns_lshl_b32 s{sL}, s{sw}, 11")
    if CW: k(f"s_mul_i32 s{st}, s{snt}, {NST*16384}\ns_add_u32 s{st}, s{st}, s{sL}\nv_lshlrev_b32 v{vd[0]}, 4, v{lane}\nv_add_u32 v{vd[0]}, s{st}, v{vd[0]}\nv_add_u32 v{vd[1]}, 1024, v{vd[0]}")
    def dma(j, i):
        k(f"s_add_u32 m0, s{sL}, {(j % R)*SLOT + i*1024}")
        k.vm(f"buffer_load_dwordx4 v{vd[i]}, {sr(S_w,4)}, s{sW} offen lds", ("dma", j))
        if i == 1:
            k(f"s_add_u32 s{sW}, s{sW}, {16384 if CW else 64*2048}")
            if (G.XF & 32) and k.name.startswith(G.XK[G.XI]): k(f"s_and_b32 s{sW}, s{sW}, 0xfffff")
    vA = [k.v(), k.v()]; vT = k.v()
    k(f"v_lshlrev_b32 v{vT}, 4, v{lane}")
    k(f"s_mul_i32 s{st2}, s{skh}, {KSH*1024}")
    k(f"s_mul_i32 s{st}, s{sm16}, {KTOT//32*1024}\ns_add_u32 s{st}, s{st}, s{st2}\nv_add_u32 v{vA[0]}, s{st}, v{vT}")
    k(f"s_xor_b32 s{st}, s{sm16}, 1\ns_mul_i32 s{st}, s{st}, {KTOT//32*1024}\ns_add_u32 s{st}, s{st}, s{st2}\nv_add_u32 v{vA[1]}, s{st}, v{vT}")
    Abuf = k.v(4*MT*DA, 4)
    aload = a_loader16(k, S_ws, vA, Abuf, MT, DA, a_off)
    g, r, cc = lane_parts(k)
    ra = [k.v() for _ in range(4)]
    if is_down: k(f"v_lshl_add_u32 v{t}, v{g}, 2, v{r}")
    else: k(f"v_lshrrev_b32 v{t}, 1, v{g}\nv_lshlrev_b32 v{t}, 4, v{t}\nv_and_b32 v{t2}, 1, v{g}\nv_lshl_add_u32 v{t}, v{t2}, 2, v{t}\nv_add_u32 v{t}, v{t}, v{r}")
    k(f"s_lshl_b32 s{st}, s{skh}, 13\nv_lshlrev_b32 v{t2}, 7, v{t}\nv_lshl_add_u32 v{t2}, v{cc}, 3, v{t2}\nv_add_u32 v{t2}, s{st}, v{t2}")
    k(f"v_bfe_u32 v{t}, v{t}, 1, 2")
    for tt in range(4):
        k(f"v_xor_b32 v{ra[tt]}, {tt}, v{t}\nv_lshl_add_u32 v{ra[tt]}, v{ra[tt]}, 5, v{t2}")
    RB = [LdsBases(k, ra[tt], R*SLOT - 1) for tt in range(4)]
    HOFF = 2048 if is_down else 1024
    Wb = k.v(4*(DW+1), 4)
    ACC = k.v(32, 4)
    RES = k.v(8, 4)
    vx = k.v(); sh = k.s(); vs = k.v()
    k(f"s_lshl_b32 s{st}, s{sm16}, 15\ns_lshl_b32 s{st2}, s{snt}, 7\ns_add_u32 s{st}, s{st}, s{st2}")
    k(f"v_and_b32 v{vx}, 15, v{lane}\nv_lshlrev_b32 v{vs}, 7, v{vx}\nv_lshlrev_b32 v{vx}, 11, v{vx}\nv_and_b32 v{t}, 1, v{g}\nv_lshl_add_u32 v{vx}, v{t}, 5, v{vx}\nv_lshrrev_b32 v{t}, 1, v{g}\nv_lshl_add_u32 v{vx}, v{t}, 4, v{vx}\nv_add_u32 v{vx}, s{st}, v{vx}")
    k(f"s_lshl_b32 s{sh}, s{sm16}, 15\ns_lshl_b32 s{st2}, s{snt}, 11\ns_add_u32 s{sh}, s{sh}, s{st2}\ns_add_u32 s{sh}, s{sh}, {WS_H}")
    if not is_down:
        k(f"s_lshl_b32 s{st}, s{sm16}, 11\ns_lshl_b32 s{st2}, s{snt}, 3\ns_add_u32 s{st}, s{st}, s{st2}\ns_add_u32 s{st}, s{st}, {WS_ST}")
        k(f"v_lshl_add_u32 v{vs}, v{g}, 28, v{vs}\nv_add_u32 v{vs}, s{st}, v{vs}")
    vw = k.v(); vrd = k.v()
    k(f"s_lshl_b32 s{st}, s{sw}, 12\ns_add_u32 s{st}, s{st}, {R*SLOT}\nv_add_u32 v{vw}, s{st}, v{vT}")
    k(f"s_xor_b32 s{st}, s{sw}, 4\ns_lshl_b32 s{st}, s{st}, 12\ns_add_u32 s{st}, s{st}, {R*SLOT}\nv_add_u32 v{vrd}, s{st}, v{vT}")
    karg(k)
    k.srd(S_w, k.P + wptr, KTOT * 2048); k.srd(S_ws, k.PWS, WS_SIZE)
    k.srd(S_x, k.P + (P_OUT if is_down else P_X), 4*MB)
    def res_load():
        if is_down:
            for i in range(2): k.vm(f"buffer_load_dwordx4 {vr(RES+4*i,4)}, v{vT}, {sr(S_ws,4)}, s{sh} offen offset:{1024*i}", "res")
        else:
            for i in range(2): k.vm(f"buffer_load_dwordx4 {vr(RES+4*i,4)}, v{vx}, {sr(S_x,4)}, 0 offen offset:{64*i}", "res")
    def wread(j, uu, t, b, tag, part):
        off = (j % R)*SLOT + uu*4096
        k.ds(f"ds_read_b64_tr_b16 {vr(Wb+4*b+2*part,2)}, {RB[t].at(off+HOFF*part)}", ("w", tag))
    def mfma(u, t, b, i):
        a = vr(Abuf + 4*((u % DA)*MT + i), 4); w = vr(Wb + 4*b, 4); d = vr(ACC + 16*i + 4*t, 4)
        k(f"{MF} {d}, {w}, {a}, {d if u > 0 else '0'}")
    order = [(u, t) for u in range(KSH) for t in range(NT)]
    pro = []
    for j in range(NPRO):
        pro += [("d", j, q) for q in range(2)] + [("a", KPS*j + uu, i) for uu in range(KPS) for i in range(MT)]
    nsl = len(order)
    def fill(i, s):
        if i == nsl - 6*NT: res_load()
    period = math.lcm(R, DA // math.gcd(DA, KPS), 2, (DW + 1) // math.gcd(DW + 1, KPS*NT))
    reps = mainloop16(k, order, MT, KPS, NST, R, DA, DW, 2, dma, aload, wread, mfma, name + "_L", pro, period, fill, lpm)
    for i in range(4): k.ds(f"ds_write_b128 v{vw}, {vr(ACC+16+4*i,4)} offset:{1024*i}")
    k.wait(vm="res")
    F = Abuf
    if not is_down:
        for p in range(2):
            k(f"v_permlane16_swap_b32 v{RES+4*p}, v{RES+4*p+2}\nv_permlane16_swap_b32 v{RES+4*p+1}, v{RES+4*p+3}")
    for e in range(8):
        k(f"v_lshlrev_b32 v{F+2*e}, 16, v{RES+e}\nv_and_b32 v{F+2*e+1}, 0xffff0000, v{RES+e}")
    for e in range(16): k(f"v_add_f32 v{ACC+e}, v{ACC+e}, v{F+e}")
    k.wait(lg="all"); k("s_barrier")
    for i in range(4): k.ds(f"ds_read_b128 {vr(ACC+16+4*i,4)}, v{vrd} offset:{1024*i}", i)
    SM = k.v(2, 2)
    for p in range(2):
        k.wait(lg=2*p+1)
        for e in range(8): k(f"v_add_f32 v{ACC+8*p+e}, v{ACC+8*p+e}, v{ACC+16+8*p+e}")
        o = Wb + 4*p
        for e in range(4): k(f"v_cvt_pk_bf16_f32 v{o+e}, v{ACC+8*p+2*e}, v{ACC+8*p+2*e+1}")
        if is_down:
            k(f"v_permlane16_swap_b32 v{o}, v{o+2}\nv_permlane16_swap_b32 v{o+1}, v{o+3}")
            k.vm(f"buffer_store_dwordx4 {vr(o,4)}, v{vx}, {sr(S_x,4)}, 0 offen offset:{64*p}")
        else:
            k.vm(f"buffer_store_dwordx4 {vr(o,4)}, v{vT}, {sr(S_ws,4)}, s{sh} offen offset:{1024*p}")
    if not is_down:
        k(f"v_add_f32 v{SM}, v{ACC}, v{ACC+1}\nv_mul_f32 v{SM+1}, v{ACC}, v{ACC}\nv_add_f32 v{t}, v{ACC+2}, v{ACC+3}\nv_mul_f32 v{t2}, v{ACC+1}, v{ACC+1}")
        for e in range(2, 16):
            k(f"v_fmac_f32 v{SM+1 if e % 2 == 0 else t2}, v{ACC+e}, v{ACC+e}")
            if e >= 4: k(f"v_add_f32 v{SM if e % 2 == 0 else t}, v{SM if e % 2 == 0 else t}, v{ACC+e}")
        k(f"v_add_f32 v{SM}, v{SM}, v{t}\nv_add_f32 v{SM+1}, v{SM+1}, v{t2}")
        k(f"v_mov_b32 v{t}, v{SM}\nv_mov_b32 v{t2}, v{SM+1}\nv_permlane16_swap_b32 v{SM}, v{t}\nv_permlane16_swap_b32 v{SM+1}, v{t2}\nv_add_f32 v{SM}, v{SM}, v{t}\nv_add_f32 v{SM+1}, v{SM+1}, v{t2}")
        k(f"v_mov_b32 v{t}, v{SM}\nv_mov_b32 v{t2}, v{SM+1}\nv_permlane32_swap_b32 v{SM}, v{t}\nv_permlane32_swap_b32 v{SM+1}, v{t2}\nv_add_f32 v{SM}, v{SM}, v{t}\nv_add_f32 v{SM+1}, v{SM+1}, v{t2}")
        k.vm(f"buffer_store_dwordx2 {vr(SM,2)}, v{vs}, {sr(S_ws,4)}, 0 offen")
    finish(k)
    return k

def gen_ffn1_16(name, R=5, DA=6, DW=4, TAIL=0, lpm=1, WIN=0, IL=0, PRIO=0, BAR2=0, SP=0, PRO=0, STS=6, GAP=1, URG=None, CAP=99):
    KPS, NST, NT, MT = 2, 16, 14, 2
    UPO = 14336
    SLOT = 28672
    CS = R * SLOT
    k = K(name, (256, 1, 1), (512, 1, 1), R * SLOT + 1024)
    start2(k, 256)
    lane, sw = k.lane, k.sw
    S_w = k.s(4); S_ws = k.s(4)
    smat = k.s(); swq = k.s(); snt = k.s(); sm16 = k.s(); st = k.s(); st2 = k.s(); sodd = k.s()
    k(f"s_lshr_b32 s{smat}, s{sw}, 2\ns_and_b32 s{swq}, s{sw}, 3")
    k(f"s_and_b32 s{snt}, s2, 7\ns_lshl_b32 s{snt}, s{snt}, 2\ns_bfe_u32 s{st}, s2, 0x20003\ns_add_u32 s{snt}, s{snt}, s{st}\ns_and_b32 s{sodd}, s{snt}, 1")
    k(f"s_lshr_b32 s{sm16}, s2, 5\ns_lshl_b32 s{sm16}, s{sm16}, 3\ns_add_u32 s{sm16}, s{sm16}, s{sw}\ns_lshl_b32 s{sm16}, s{sm16}, 1")
    vd = [k.v() for _ in range(4)]; q = k.v(); rr = k.v(); t = k.v(); sm = k.s(); sp = k.s()
    k(f"s_mov_b32 s{sm}, 4682\ns_mov_b32 s{sp}, 7168")
    k(f"s_mul_i32 s{st}, s{swq}, {16*7168}\ns_mul_i32 s{st2}, s{snt}, 224\ns_add_u32 s{st}, s{st}, s{st2}")
    for i in range(4):
        k(f"v_add_u32 v{q}, {64*i}, v{lane}\nv_mul_lo_u32 v{rr}, v{q}, s{sm}\nv_lshrrev_b32 v{rr}, 16, v{rr}")
        k(f"v_mul_u32_u24 v{t}, 14, v{rr}\nv_sub_u32 v{t}, v{q}, v{t}\nv_lshlrev_b32 v{t}, 4, v{t}\nv_mul_lo_u32 v{rr}, v{rr}, s{sp}\nv_add3_u32 v{vd[i]}, v{rr}, v{t}, s{st}")
    sW = k.s(); sL = k.s()
    k(f"s_mov_b32 s{sW}, 0\ns_mul_i32 s{sL}, s{smat}, {UPO}\ns_mul_i32 s{st}, s{swq}, 3584\ns_add_u32 s{sL}, s{sL}, s{st}")
    def dma(j, i):
        k(f"s_add_u32 m0, s{sL}, {(j % R)*SLOT + i*1024}")
        if i == 3: k("s_mov_b32 exec_hi, 0")
        k.vm(f"buffer_load_dwordx4 v{vd[i]}, {sr(S_w,4)}, s{sW} offen lds", ("dma", j))
        if i == 3: k(f"s_mov_b32 exec_hi, -1\ns_add_u32 s{sW}, s{sW}, {64*7168}")
    vA = [k.v(), k.v()]; vT = k.v()
    k(f"v_lshlrev_b32 v{vT}, 4, v{lane}\ns_lshl_b32 s{st}, s{sm16}, 15\nv_add_u32 v{vA[0]}, s{st}, v{vT}\nv_add_u32 v{vA[1]}, 32768, v{vA[0]}")
    Abuf = k.v(4*MT*DA, 4)
    aload = a_loader16(k, S_ws, vA, Abuf, MT, DA, WS_H)
    g, r, cc = lane_parts(k)
    a1 = k.v(); a2 = k.v(); c1 = k.v(); c2 = k.v()
    k(f"v_lshl_add_u32 v{a2}, v{g}, 2, v{r}\nv_mul_u32_u24 v{a2}, 224, v{a2}\nv_lshl_add_u32 v{a2}, v{cc}, 3, v{a2}")
    k(f"s_lshl_b32 s{st}, s{sodd}, 5\nv_add_u32 v{a1}, s{st}, v{a2}\ns_mul_i32 s{st}, s{sodd}, 192\ns_sub_u32 s{st}, 192, s{st}\nv_add_u32 v{a2}, s{st}, v{a2}")
    k(f"s_lshl_b32 s{st}, s{st}, 1\ns_add_u32 s{st}, s{st}, {CS}\nv_lshl_add_u32 v{c2}, v{g}, 4, s{st}\ns_lshl_b32 s{st}, s{sodd}, 6\ns_add_u32 s{st}, s{st}, {CS}\nv_lshl_add_u32 v{c1}, v{g}, 4, s{st}")
    B1 = LdsBases(k, a1, R*SLOT - 1); B2 = LdsBases(k, a2, R*SLOT - 1)
    vs = k.v(); ss = k.s(); vc = k.v()
    k(f"v_and_b32 v{vs}, 15, v{lane}\nv_lshlrev_b32 v{vs}, 7, v{vs}\nv_lshl_add_u32 v{vs}, v{g}, 5, v{vs}\ns_lshl_b32 s{ss}, s{sm16}, 11\ns_add_u32 s{ss}, s{ss}, {WS_ST}")
    k(f"v_cmp_le_u32 vcc, 28, v{lane}\nv_mov_b32 v{t}, {3584*4 - 448}\nv_cndmask_b32 v{vc}, 0, v{t}, vcc\nv_add_u32 v{vc}, v{vc}, v{vT}")
    k(f"v_cmp_le_u32 vcc, 56, v{lane}\nv_mov_b32 v{t}, 0x10000000\nv_cndmask_b32 v{vc}, v{vc}, v{t}, vcc")
    sc = k.s(); k(f"s_mul_i32 s{sc}, s{snt}, 448\ns_add_u32 s{sc}, s{sc}, {WS_CS}")
    so = k.s(); so6 = k.s(); v6 = k.v()
    k(f"s_mul_i32 s{so}, s{sm16}, 112\ns_lshr_b32 s{st}, s{snt}, 1\ns_mul_i32 s{st}, s{st}, 7\ns_add_u32 s{so}, s{so}, s{st}\ns_add_u32 s{so6}, s{so}, 3\ns_lshl_b32 s{st}, s{sodd}, 2\ns_add_u32 s{so}, s{so}, s{st}")
    k(f"s_lshl_b32 s{so}, s{so}, 10\ns_add_u32 s{so}, s{so}, {WS_ACT}\ns_lshl_b32 s{so6}, s{so6}, 10\ns_add_u32 s{so6}, s{so6}, {WS_ACT}")
    vO1 = k.v(); v61 = k.v()
    k(f"s_lshl_b32 s{st}, s{sodd}, 3\nv_add_u32 v{v6}, s{st}, v{vT}\nv_add_u32 v{vO1}, {112*1024}, v{vT}\nv_add_u32 v{v61}, {112*1024}, v{v6}")
    Wb = k.v(4*(DW+1), 4)
    ACC = k.v(112, 4)
    STT = k.v(16, 4)
    NM = k.v(2, 2); VAR = k.v(2, 2); CE = k.v(2, 2)
    OUT = k.v(8, 4)
    karg(k)
    k(f"s_cmp_eq_u32 s{smat}, 0\ns_cselect_b32 s{S_w}, s{k.P+P_WG}, s{k.P+P_WU}\ns_cselect_b32 s{S_w+1}, s{k.P+P_WG+1}, s{k.P+P_WU+1}\ns_mov_b32 s{S_w+2}, {7*MB}\ns_mov_b32 s{S_w+3}, 0x20000")
    k.srd(S_ws, k.PWS, WS_SIZE)
    def stl(i, hh):
        k.vm(f"buffer_load_dwordx4 {vr(STT+8*i+4*hh,4)}, v{vs}, {sr(S_ws,4)}, s{ss} offen offset:{2048*i+16*hh}", "st")
    def csl():
        k(f"s_mov_b32 m0, {CS}")
        k.vm(f"buffer_load_dwordx4 v{vc}, {sr(S_ws,4)}, s{sc} offen lds", ("dma", 2 if PRO else 1))
    def mid():
        for i in range(2):
            for hh in range(2): stl(i, hh)
        csl()
    def wread(j, uu, t, b, tag, part):
        p, mat = divmod(t, 2)
        off = (j % R)*SLOT + uu*7168 + mat*UPO + (32*p if p < 6 else 0)
        B = B1 if p < 6 else B2
        k.ds(f"ds_read_b64_tr_b16 {vr(Wb+4*b+2*part,2)}, {B.at(off+3584*part)}", ("w", tag))
    def mfma(u, t, b, i):
        a = vr(Abuf + 4*((u % DA)*MT + i), 4); w = vr(Wb + 4*b, 4); d = vr(ACC + 8*t + 4*i, 4)
        k(f"{MF} {d}, {w}, {a}, {d if u > 0 else '0'}")
    KS = KPS * NST
    order = [(u, t) for u in range(KS - TAIL) for t in range(NT)]
    if TAIL:
        for p in range(7):
            for u in range(KS - TAIL, KS):
                order += [(u, 2*p), (u, 2*p+1)]
    fills = {}
    def at(i, f): fills.setdefault(i, []).append(f)
    def spread(i0, lines, per):
        for n, l in enumerate(lines):
            at(i0 + n // per, l if callable(l) else (lambda l=l: k(l)))
        return i0 + (len(lines) + per - 1) // per
    L = [lambda: k.wait(vm="st")]
    for i in range(2):
        S = STT + 8*i
        L += [f"v_add_f32 v{S}, v{S}, v{S+2}", f"v_add_f32 v{S+1}, v{S+1}, v{S+3}", f"v_add_f32 v{S+4}, v{S+4}, v{S+6}", f"v_add_f32 v{S+5}, v{S+5}, v{S+7}",
              f"v_add_f32 v{S}, v{S}, v{S+4}", f"v_add_f32 v{S+1}, v{S+1}, v{S+5}"]
    for sw_ in ("v_permlane16_swap_b32", "v_permlane32_swap_b32"):
        regs = [STT, STT+1, STT+8, STT+9]
        L += [f"v_mov_b32 v{x+2}, v{x}" for x in regs]
        L += [f"{sw_} v{x}, v{x+2}" for x in regs]
        L += [f"v_add_f32 v{x}, v{x}, v{x+2}" for x in regs]
    for i in range(2):
        S = STT + 8*i
        L += [f"v_mul_f32 v{NM+i}, {f32(-1/1024)}, v{S}", f"v_mul_f32 v{VAR+i}, {f32(1/1024)}, v{S+1}"]
    for i in range(2): L += [f"v_fma_f32 v{VAR+i}, -v{NM+i}, v{NM+i}, v{VAR+i}"]
    for i in range(2): L += [f"v_max_f32 v{VAR+i}, 0, v{VAR+i}"]
    for i in range(2): L += [f"v_add_f32 v{VAR+i}, {f32(1e-5)}, v{VAR+i}"]
    for i in range(2): L += [f"v_rsq_f32 v{CE+i}, v{VAR+i}"]
    for i in range(2): L += [f"v_mul_f32 v{CE+i}, {f32(-math.log2(math.e))}, v{CE+i}"]
    e = spread(STS, L, 2)
    i0 = (4 if PRO else 2)*NT + DW + 2
    i0 = max(i0, e + 3)
    for t_ in range(NT):
        p, mat = divmod(t_, 2)
        b = i0 + 4*t_
        while any(min((order[b+d][1] - t_) % NT, (t_ - order[b+d][1]) % NT) < 3 for d in range(1, 5)): b += 1
        Q = STT + 4*(t_ % 4)
        at(b - 3, lambda Q=Q, p=p, mat=mat, t_=t_: k.ds(f"ds_read_b128 {vr(Q,4)}, v{c1 if p < 6 else c2} offset:{448*mat + (64*p if p < 6 else 0)}", ("cs", t_)))
        Lc = [lambda t_=t_: k.wait(lg=("cs", t_))]
        Lf = [f"v_fmac_f32 v{ACC+8*t_+4*i+e}, v{NM+i}, v{Q+e}" for i in range(2) for e in range(4)]
        at(b + 1, Lc[0]); spread(b + 1, Lf, 2)
        i0 = b - 4*t_
    def epi(p):
        Gs = [ACC + 16*p + e for e in range(8)]; Us = [ACC + 16*p + 8 + e for e in range(8)]
        E = STT
        L = [f"v_mul_f32 v{E+e}, v{CE + e//4}, v{Gs[e]}" for e in range(8)]
        L += [f"v_exp_f32 v{E+e}, v{E+e}" for e in range(8)]
        L += [f"v_mul_f32 v{Gs[e]}, v{Gs[e]}, v{Us[e]}" for e in range(8)]
        L += [f"v_fma_f32 v{E+e}, v{E+e}, v{VAR + e//4}, v{VAR + e//4}" for e in range(8)]
        L += [f"v_rcp_f32 v{E+e}, v{E+e}" for e in range(8)]
        L += [f"v_mul_f32 v{Gs[e]}, v{Gs[e]}, v{E+e}" for e in range(8)]
        for i in range(2):
            o = OUT + 4*i + 2*(p % 2)
            L += [f"v_cvt_pk_bf16_f32 v{o}, v{Gs[4*i]}, v{Gs[4*i+1]}", f"v_cvt_pk_bf16_f32 v{o+1}, v{Gs[4*i+2]}, v{Gs[4*i+3]}"]
        if p == 6:
            for i in range(2): L += [lambda i=i: k.vm(f"buffer_store_dwordx2 {vr(OUT+4*i,2)}, v{v61 if i else v6}, {sr(S_ws,4)}, s{so6} offen")]
        elif p % 2:
            for i in range(2): L += [lambda i=i: k.vm(f"buffer_store_dwordx4 {vr(OUT+4*i,4)}, v{vO1 if i else vT}, {sr(S_ws,4)}, s{so} offen offset:{1024*(p//2)}")]
        return L
    if TAIL:
        b0 = (KS - TAIL) * NT
        for p in range(6):
            L = epi(p)
            per = -(-len(L) // (2*TAIL - 1))
            spread(b0 + (p + 1)*2*TAIL + 1, L, per)
    used = set()
    def fill(i, s):
        used.add(i)
        for f in fills.get(i, []): f()
    pro = [("d", 0, q) for q in range(4)] + [("a", 0, 0), ("a", 0, 1), ("a", 1, 0), ("a", 1, 1)]
    extra = []
    if PRO:
        D = lambda j: [("d", j, q) for q in range(4)]
        A_ = lambda u: [("a", u, 0), ("a", u, 1)]
        pro = {1: D(0) + A_(0) + ["bar"] + A_(1) + D(1) + A_(2),
               2: D(0) + A_(0) + ["bar"] + A_(1) + D(1),
               3: D(0) + A_(0) + A_(1) + D(1),
               4: D(0) + A_(0) + ["bar"] + A_(1) + D(1) + A_(2) + A_(3),
               5: D(0) + A_(0) + A_(1),
               6: D(0) + A_(0) + ["warm"] + A_(1) + D(1),
               7: D(0) + A_(0) + ["warm", "bar"] + A_(1) + D(1),
               8: D(0) + A_(0) + ["warm"] + A_(1) + D(1) + A_(2)}[PRO]
        mid = None
        extra = [(STS - 1, lambda i=i, hh=hh: stl(i, hh)) for i in range(2) for hh in range(2)] + [(2*NT*2 - DW - 1, csl)]
    period = math.lcm(R, DA // math.gcd(DA, KPS), 2, (DW + 1) // math.gcd(DW + 1, KPS*NT))
    bars = None
    if BAR2: bars = {0, 1} | set(range(2, NST, 2)); period = period // 2 if period % 2 == 0 else period
    args = (k, order, MT, KPS, NST, R, DA, DW, 4, dma, aload, wread, mfma)
    mainloop16(*args, name + "_L", pro, period, mid=mid, do_pro="only", bars=bars, extra=extra)
    def body(ph):
        if SP and ph == SP - 1: k("s_setprio 1")
        mainloop16(*args, name + f"_L{ph}", pro, period, fill, lpm, do_pro=False, win=mkwin(WIN, ph), il=IL, prio=PRIO, bars=bars, extra=extra, gap=GAP, urg=URG, cap=CAP)
        assert G.XF or not (set(fills) - used)
        for p in range(6 if TAIL else 0, 7):
            for l in epi(p): l() if callable(l) else k(l)
    dual(k, body, WIN or SP)
    return k

WS_X = 44*MB
def gen_ffn2s(name, R=8, DA=6, DW=3, lpm=1, IL=0, PRIO=0, WIN=0, CAP=99, GAP=1, URG=None, PRO=0, DM=0, CW=0, TAIL=0, LAG=2, NOX=0, PT=0, PTN=3, SK=0, B2=1):
    KPS, NT, MT, NST = 1, 8, 2, 28
    SLOT = 16384
    k = K(name, (256, 1, 1), (512, 1, 1), R * SLOT + 32768)
    start2(k, 256)
    lane, sw = k.lane, k.sw
    S_w = k.s(4); S_ws = k.s(4); S_x = k.s(4)
    smt = k.s(); snt = k.s(); ss = k.s(); smbl = k.s(); skq = k.s(); sm16 = k.s(); st = k.s(); st2 = k.s(); sn2 = k.s()
    k(f"s_and_b32 s{smt}, s2, 3\ns_lshl_b32 s{smt}, s{smt}, 2\ns_bfe_u32 s{st}, s2, 0x20003\ns_add_u32 s{smt}, s{smt}, s{st}")
    k(f"s_bfe_u32 s{ss}, s2, 0x10002\ns_lshr_b32 s{snt}, s2, 5\ns_lshl_b32 s{sn2}, s{snt}, 1\ns_add_u32 s{sn2}, s{sn2}, s{ss}")
    k(f"s_and_b32 s{smbl}, s{sw}, 3\ns_lshr_b32 s{skq}, s{sw}, 2")
    k(f"s_lshl_b32 s{sm16}, s{smt}, 3\ns_lshl_b32 s{st}, s{smbl}, 1\ns_add_u32 s{sm16}, s{sm16}, s{st}\ns_add_u32 s{sm16}, s{sm16}, s{skq}")
    sk4 = k.s(); k(f"s_lshl_b32 s{sk4}, s{ss}, 1\ns_add_u32 s{sk4}, s{sk4}, s{skq}")
    vd = [k.v(), k.v()]; t = k.v(); t2 = k.v()
    sW = k.s(); sL = k.s()
    if DM == 0:
        k(f"v_lshrrev_b32 v{t}, 3, v{lane}\nv_lshlrev_b32 v{vd[0]}, 11, v{t}\nv_bfe_u32 v{t}, v{lane}, 4, 2\nv_lshlrev_b32 v{t}, 1, v{t}\nv_and_b32 v{t2}, 7, v{lane}\nv_xor_b32 v{t}, v{t}, v{t2}\nv_lshl_add_u32 v{vd[0]}, v{t}, 4, v{vd[0]}")
        k(f"s_mul_i32 s{st}, s{sk4}, 896\ns_lshl_b32 s{st2}, s{smbl}, 3\ns_add_u32 s{st}, s{st}, s{st2}\ns_lshl_b32 s{st}, s{st}, 11\ns_lshl_b32 s{st2}, s{sn2}, 7\ns_add_u32 s{st}, s{st}, s{st2}")
        k(f"v_add_u32 v{vd[1]}, s{st}, v{vd[0]}\nv_xor_b32 v{vd[0]}, 128, v{vd[1]}")
        k(f"s_lshl_b32 s{sL}, s{skq}, 13\ns_lshl_b32 s{st}, s{smbl}, 10\ns_add_u32 s{sL}, s{sL}, s{st}")
        DI = 4096
    else:
        k(f"v_lshrrev_b32 v{t}, 4, v{lane}\nv_lshlrev_b32 v{vd[0]}, 11, v{t}\nv_lshlrev_b32 v{t}, 1, v{t}\nv_and_b32 v{t2}, 15, v{lane}\nv_xor_b32 v{t}, v{t}, v{t2}\nv_lshl_add_u32 v{vd[0]}, v{t}, 4, v{vd[0]}")
        k(f"s_mul_i32 s{st}, s{sk4}, 896\ns_lshl_b32 s{st2}, s{smbl}, 3\ns_add_u32 s{st}, s{st}, s{st2}\ns_lshl_b32 s{st}, s{st}, 11\ns_lshl_b32 s{st2}, s{snt}, 8\ns_add_u32 s{st}, s{st}, s{st2}")
        k(f"s_xor_b32 s{st2}, s{ss}, 1\ns_lshl_b32 s{st2}, s{st2}, 7\nv_xor_b32 v{vd[0]}, s{st2}, v{vd[0]}\nv_add_u32 v{vd[0]}, s{st}, v{vd[0]}\nv_xor_b32 v{vd[1]}, 128, v{vd[0]}\nv_add_u32 v{vd[1]}, {4*2048}, v{vd[1]}")
        k(f"s_lshl_b32 s{sL}, s{sw}, 11")
        DI = 1024
    k(f"s_mov_b32 s{sW}, 0")
    vA = [k.v(), k.v()]; vT = k.v()
    k(f"v_lshlrev_b32 v{vT}, 4, v{lane}")
    if CW: k(f"s_mul_i32 s{st}, s{sn2}, {NST*16384}\ns_lshl_b32 s{st2}, s{sw}, 11\ns_add_u32 s{st}, s{st}, s{st2}\nv_add_u32 v{vd[0]}, s{st}, v{vT}\nv_add_u32 v{vd[1]}, 1024, v{vd[0]}")
    sW1 = k.s(); k(f"s_mov_b32 s{sW1}, 0")
    assert not (SK and DM)
    def dma(j, i):
        k(f"s_add_u32 m0, s{sL}, {(j % R)*SLOT + i*DI}")
        so = sW1 if i else sW
        k.vm(f"buffer_load_dwordx4 v{vd[i]}, {sr(S_w,4)}, s{so} offen lds", ("dma", j))
        k(f"s_add_u32 s{so}, s{so}, {16384 if CW else 32*2048}")
    k(f"s_mul_i32 s{st2}, s{sk4}, {28*1024}")
    k(f"s_mul_i32 s{st}, s{sm16}, {112*1024}\ns_add_u32 s{st}, s{st}, s{st2}\nv_add_u32 v{vA[0]}, s{st}, v{vT}")
    k(f"s_xor_b32 s{st}, s{sm16}, 1\ns_mul_i32 s{st}, s{st}, {112*1024}\ns_add_u32 s{st}, s{st}, s{st2}\nv_add_u32 v{vA[1]}, s{st}, v{vT}")
    Abuf = k.v(4*MT*DA, 4)
    aload = a_loader16(k, S_ws, vA, Abuf, MT, DA, WS_ACT)
    g, r, cc = lane_parts(k)
    k(f"v_lshl_add_u32 v{t}, v{g}, 2, v{r}")
    if DM == 0:
        ra = [k.v() for _ in range(4)]
        k(f"s_lshl_b32 s{st}, s{skq}, 13\nv_lshlrev_b32 v{t2}, 7, v{t}\nv_lshl_add_u32 v{t2}, v{cc}, 3, v{t2}\nv_add_u32 v{t2}, s{st}, v{t2}")
        k(f"v_bfe_u32 v{t}, v{t}, 1, 2")
        for tt in range(4): k(f"v_xor_b32 v{ra[tt]}, {tt}, v{t}\nv_lshl_add_u32 v{ra[tt]}, v{ra[tt]}, 5, v{t2}")
        RB = [LdsBases(k, ra[tt], R*SLOT - 1) for tt in range(4)]
        radr = lambda j, tt, part: RB[tt & 3].at((j % R)*SLOT + (tt >> 2)*4096 + 2048*part)
    else:
        ra = [k.v() for _ in range(8)]
        k(f"s_lshl_b32 s{st}, s{skq}, 13\nv_lshlrev_b32 v{t2}, 8, v{t}\nv_lshl_add_u32 v{t2}, v{cc}, 3, v{t2}\nv_add_u32 v{t2}, s{st}, v{t2}")
        k(f"v_and_b32 v{t}, 7, v{t}")
        for tt in range(8): k(f"v_xor_b32 v{ra[tt]}, {tt}, v{t}\nv_lshl_add_u32 v{ra[tt]}, v{ra[tt]}, 5, v{t2}")
        RB = [LdsBases(k, ra[tt], R*SLOT - 1) for tt in range(8)]
        radr = lambda j, tt, part: RB[tt].at((j % R)*SLOT + 4096*part)
    Wb = k.v(4*(DW+1), 4)
    ACC = k.v(64, 4)
    RES = k.v(8, 4); XB = k.v(16, 4)
    vx = k.v(); sh = k.s(); sxs = k.s(); sxr = k.s(); scn = k.s()
    k(f"s_lshl_b32 s{st}, s{sm16}, 15\ns_lshl_b32 s{st2}, s{sn2}, 7\ns_add_u32 s{st}, s{st}, s{st2}")
    k(f"v_and_b32 v{vx}, 15, v{lane}\nv_lshlrev_b32 v{vx}, 11, v{vx}\nv_and_b32 v{t}, 1, v{g}\nv_lshl_add_u32 v{vx}, v{t}, 5, v{vx}\nv_lshrrev_b32 v{t}, 1, v{g}\nv_lshl_add_u32 v{vx}, v{t}, 4, v{vx}\nv_add_u32 v{vx}, s{st}, v{vx}")
    k(f"s_lshl_b32 s{sh}, s{sm16}, 15\ns_lshl_b32 s{st2}, s{sn2}, 11\ns_add_u32 s{sh}, s{sh}, s{st2}\ns_add_u32 s{sh}, s{sh}, {WS_H}")
    k(f"s_lshl_b32 s{sxr}, s2, 15\ns_lshl_b32 s{st}, s{sw}, 12\ns_add_u32 s{sxr}, s{sxr}, s{st}\ns_add_u32 s{sxr}, s{sxr}, {WS_X}\ns_xor_b32 s{sxs}, s{sxr}, {4 << 15}")
    assert WS_X % (8 << 15) == 0
    vw = k.v(); vrd = k.v()
    k(f"s_lshl_b32 s{st}, s{sw}, 12\ns_add_u32 s{st}, s{st}, {R*SLOT}\nv_add_u32 v{vw}, s{st}, v{vT}\nv_xor_b32 v{vrd}, {4 << 12}, v{vw}")
    KOFF = R*SLOT - ((NST - 8) % R if R == 8 else 0)*SLOT
    fr = [(NST + i) % R for i in range(R - 2)]; assert fr[1] == fr[0] + 1
    vw2 = k.v(); vrd2 = k.v()
    k(f"v_subrev_u32 v{vw2}, {(R - fr[0])*SLOT}, v{vw}\nv_xor_b32 v{vrd2}, {4 << 12}, v{vw2}")
    karg(k)
    k.srd(S_w, k.P + P_WD, 3584 * 2048); k.srd(S_ws, k.PWS, WS_SIZE); k.srd(S_x, k.P + P_OUT, 4*MB)
    def res_load(i): k.vm(f"buffer_load_dwordx4 {vr(RES+4*i,4)}, v{vT}, {sr(S_ws,4)}, s{sh} offen offset:{1024*i}", "res")
    def wread(j, uu, t_, b, tag, part):
        k.ds(f"ds_read_b64_tr_b16 {vr(Wb+4*b+2*part,2)}, {radr(j, t_, part)}", ("w", tag))
    def mfma(u, t_, b, i):
        a = vr(Abuf + 4*((u % DA)*MT + i), 4); w = vr(Wb + 4*b, 4); d = vr(ACC + 32*i + 4*t_, 4)
        k(f"{MF} {d}, {w}, {a}, {d if u > 0 else '0'}")
    NG = NST + SK
    order = []
    for v in range(NG):
        sd = [(v, t_, v) for t_ in range(4)] if v < NST else []
        kp = [(v - SK, t_, v) for t_ in range(4, 8)] if v >= SK else []
        order += sd + kp if (v == NST - 1 or not SK) else kp + sd
    dl = lambda j: ([0] if j < NST else []) + ([1] if j >= SK else [])
    D = lambda j: [("d", j, q) for q in dl(j)]
    A_ = lambda u: [("a", u, 0), ("a", u, 1)]
    pro = {0: D(0) + A_(0) + ["warm"] + D(1) + A_(1) + D(2) + A_(2),
           1: D(0) + A_(0) + ["warm"] + D(1) + A_(1),
           2: D(0) + A_(0) + D(1) + A_(1) + ["warm"] + D(2) + A_(2) + D(3) + A_(3),
           3: D(0) + A_(0) + ["warm"] + D(1) + A_(1) + D(2) + A_(2) + D(3) + A_(3)}[PRO]
    nsl = len(order)
    b0 = min(i for i, o in enumerate(order) if o[2] == NST) if SK else nsl
    lastA = max(i for i, o in enumerate(order) if o[0] == NST - 1 - DA)
    extra = [(nsl, lambda i=i: res_load(i)) for i in range(2)]
    XA = lastA + 2
    bars = None
    if SK and B2: bars = set(range(NST + 2)) | set(range(NST + 3, NG, 2))
    NX = 2 if G.XB16 else 4
    def send_w(i): k.ds(f"ds_write_b128 v{vw}, {vr(ACC+32+4*i,4)} offset:{1024*i}", "sw")
    def send_r(i): k.ds(f"ds_read_b128 {vr(ACC+32+4*i,4)}, v{vrd} offset:{1024*i}", ("s", i))
    def send_c(i):
        k.wait(lg=("s", i))
        for e in range(4): k(f"v_add_f32 v{ACC+4*i+e}, v{ACC+4*i+e}, v{ACC+32+4*i+e}")
        if G.XB16:
            for e in range(2): k(f"v_cvt_pk_bf16_f32 v{XB+8+2*i+e}, v{ACC+4*i+2*e}, v{ACC+4*i+2*e+1}")
            for e in range(2): k(f"v_min_u32 v{XB+8+2*i+e}, -2, v{XB+8+2*i+e}")
            if i % 2: k.vm(f"buffer_store_dwordx4 {vr(XB+8+2*i-2,4)}, v{vT}, {sr(S_ws,4)}, s{sxs} offen offset:{1024*(i//2)} sc1", "xs")
        else:
            for e in range(4): k(f"v_min_u32 v{ACC+4*i+e}, -2, v{ACC+4*i+e}")
            k.vm(f"buffer_store_dwordx4 {vr(ACC+4*i,4)}, v{vT}, {sr(S_ws,4)}, s{sxs} offen offset:{1024*i} sc1", "xs")
    def poll_ld():
        for i in range(NX): k.vm(f"buffer_load_dwordx4 {vr(XB+4*i,4)}, v{vT}, {sr(S_ws,4)}, s{sxr} offen offset:{1024*i} sc1")
    bx = b0 + 4 - DW
    def fill(i, s):
        if not SK: return
        if b0 - 4 <= i < b0: send_w(i - b0 + 4)
        if bx <= i < bx + 2: send_r(2*(i - bx)); send_r(2*(i - bx) + 1)
        if bx + 2 <= i < bx + 6: send_c(i - bx - 2)
    def prebar(j):
        if SK and j == NST + 1: k.wait(lg="sw")
    period = math.lcm(R, DA, 4, (DW + 1) // math.gcd(DW + 1, NT))
    args = (k, order, MT, KPS, NG, R, DA, DW, dl, dma, aload, wread, mfma)
    mainloop16(*args, name + "_L", pro, period, do_pro="only", extra=extra, lag=LAG, xall=XA, bars=bars)
    def body(ph):
        mainloop16(*args, name + f"_L{ph}", pro, period, fill, lpm, do_pro=False, win=mkwin(WIN, ph), il=IL, prio=PRIO, extra=extra, gap=GAP, urg=URG, cap=CAP, lag=LAG, xall=XA, bars=bars, prebar=prebar)
        lp = f"{name}_POLL{ph}"
        if SK: poll_ld()
        else:
            for i in range(4): send_w(i)
        w2, r2 = (vw, vrd) if SK else (vw2, vrd2)
        for i in range(4): k.ds(f"ds_write_b128 v{w2}, {vr(ACC+48+4*i,4)} offset:{1024*i}")
        k.wait(vm="res")
        F = Abuf
        for e in range(8): k(f"v_lshlrev_b32 v{F+2*e}, 16, v{RES+e}\nv_and_b32 v{F+2*e+1}, 0xffff0000, v{RES+e}")
        k.wait(lg="all"); k("s_barrier")
        if not SK:
            for i in range(4): send_r(i)
        for i in range(4): k.ds(f"ds_read_b128 {vr(ACC+48+4*i,4)}, v{r2} offset:{1024*i}", ("q", i))
        if not SK:
            for i in range(4): send_c(i)
        for e in range(16): k(f"v_add_f32 v{ACC+16+e}, v{ACC+16+e}, v{F+e}")
        k.wait(lg="all")
        for e in range(16): k(f"v_add_f32 v{ACC+16+e}, v{ACC+16+e}, v{ACC+48+e}")
        G.tl(k)
        k(f"s_mov_b32 s{scn}, {1 << 18}")
        if SK: k(f"s_branch {lp}_E")
        k.label(lp)
        poll_ld()
        k.label(lp + "_E")
        k.wait(vm="all")
        if not NOX:
            k(f"v_max3_u32 v{t}, v{XB}, v{XB+1}, v{XB+2}\nv_max3_u32 v{t2}, v{XB+3}, v{XB+4}, v{XB+5}")
            for e in range(6, 4*NX-2, 4): k(f"v_max3_u32 v{t}, v{t}, v{XB+e}, v{XB+e+1}\nv_max3_u32 v{t2}, v{t2}, v{XB+e+2}, v{XB+e+3}")
            k(f"v_max3_u32 v{t}, v{t}, v{XB+4*NX-2}, v{XB+4*NX-1}\nv_max_u32 v{t}, v{t}, v{t2}\nv_cmp_eq_u32 vcc, -1, v{t}")
            k(f"s_sub_u32 s{scn}, s{scn}, 1\ns_cselect_b64 vcc, 0, vcc\ns_cbranch_vccnz {lp}")
        G.tl(k)
        X2 = XB
        if G.XB16:
            X2 = ACC
            for e in range(8): k(f"v_lshlrev_b32 v{X2+2*e}, 16, v{XB+e}\nv_and_b32 v{X2+2*e+1}, 0xffff0000, v{XB+e}")
        for p in range(2):
            for e in range(8): k(f"v_add_f32 v{ACC+16+8*p+e}, v{ACC+16+8*p+e}, v{X2+8*p+e}")
            o = Wb + 4*p
            for e in range(4): k(f"v_cvt_pk_bf16_f32 v{o+e}, v{ACC+16+8*p+2*e}, v{ACC+16+8*p+2*e+1}")
            k(f"v_permlane16_swap_b32 v{o}, v{o+2}\nv_permlane16_swap_b32 v{o+1}, v{o+3}")
            k.vm(f"buffer_store_dwordx4 {vr(o,4)}, v{vx}, {sr(S_x,4)}, 0 offen offset:{64*p}")
    dual(k, body, WIN)
    return k
```

```python
import sys, math
from asmlib import *

NAME = "sequential_preLN__mha_block__swiglu_ffn__prompt"
MB = 1 << 20
WS_XN, WS_Q, WS_KV, WS_O, WS_H, WS_HN, WS_ACT = 0, 4*MB, 8*MB, 16*MB, 20*MB, 24*MB, 28*MB
WS_SIZE = 64*MB
P_X, P_WQKV, P_WO, P_BX, P_WG, P_WU, P_WD, P_OUT = 0, 2, 4, 6, 8, 10, 12, 14
def f32(x):
    import struct
    return "0x%08x" % struct.unpack("<I", struct.pack("<f", x))[0]

def start(k, nwg):
    k(f"s_cmp_ge_u32 s2, {nwg}\ns_cbranch_scc1 {k.name}_END")
    P = k.s(16, 4); P2 = k.s(4, 4)
    k(f"s_load_dwordx16 {sr(P,16)}, s[0:1], 0\ns_load_dwordx4 {sr(P2,4)}, s[0:1], 64")
    lane = k.v(); sw = k.s()
    k(f"v_lshrrev_b32 v{lane}, 6, v0")
    k(f"v_readfirstlane_b32 s{sw}, v{lane}")
    k(f"v_and_b32 v{lane}, 63, v0")
    k.P = P; k.PWS = P2 + 2; k.lane = lane; k.sw = sw
    tstart(k)
    k("s_waitcnt lgkmcnt(0)")
    if STK: stamp(k)
TIMING = False
PF = True
STK = True
APRIO = 0
ASCHED = 1
V2 = 1
NOLOOP = 0
XF = 0
XI = 0
XS = 0
TL = 0
WARM = 1
SPLITK = 1
XB16 = 1
PFJ = 6
PFS = 4
PFM = 1
XK = ['ffn1', 'ffn2', 'wo', 'qkv']
WS_TIM = 60*MB
KIDX = [0]
NKERN = 7
def tstart(k):
    k.nst = 0; k.tli = 0
    if not TIMING: return
    k.T = k.s(16, 4); k.kidx = KIDX[0]; KIDX[0] += 1
    k(f"s_memtime {sr(k.T,2)}\ns_memrealtime {sr(k.T+2,2)}")
    if TL:
        k.TLs = k.s(2, 2); k.TLi = k.s(); k.TLv = k.v()
        k(f"s_mov_b32 s{k.TLi}, 0\ns_mov_b32 s{k.TLs}, 0\nv_mov_b32 v{k.TLv}, 0")
def tl(k):
    if not (TIMING and TL): return
    k(f"v_writelane_b32 v{k.TLv}, s{k.TLs}, {min(k.tli, 63)}\ns_memtime {sr(k.TLs,2)}"); k.tli += 1
    k.lgq.append("stamp")
def stamp(k):
    if TIMING != 1: return
    k(f"s_memtime {sr(k.T+8+2*k.nst,2)}"); k.nst += 1
    assert k.nst <= 4
    k.lgq.append("stamp")
def tend(k):
    if not TIMING: return
    if TIMING == 2: return dbg_end(k)
    T = k.T
    if not hasattr(k, "TV"): k.TV = k.v(8, 4); k.TA = k.v(); k.TS = k.s(4, 4)
    k(f"s_waitcnt vmcnt(0)\ns_memtime {sr(T+4,2)}\ns_memrealtime {sr(T+6,2)}\ns_waitcnt lgkmcnt(0)")
    k.srd(k.TS, k.PWS, WS_SIZE)
    k(f"v_mov_b32 v{k.TV}, s{T}\nv_mov_b32 v{k.TV+1}, s{T+4}\nv_mov_b32 v{k.TV+2}, s{T+2}\nv_mov_b32 v{k.TV+3}, s{T+6}")
    for i in range(4): k(f"v_mov_b32 v{k.TV+4+i}, s{T+8+2*i if i < k.nst else T}")
    k(f"s_lshl_b32 s{T}, s2, 3\ns_add_u32 s{T}, s{T}, s{k.sw}\ns_lshl_b32 s{T}, s{T}, 5\ns_add_u32 s{T}, s{T}, {WS_TIM + k.kidx*256*8*32}")
    if TL:
        k(f"v_writelane_b32 v{k.TLv}, s{k.TLs}, {min(k.tli, 63)}\ns_sub_u32 s{T+1}, s{T}, {WS_TIM}\ns_lshl_b32 s{T+1}, s{T+1}, 3\ns_add_u32 s{T+1}, s{T+1}, {61*MB}\nv_lshlrev_b32 v{k.TA}, 2, v{k.lane}")
        k(f"buffer_store_dword v{k.TLv}, v{k.TA}, {sr(k.TS,4)}, s{T+1} offen")
    k(f"v_mov_b32 v{k.TA}, 0\nbuffer_store_dwordx4 {vr(k.TV,4)}, v{k.TA}, {sr(k.TS,4)}, s{T} offen\nbuffer_store_dwordx4 {vr(k.TV+4,4)}, v{k.TA}, {sr(k.TS,4)}, s{T} offen offset:16")
def dbg_end(k):
    T = k.T
    if not hasattr(k, "TV"): k.TV = k.v(4, 4); k.TA = k.v(); k.TS = k.s(4, 4)
    lab = f"{k.name}_DBG{k.uid}"; k.uid += 1
    k(f"s_waitcnt vmcnt(0)\ns_memrealtime {sr(T+6,2)}\ns_and_b32 s{T}, s2, 15\ns_or_b32 s{T}, s{T}, s{k.sw}\ns_cmp_lg_u32 s{T}, 0\ns_cbranch_scc1 {lab}")
    k(f"s_add_u32 s{k.TS}, s{k.PWS-2}, {512*(NKERN-1-k.kidx)}\ns_addc_u32 s{k.TS+1}, s{k.PWS-1}, 0\ns_mov_b32 s{k.TS+2}, 256\ns_mov_b32 s{k.TS+3}, 0x20000\ns_waitcnt lgkmcnt(0)")
    k(f"s_not_b32 s{T+2}, s{T+2}\nv_mov_b32 v{k.TV}, s{T+2}\nv_mov_b32 v{k.TV+1}, s{T+6}\nv_mov_b32 v{k.TA}, {8*k.kidx}\ns_mov_b64 exec, 1")
    k(f"buffer_atomic_umax v{k.TV}, v{k.TA}, {sr(k.TS,4)}, 0 offen\nbuffer_atomic_umax v{k.TV+1}, v{k.TA}, {sr(k.TS,4)}, 0 offen offset:4")
    k.label(lab)
def finish(k, endt=True):
    if endt: tend(k)
    k.label(f"{k.name}_END")
    k("s_endpgm")

def gen_ln(name, in_T, src_off, dst_off):
    k = K(name, (256, 1, 1), (256, 1, 1), 1024)
    start(k, 256)
    lane, sw = k.lane, k.sw
    S_in = k.s(4); S_ws = k.s(4)
    k.srd(S_ws, k.PWS, WS_SIZE)
    if not in_T: k.srd(S_in, k.P + P_X, 4*MB)
    row = k.v(); c = k.v(); vo = k.v(); vi = k.v(); t = k.v(); t2 = k.v()
    sa = k.s(); sb = k.s(); so = [k.s() for _ in range(4)]; si = [k.s() for _ in range(4)]
    k(f"v_lshrrev_b32 v{row}, 3, v{lane}\nv_and_b32 v{c}, 7, v{lane}")
    k(f"s_lshr_b32 s{sa}, s2, 2\ns_lshl_b32 s{sa}, s{sa}, 16\ns_lshl_b32 s{sb}, s{sw}, 14\ns_add_u32 s{sa}, s{sa}, s{sb}")
    k(f"s_and_b32 s{sb}, s2, 3\ns_lshl_b32 s{sb}, s{sb}, 7\ns_add_u32 s{sa}, s{sa}, s{sb}")
    k(f"v_lshrrev_b32 v{t}, 1, v{c}\nv_lshlrev_b32 v{t}, 10, v{t}\nv_and_b32 v{t2}, 1, v{c}\nv_lshlrev_b32 v{t2}, 9, v{t2}")
    k(f"v_add_u32 v{vo}, v{t}, v{t2}\nv_lshlrev_b32 v{t}, 4, v{row}\nv_add_u32 v{vo}, v{vo}, v{t}\nv_add_u32 v{vo}, s{sa}, v{vo}")
    X = k.v(16, 4); F = k.v(32, 4)
    for i in range(4):
        k(f"s_mov_b32 s{so[i]}, {dst_off + 4096*i}")
    if in_T:
        for i in range(4):
            k(f"s_mov_b32 s{si[i]}, {src_off + 4096*i}")
        for i in range(4):
            k.vm(f"buffer_load_dwordx4 {vr(X+4*i,4)}, v{vo}, {sr(S_ws,4)}, s{si[i]} offen", i)
    else:
        k(f"s_lshl_b32 s{sa}, s2, 14\ns_lshl_b32 s{sb}, s{sw}, 9\ns_add_u32 s{sa}, s{sa}, s{sb}")
        k(f"v_lshlrev_b32 v{vi}, 11, v{row}\nv_lshlrev_b32 v{t}, 4, v{c}\nv_add_u32 v{vi}, v{vi}, v{t}\nv_add_u32 v{vi}, s{sa}, v{vi}")
        for i in range(4):
            k.vm(f"buffer_load_dwordx4 {vr(X+4*i,4)}, v{vi}, {sr(S_in,4)}, 0 offen offset:{128*i}", i)
        if PF:
            S_pf = k.s(4); k.srd(S_pf, k.P + P_WQKV, 6*MB); vp = k.v(); D = k.v(4, 4); sp = k.s()
            k(f"s_lshl_b32 s{sp}, s2, 12\nv_lshlrev_b32 v{vp}, 4, v0\nv_add_u32 v{vp}, s{sp}, v{vp}")
            for i in range(6):
                k(f"s_mov_b32 s{sp}, {i*MB}")
                k.vm(f"buffer_load_dwordx4 {vr(D,4)}, v{vp}, {sr(S_pf,4)}, s{sp} offen", "pf")
    sm = k.v(); m2 = k.v()
    for i in range(4):
        k.wait(vm=i)
        for j in range(4):
            r = 4*i + j
            k(f"v_lshlrev_b32 v{F+2*r}, 16, v{X+r}\nv_and_b32 v{F+2*r+1}, 0xffff0000, v{X+r}")
        for j in range(8):
            e = F + 8*i + j
            if i == 0 and j == 0: continue
            if i == 0 and j == 1: k(f"v_add_f32 v{sm}, v{F}, v{F+1}")
            elif j % 2 == 0: k(f"v_add_f32 v{sm}, v{sm}, v{e}")
            else:
                if i == 0 and j == 3: k(f"v_mov_b32 v{m2}, v{e}")
                else: k(f"v_add_f32 v{m2}, v{m2}, v{e}")
    k(f"v_add_f32 v{sm}, v{sm}, v{m2}")
    def red8(r):
        k(f"v_add_f32_dpp v{r}, v{r}, v{r} quad_perm:[1,0,3,2] row_mask:0xf bank_mask:0xf")
        k(f"v_add_f32_dpp v{r}, v{r}, v{r} quad_perm:[2,3,0,1] row_mask:0xf bank_mask:0xf")
        k(f"v_add_f32_dpp v{r}, v{r}, v{r} row_half_mirror row_mask:0xf bank_mask:0xf")
    red8(sm)
    pr = k.v(2, 2)
    k(f"v_mul_f32 v{pr}, {f32(1/256)}, v{sm}")
    for e in range(32): k(f"v_sub_f32 v{F+e}, v{F+e}, v{pr}")
    k(f"v_mul_f32 v{pr+1}, v{F}, v{F}\nv_mul_f32 v{m2}, v{F+1}, v{F+1}")
    for e in range(2, 32):
        k(f"v_fmac_f32 v{pr+1 if e%2==0 else m2}, v{F+e}, v{F+e}")
    k(f"v_add_f32 v{pr+1}, v{pr+1}, v{m2}")
    red8(pr+1)
    k(f"v_lshlrev_b32 v{t}, 5, v{row}\ns_lshl_b32 s{sb}, s{sw}, 3\nv_add_u32 v{t2}, s{sb}, v{t}")
    k.ds(f"ds_write_b64 v{t2}, {vr(pr,2)}")
    k.wait(lg="all"); k("s_barrier")
    Q = X
    k.ds(f"ds_read_b128 {vr(Q,4)}, v{t}"); k.ds(f"ds_read_b128 {vr(Q+4,4)}, v{t} offset:16")
    k.wait(lg="all")
    mean = k.v(); var = k.v()
    k(f"v_add_f32 v{mean}, v{Q}, v{Q+2}\nv_add_f32 v{t}, v{Q+4}, v{Q+6}\nv_add_f32 v{mean}, v{mean}, v{t}\nv_mul_f32 v{mean}, 0.25, v{mean}".replace("0.25", f32(0.25)))
    k(f"v_add_f32 v{var}, v{Q+1}, v{Q+3}\nv_add_f32 v{t}, v{Q+5}, v{Q+7}\nv_add_f32 v{var}, v{var}, v{t}")
    k(f"v_mov_b32 v{t2}, 0")
    for j in range(4):
        k(f"v_sub_f32 v{t}, v{Q+2*j}, v{mean}\nv_fmac_f32 v{t2}, v{t}, v{t}")
    k(f"v_mul_f32 v{t2}, {f32(256.0)}, v{t2}\nv_add_f32 v{var}, v{var}, v{t2}")
    k(f"v_mul_f32 v{var}, {f32(1/1024)}, v{var}\nv_add_f32 v{var}, {f32(1e-5)}, v{var}\nv_rsq_f32 v{var}, v{var}")
    k(f"v_sub_f32 v{t}, v{pr}, v{mean}\nv_mul_f32 v{t}, v{t}, v{var}")
    for i in range(4):
        for j in range(8):
            e = F + 8*i + j
            k(f"v_fma_f32 v{e}, v{e}, v{var}, v{t}")
        for j in range(4):
            k(f"v_cvt_pk_bf16_f32 v{X+4*i+j}, v{F+8*i+2*j}, v{F+8*i+2*j+1}")
        k.vm(f"buffer_store_dwordx4 {vr(X+4*i,4)}, v{vo}, {sr(S_ws,4)}, s{so[i]} offen")
    finish(k)
    return k

def mainloop(k, NT, KPS, NST, R, DA, DW, ndma, dma, aload, wread, mfma, lname, mid=None):
    NB = DW + 1
    KS = KPS * NST
    nslots = KS * NT
    scnt = k.s()
    au = 0
    for j in range(min(R, NST)):
        for i in range(ndma): dma(j, i)
        for _ in range(KPS):
            if au < min(DA, KS): aload(au); au += 1
    while au < min(DA, KS): aload(au); au += 1
    if mid: mid()
    stamp(k)
    k.wait(vm=("dma", 0)); k("s_barrier")
    stamp(k)
    for i in range(min(DW, nslots)):
        u, t = divmod(i, NT); wread(u // KPS, u % KPS, t, i % NB, i)
    blocks = []; base = len(k.L); starts = [base]
    pend = []
    for i in range(nslots):
        u, t = divmod(i, NT)
        n = i + DW
        if n < nslots:
            un, tn = divmod(n, NT)
            if tn == 0 and un % KPS == 0:
                j = un // KPS
                starts.append(len(k.L))
                k.wait(vm=("dma", j)); k("s_barrier")
                if j >= 2 and j - 2 + R < NST:
                    pend += [(j - 2 + R, q) for q in range(ndma)]
            wread(un // KPS, un % KPS, tn, n % NB, n)
        k.wait(vm=("a", u) if t == 0 else None, lg=("w", i))
        mfma(u, t, i % NB)
        if t == NT - 1 and u + DA < KS: aload(u + DA)
        elif pend: dma(*pend.pop(0))
    assert not pend
    starts.append(len(k.L))
    blocks = [k.L[starts[i]:starts[i+1]] for i in range(len(starts) - 1)]
    del k.L[base:]
    period = R * KPS * NT
    period = math.lcm(R * KPS * NT, DA * NT, NB, 4 * NT) // (KPS * NT)
    reps = compress_loop(k, blocks, period, scnt, lname)
    stamp(k)
    return reps

class LdsBases:
    def __init__(self, k, base, maxoff):
        self.regs = [base]
        for w in range(1, maxoff // 65536 + 1):
            r = k.v(); k(f"v_add_u32 v{r}, {65536*w}, v{base}"); self.regs.append(r)
    def at(self, off):
        return f"v{self.regs[off // 65536]} offset:{off % 65536}"

def a_loader(k, S_ws, vA, Abuf, DA, base_off):
    sA = k.s()
    k(f"s_mov_b32 s{sA}, {base_off}")
    def aload(u):
        k.vm(f"buffer_load_dwordx4 {vr(Abuf + 4*(u % DA), 4)}, v{vA}, {sr(S_ws,4)}, s{sA} offen offset:{1024*(u%4)}", ("a", u))
        if u % 4 == 3: k(f"s_add_u32 s{sA}, s{sA}, 4096")
    return aload

def tr_lane_parts(k):
    lane = k.lane
    h = k.v(); g1 = k.v(); r = k.v(); cc = k.v()
    k(f"v_lshrrev_b32 v{h}, 5, v{lane}\nv_bfe_u32 v{g1}, v{lane}, 4, 1\nv_bfe_u32 v{r}, v{lane}, 2, 2\nv_and_b32 v{cc}, 3, v{lane}")
    return h, g1, r, cc

def tr_addr128(k, hrows, skh_bytes, spar):
    h, g1, r, cc = tr_lane_parts(k)
    a = k.v(); b = k.v(); t = k.v()
    k(f"v_mul_u32_u24 v{a}, {hrows}, v{h}\nv_add_u32 v{a}, v{a}, v{r}\nv_lshlrev_b32 v{a}, 7, v{a}")
    k(f"v_lshlrev_b32 v{t}, 5, v{g1}\nv_add_u32 v{a}, v{a}, v{t}")
    k(f"v_lshlrev_b32 v{t}, 3, v{cc}\nv_add_u32 v{a}, v{a}, v{t}")
    k(f"v_lshrrev_b32 v{t}, 1, v{r}\nv_lshlrev_b32 v{t}, 6, v{t}\nv_add_u32 v{a}, v{a}, v{t}")
    k(f"v_xor_b32 v{a}, s{spar}, v{a}\nv_add_u32 v{a}, s{skh_bytes}, v{a}\nv_xor_b32 v{b}, 64, v{a}")
    return a, b

def dma_voff128(k, pitch):
    lane = k.lane
    a = k.v(); t = k.v(); t2 = k.v(); sp = k.s()
    k(f"s_mov_b32 s{sp}, {pitch}")
    k(f"v_lshrrev_b32 v{t}, 3, v{lane}\nv_mul_lo_u32 v{a}, v{t}, s{sp}")
    k(f"v_and_b32 v{t}, 2, v{t}\nv_lshlrev_b32 v{t}, 1, v{t}\nv_and_b32 v{t2}, 7, v{lane}\nv_xor_b32 v{t}, v{t}, v{t2}\nv_lshlrev_b32 v{t}, 4, v{t}\nv_add_u32 v{a}, v{a}, v{t}")
    return a

def gen_qkv(name):
    R, KPS, NST, NT, DA, DW = 6, 2, 16, 6, 6, 3
    SLOT = 24576
    k = K(name, (256, 1, 1), (512, 1, 1), R * SLOT)
    start(k, 256)
    lane, sw = k.lane, k.sw
    S_w = k.s(4); S_ws = k.s(4)
    k.srd(S_w, k.P + P_WQKV, 6*MB); k.srd(S_ws, k.PWS, WS_SIZE)
    shp = k.s(); smt = k.s(); smbl = k.s(); skh = k.s(); smb = k.s(); st = k.s(); st2 = k.s()
    k(f"s_and_b32 s{shp}, s2, 7\ns_lshl_b32 s{shp}, s{shp}, 1\ns_bfe_u32 s{st}, s2, 0x10003\ns_add_u32 s{shp}, s{shp}, s{st}\ns_lshr_b32 s{smt}, s2, 4")
    k(f"s_and_b32 s{smbl}, s{sw}, 3\ns_lshr_b32 s{skh}, s{sw}, 2\ns_lshl_b32 s{smb}, s{smt}, 2\ns_add_u32 s{smb}, s{smb}, s{smbl}")
    vd = [dma_voff128(k, 6144), k.v(), k.v()]
    k(f"s_lshl_b32 s{st}, s{skh}, 9\ns_lshl_b32 s{st2}, s{smbl}, 3\ns_add_u32 s{st}, s{st}, s{st2}\ns_mul_i32 s{st}, s{st}, 6144\ns_lshl_b32 s{st2}, s{shp}, 7\ns_add_u32 s{st}, s{st}, s{st2}")
    k(f"v_add_u32 v{vd[0]}, s{st}, v{vd[0]}\nv_add_u32 v{vd[1]}, 2048, v{vd[0]}\nv_add_u32 v{vd[2]}, 4096, v{vd[0]}")
    sW = k.s(); sL = k.s()
    k(f"s_mov_b32 s{sW}, 0\ns_mul_i32 s{sL}, s{skh}, 12288\ns_lshl_b32 s{st}, s{smbl}, 10\ns_add_u32 s{sL}, s{sL}, s{st}")
    def dma(j, i):
        k(f"s_add_u32 m0, s{sL}, {(j % R)*SLOT + i*4096}")
        k.vm(f"buffer_load_dwordx4 v{vd[i]}, {sr(S_w,4)}, s{sW} offen lds", ("dma", j))
        if i == 2: k(f"s_add_u32 s{sW}, s{sW}, {32*6144}")
    vA = k.v()
    k(f"s_lshl_b32 s{st}, s{smb}, 16\ns_lshl_b32 s{st2}, s{skh}, 15\ns_add_u32 s{st}, s{st}, s{st2}\nv_lshlrev_b32 v{vA}, 4, v{lane}\nv_add_u32 v{vA}, s{st}, v{vA}")
    Abuf = k.v(4*DA, 4)
    aload = a_loader(k, S_ws, vA, Abuf, DA, WS_XN)
    skb = k.s(); spar = k.s()
    k(f"s_mul_i32 s{skb}, s{skh}, 12288\ns_lshl_b32 s{spar}, s{skh}, 6")
    ak, asend = tr_addr128(k, 8, skb, spar)
    BK = LdsBases(k, ak, R*SLOT - 1); BS = LdsBases(k, asend, R*SLOT - 1)
    Wb = k.v(4*(DW+1), 4)
    ACC = k.v(96, 4)
    def wread(j, uu, t, b, tag):
        B = BK if t < 3 else BS
        off = (j % R)*SLOT + (t % 3)*4096 + uu*2048
        k.ds(f"ds_read_b64_tr_b16 {vr(Wb+4*b,2)}, {B.at(off)}", ("w", tag))
        k.ds(f"ds_read_b64_tr_b16 {vr(Wb+4*b+2,2)}, {B.at(off+512)}", ("w", tag))
    def mfma(u, t, b):
        a = vr(Abuf + 4*(u % DA), 4); w = vr(Wb + 4*b, 4); d = vr(ACC + 16*t, 16)
        c = d if u > 0 else "0"
        if t % 3 == 2: k(f"v_mfma_f32_32x32x16_bf16 {d}, {a}, {w}, {c}")
        else: k(f"v_mfma_f32_32x32x16_bf16 {d}, {w}, {a}, {c}")
    mainloop(k, NT, KPS, NST, R, DA, DW, 3, dma, aload, wread, mfma, name + "_L")
    free = [(NST + i) % R for i in range(R - 2)]
    assert free == [4, 5, 0, 1]
    vw = k.v(); vrd = k.v()
    def region(dst, swv):
        k(f"s_mul_i32 s{dst}, s{swv}, 12288\ns_add_u32 s{dst}, s{dst}, {4*SLOT}\ns_cmp_ge_u32 s{dst}, {6*SLOT}\ns_cselect_b32 s{skb}, {6*SLOT}, 0\ns_sub_u32 s{dst}, s{dst}, s{skb}")
    region(st, sw)
    k(f"s_xor_b32 s{spar}, s{sw}, 4"); region(st2, spar)
    k(f"v_lshlrev_b32 v{vw}, 4, v{lane}\nv_add_u32 v{vrd}, s{st2}, v{vw}\nv_add_u32 v{vw}, s{st}, v{vw}")
    for i in range(12):
        k.ds(f"ds_write_b128 v{vw}, {vr(ACC+48+4*i,4)} offset:{1024*i}")
    k.wait(lg="all"); k("s_barrier")
    for i in range(12):
        k.ds(f"ds_read_b128 {vr(ACC+48+4*i,4)}, v{vrd} offset:{1024*i}", i)
    shd = k.s(); sq = k.s(); skv = k.s()
    k(f"s_lshl_b32 s{shd}, s{shp}, 1\ns_add_u32 s{shd}, s{shd}, s{skh}\ns_lshl_b32 s{shd}, s{shd}, 6\ns_add_u32 s{shd}, s{shd}, s{smb}")
    k(f"s_lshl_b32 s{sq}, s{shd}, 11\ns_add_u32 s{sq}, s{sq}, {WS_Q}\ns_lshl_b32 s{skv}, s{shd}, 12\ns_add_u32 s{skv}, s{skv}, {WS_KV}")
    k(f"v_lshlrev_b32 v{vw}, 4, v{lane}")
    sc = k.s(); k(f"s_mov_b32 s{sc}, {f32(32**-0.5 * math.log2(math.e))}")
    for tt in range(3):
        for hf in range(2):
            i0 = 16*tt + 8*hf
            k.wait(lg=i0//4 + 1)
            for e in range(8):
                k(f"v_add_f32 v{ACC+i0+e}, v{ACC+i0+e}, v{ACC+48+i0+e}")
            if tt == 0:
                for e in range(8): k(f"v_mul_f32 v{ACC+i0+e}, s{sc}, v{ACC+i0+e}")
            o = Wb + 4*((2*tt+hf) % (DW+1))
            for e in range(4):
                k(f"v_cvt_pk_bf16_f32 v{o+e}, v{ACC+i0+2*e}, v{ACC+i0+2*e+1}")
            if tt == 0: k.vm(f"buffer_store_dwordx4 {vr(o,4)}, v{vw}, {sr(S_ws,4)}, s{sq} offen offset:{1024*hf}")
            else: k.vm(f"buffer_store_dwordx4 {vr(o,4)}, v{vw}, {sr(S_ws,4)}, s{skv} offen offset:{2048*(tt-1)+1024*hf}")
    finish(k)
    return k

def gen_res(name, KTOT, wptr, a_off, is_down):
    R, KPS, NT, DA, DW = 4, 4, 2, 16, 3
    KSH = KTOT // 32
    NST = KSH // KPS
    SLOT = 16384
    k = K(name, (256, 1, 1), (512, 1, 1), R * SLOT + 32768)
    start(k, 256)
    lane, sw = k.lane, k.sw
    S_w = k.s(4); S_ws = k.s(4); S_x = k.s(4)
    k.srd(S_w, k.P + wptr, KTOT * 2048); k.srd(S_ws, k.PWS, WS_SIZE)
    k.srd(S_x, k.P + (P_OUT if is_down else P_X), 4*MB)
    smt = k.s(); snt = k.s(); smbl = k.s(); skh = k.s(); smb = k.s(); st = k.s(); st2 = k.s()
    k(f"s_and_b32 s{smt}, s2, 3\ns_lshl_b32 s{smt}, s{smt}, 2\ns_bfe_u32 s{st}, s2, 0x20003\ns_add_u32 s{smt}, s{smt}, s{st}")
    k(f"s_bfe_u32 s{snt}, s2, 0x10002\ns_lshl_b32 s{snt}, s{snt}, 3\ns_lshr_b32 s{st}, s2, 5\ns_add_u32 s{snt}, s{snt}, s{st}")
    k(f"s_and_b32 s{smbl}, s{sw}, 3\ns_lshr_b32 s{skh}, s{sw}, 2\ns_lshl_b32 s{smb}, s{smt}, 2\ns_add_u32 s{smb}, s{smb}, s{smbl}")
    vd = [dma_voff128(k, 2048), k.v()]
    k(f"s_mul_i32 s{st}, s{skh}, {KTOT//2}\ns_lshl_b32 s{st2}, s{smbl}, 4\ns_add_u32 s{st}, s{st}, s{st2}\ns_lshl_b32 s{st}, s{st}, 11\ns_lshl_b32 s{st2}, s{snt}, 7\ns_add_u32 s{st}, s{st}, s{st2}")
    k(f"v_add_u32 v{vd[0]}, s{st}, v{vd[0]}\nv_add_u32 v{vd[1]}, {8*2048}, v{vd[0]}")
    sW = k.s(); sL = k.s()
    k(f"s_mov_b32 s{sW}, 0\ns_lshl_b32 s{sL}, s{sw}, 11")
    def dma(j, i):
        k(f"s_add_u32 m0, s{sL}, {(j % R)*SLOT + i*1024}")
        k.vm(f"buffer_load_dwordx4 v{vd[i]}, {sr(S_w,4)}, s{sW} offen lds", ("dma", j))
        if i == 1: k(f"s_add_u32 s{sW}, s{sW}, {64*2048}")
    vA = k.v()
    k(f"s_mul_i32 s{st}, s{smb}, {KTOT//16*1024}\ns_mul_i32 s{st2}, s{skh}, {KSH*1024}\ns_add_u32 s{st}, s{st}, s{st2}\nv_lshlrev_b32 v{vA}, 4, v{lane}\nv_add_u32 v{vA}, s{st}, v{vA}")
    Abuf = k.v(4*DA, 4)
    aload = a_loader(k, S_ws, vA, Abuf, DA, a_off)
    skb = k.s(); spar = k.s()
    k(f"s_lshl_b32 s{skb}, s{skh}, 13\ns_lshl_b32 s{spar}, s{skh}, 6")
    ak, asend = tr_addr128(k, 4, skb, spar)
    Wb = k.v(4*(DW+1), 4)
    ACC = k.v(32, 4)
    RES = k.v(8, 4)
    vx = k.v(); vT = k.v(); sh = k.s(); t = k.v()
    k(f"s_lshl_b32 s{st}, s{smb}, 16\ns_lshl_b32 s{st2}, s{snt}, 7\ns_add_u32 s{st}, s{st}, s{st2}\ns_add_u32 s{st}, s{st}, s{spar}")
    k(f"v_and_b32 v{vx}, 31, v{lane}\nv_lshlrev_b32 v{vx}, 11, v{vx}\nv_lshrrev_b32 v{t}, 5, v{lane}\nv_lshlrev_b32 v{t}, {4 if is_down else 3}, v{t}\nv_add_u32 v{vx}, v{vx}, v{t}\nv_add_u32 v{vx}, s{st}, v{vx}")
    k(f"s_lshl_b32 s{sh}, s{smb}, 6\ns_lshl_b32 s{st2}, s{snt}, 2\ns_add_u32 s{sh}, s{sh}, s{st2}\ns_lshl_b32 s{st2}, s{skh}, 1\ns_add_u32 s{sh}, s{sh}, s{st2}\ns_lshl_b32 s{sh}, s{sh}, 10\ns_add_u32 s{sh}, s{sh}, {WS_H}")
    k(f"v_lshlrev_b32 v{vT}, 4, v{lane}")
    def mid():
        if is_down:
            for i in range(2): k.vm(f"buffer_load_dwordx4 {vr(RES+4*i,4)}, v{vT}, {sr(S_ws,4)}, s{sh} offen offset:{1024*i}", "res")
        else:
            for j in range(4): k.vm(f"buffer_load_dwordx2 {vr(RES+2*j,2)}, v{vx}, {sr(S_x,4)}, 0 offen offset:{16*j}", "res")
    def wread(j, uu, t, b, tag):
        B = ak if t == 0 else asend
        off = (j % R)*SLOT + uu*2048
        k.ds(f"ds_read_b64_tr_b16 {vr(Wb+4*b,2)}, v{B} offset:{off}", ("w", tag))
        k.ds(f"ds_read_b64_tr_b16 {vr(Wb+4*b+2,2)}, v{B} offset:{off+1024}", ("w", tag))
    def mfma(u, t, b):
        a = vr(Abuf + 4*(u % DA), 4); w = vr(Wb + 4*b, 4); d = vr(ACC + 16*t, 16)
        c = d if u > 0 else "0"
        k(f"v_mfma_f32_32x32x16_bf16 {d}, {w}, {a}, {c}")
    mainloop(k, NT, KPS, NST, R, DA, DW, 2, dma, aload, wread, mfma, name + "_L", mid)
    vw = k.v(); vrd = k.v()
    k(f"s_lshl_b32 s{st}, s{sw}, 12\ns_add_u32 s{st}, s{st}, {R*SLOT}\ns_xor_b32 s{st2}, s{st}, {4*4096}")
    assert (R*SLOT) % (8*4096) == 0
    k(f"v_add_u32 v{vw}, s{st}, v{vT}\nv_add_u32 v{vrd}, s{st2}, v{vT}")
    for i in range(4): k.ds(f"ds_write_b128 v{vw}, {vr(ACC+16+4*i,4)} offset:{1024*i}")
    k.wait(lg="all"); k("s_barrier")
    for i in range(4): k.ds(f"ds_read_b128 {vr(ACC+16+4*i,4)}, v{vrd} offset:{1024*i}", i)
    k.wait(vm="res")
    F = Abuf
    for e in range(8):
        k(f"v_lshlrev_b32 v{F+2*e}, 16, v{RES+e}\nv_and_b32 v{F+2*e+1}, 0xffff0000, v{RES+e}")
    for e in range(16): k(f"v_add_f32 v{ACC+e}, v{ACC+e}, v{F+e}")
    for hf in range(2):
        k.wait(lg=2*hf+1)
        for e in range(8): k(f"v_add_f32 v{ACC+8*hf+e}, v{ACC+8*hf+e}, v{ACC+16+8*hf+e}")
        o = Wb + 4*hf
        for e in range(4): k(f"v_cvt_pk_bf16_f32 v{o+e}, v{ACC+8*hf+2*e}, v{ACC+8*hf+2*e+1}")
        if is_down:
            k(f"v_permlane32_swap_b32 v{o}, v{o+2}\nv_permlane32_swap_b32 v{o+1}, v{o+3}")
            k.vm(f"buffer_store_dwordx4 {vr(o,4)}, v{vx}, {sr(S_x,4)}, 0 offen offset:{32*hf}")
        else:
            k.vm(f"buffer_store_dwordx4 {vr(o,4)}, v{vT}, {sr(S_ws,4)}, s{sh} offen offset:{1024*hf}")
    finish(k)
    return k

def gen_ffn1(name):
    R, KPS, NST, NT, DA, DW = 4, 4, 16, 7, 8, 3
    UPO = 14336 + 128
    SLOT = 28928
    k = K(name, (256, 1, 1), (512, 1, 1), R * SLOT)
    start(k, 256)
    lane, sw = k.lane, k.sw
    S_w = k.s(4); S_ws = k.s(4)
    smat = k.s(); swq = k.s(); snt = k.s(); smb = k.s(); st = k.s(); st2 = k.s()
    k(f"s_lshr_b32 s{smat}, s{sw}, 2\ns_and_b32 s{swq}, s{sw}, 3")
    k(f"s_cmp_eq_u32 s{smat}, 0\ns_cselect_b32 s{S_w}, s{k.P+P_WG}, s{k.P+P_WU}\ns_cselect_b32 s{S_w+1}, s{k.P+P_WG+1}, s{k.P+P_WU+1}\ns_mov_b32 s{S_w+2}, {7*MB}\ns_mov_b32 s{S_w+3}, 0x20000")
    k.srd(S_ws, k.PWS, WS_SIZE)
    k(f"s_and_b32 s{snt}, s2, 7\ns_lshl_b32 s{snt}, s{snt}, 2\ns_bfe_u32 s{st}, s2, 0x20003\ns_add_u32 s{snt}, s{snt}, s{st}")
    k(f"s_lshr_b32 s{smb}, s2, 5\ns_lshl_b32 s{smb}, s{smb}, 3\ns_add_u32 s{smb}, s{smb}, s{sw}")
    vd = [k.v() for _ in range(4)]; q = k.v(); rr = k.v(); t = k.v(); sm = k.s(); sp = k.s()
    k(f"s_mov_b32 s{sm}, 4682\ns_mov_b32 s{sp}, 7168")
    k(f"s_mul_i32 s{st}, s{swq}, {16*7168}\ns_mul_i32 s{st2}, s{snt}, 224\ns_add_u32 s{st}, s{st}, s{st2}")
    for i in range(4):
        k(f"v_add_u32 v{q}, {64*i}, v{lane}\nv_mul_lo_u32 v{rr}, v{q}, s{sm}\nv_lshrrev_b32 v{rr}, 16, v{rr}")
        k(f"v_mul_u32_u24 v{t}, 14, v{rr}\nv_sub_u32 v{t}, v{q}, v{t}\nv_lshlrev_b32 v{t}, 4, v{t}\nv_mul_lo_u32 v{rr}, v{rr}, s{sp}\nv_add3_u32 v{vd[i]}, v{rr}, v{t}, s{st}")
    for qq in range(256): assert (qq*4682) >> 16 == qq // 14
    sW = k.s(); sL = k.s()
    k(f"s_mov_b32 s{sW}, 0\ns_mul_i32 s{sL}, s{smat}, {UPO}\ns_mul_i32 s{st}, s{swq}, 3584\ns_add_u32 s{sL}, s{sL}, s{st}")
    def dma(j, i):
        k(f"s_add_u32 m0, s{sL}, {(j % R)*SLOT + i*1024}")
        if i == 3: k("s_mov_b32 exec_hi, 0")
        k.vm(f"buffer_load_dwordx4 v{vd[i]}, {sr(S_w,4)}, s{sW} offen lds", ("dma", j))
        if i == 3: k(f"s_mov_b32 exec_hi, -1\ns_add_u32 s{sW}, s{sW}, {64*7168}")
    vA = k.v()
    k(f"s_lshl_b32 s{st}, s{smb}, 16\nv_lshlrev_b32 v{vA}, 4, v{lane}\nv_add_u32 v{vA}, s{st}, v{vA}")
    Abuf = k.v(4*DA, 4)
    aload = a_loader(k, S_ws, vA, Abuf, DA, WS_HN)
    h, g1, r, cc = tr_lane_parts(k)
    a = k.v()
    k(f"v_lshl_add_u32 v{a}, v{h}, 2, v{r}\nv_mul_u32_u24 v{a}, 224, v{a}\nv_lshrrev_b32 v{t}, 1, v{cc}\nv_mul_u32_u24 v{t}, {UPO}, v{t}\nv_add_u32 v{a}, v{a}, v{t}")
    k(f"v_lshlrev_b32 v{t}, 4, v{g1}\nv_add_u32 v{a}, v{a}, v{t}\nv_and_b32 v{t}, 1, v{cc}\nv_lshlrev_b32 v{t}, 3, v{t}\nv_add_u32 v{a}, v{a}, v{t}")
    B = LdsBases(k, a, R*SLOT - 1)
    Wb = k.v(4*(DW+1), 4)
    ACC = k.v(112, 4)
    def wread(j, uu, t, b, tag):
        off = (j % R)*SLOT + uu*3584 + t*32
        k.ds(f"ds_read_b64_tr_b16 {vr(Wb+4*b,2)}, {B.at(off)}", ("w", tag))
        k.ds(f"ds_read_b64_tr_b16 {vr(Wb+4*b+2,2)}, {B.at(off+1792)}", ("w", tag))
    def mfma(u, t, b):
        aa = vr(Abuf + 4*(u % DA), 4); w = vr(Wb + 4*b, 4); d = vr(ACC + 16*t, 16)
        c = d if u > 0 else "0"
        k(f"v_mfma_f32_32x32x16_bf16 {d}, {w}, {aa}, {c}")
    mainloop(k, NT, KPS, NST, R, DA, DW, 4, dma, aload, wread, mfma, name + "_L")
    so = k.s(); sc = k.s(); vT = k.v()
    k(f"s_mul_i32 s{so}, s{smb}, 224\ns_mul_i32 s{st}, s{snt}, 7\ns_add_u32 s{so}, s{so}, s{st}\ns_lshl_b32 s{so}, s{so}, 10\ns_add_u32 s{so}, s{so}, {WS_ACT}")
    k(f"v_lshlrev_b32 v{vT}, 4, v{lane}\ns_mov_b32 s{sc}, {f32(-math.log2(math.e))}")
    E = Abuf
    for tt in range(7):
        D = ACC + 16*tt
        pairs = [(D+i, D+4+i) for i in range(4)] + [(D+8+i, D+12+i) for i in range(4)]
        for e, (g, u) in enumerate(pairs): k(f"v_mul_f32 v{E+e}, s{sc}, v{g}")
        for e in range(8): k(f"v_exp_f32 v{E+e}, v{E+e}")
        for e, (g, u) in enumerate(pairs): k(f"v_mul_f32 v{g}, v{g}, v{u}")
        for e in range(8): k(f"v_add_f32 v{E+e}, 1.0, v{E+e}")
        for e in range(8): k(f"v_rcp_f32 v{E+e}, v{E+e}")
        for e, (g, u) in enumerate(pairs): k(f"v_mul_f32 v{g}, v{g}, v{E+e}")
        o = Wb + 4*(tt % (DW+1))
        for e in range(4): k(f"v_cvt_pk_bf16_f32 v{o+e}, v{pairs[2*e][0]}, v{pairs[2*e+1][0]}")
        k.vm(f"buffer_store_dwordx4 {vr(o,4)}, v{vT}, {sr(S_ws,4)}, s{so} offen offset:{1024*(tt%4)}")
        if tt == 3: k(f"s_add_u32 s{so}, s{so}, 4096")
    finish(k)
    return k

def gen_attn(name):
    R, TPS, NST = 4, 4, 16
    SLOT = 16384
    NTILE = TPS * NST
    k = K(name, (256, 1, 1), (512, 1, 1), R * SLOT + 2048)
    start(k, 256)
    lane, sw = k.lane, k.sw
    S_ws = k.s(4); k.srd(S_ws, k.PWS, WS_SIZE)
    shd = k.s(); sqb = k.s(); st = k.s(); st2 = k.s(); sKV = k.s(); sKV0 = k.s(); sL = k.s(); scnt = k.s()
    k(f"s_and_b32 s{shd}, s2, 7\ns_lshl_b32 s{shd}, s{shd}, 2\ns_bfe_u32 s{st}, s2, 0x20003\ns_add_u32 s{shd}, s{shd}, s{st}")
    k(f"s_lshr_b32 s{sqb}, s2, 5\ns_lshl_b32 s{sqb}, s{sqb}, 3\ns_add_u32 s{sqb}, s{sqb}, s{sw}")
    vT = k.v(); vD = k.v(); t = k.v(); t2 = k.v()
    k(f"v_lshlrev_b32 v{vT}, 4, v{lane}\ns_lshl_b32 s{sL}, s{sw}, 11\nv_add_u32 v{vD}, s{sL}, v{vT}")
    k(f"s_lshl_b32 s{sKV0}, s{shd}, 18\ns_add_u32 s{sKV0}, s{sKV0}, {WS_KV}\ns_mov_b32 s{sKV}, s{sKV0}")
    def dma(j):
        k(f"s_add_u32 m0, s{sL}, {(j % R)*SLOT}")
        k.vm(f"buffer_load_dwordx4 v{vD}, {sr(S_ws,4)}, s{sKV} offen lds", ("dma", j))
        k.vm(f"buffer_load_dwordx4 v{vD}, {sr(S_ws,4)}, s{sKV} offen offset:1024 lds", ("dma", j))
        k(f"s_add_u32 s{sKV}, s{sKV}, {SLOT}")
    Q = k.v(8, 4); S = [k.v(16, 4), k.v(16, 4)]; NEG = k.v(16, 4); O = k.v(16, 4); Lr = k.v(4, 4); ONE = k.v(4, 4)
    Pf = k.v(8, 4); Kb = [k.v(8, 4), k.v(8, 4)]; Vb = [k.v(8, 4), k.v(8, 4)]
    dma(0)
    k(f"s_lshl_b32 s{st}, s{shd}, 6\ns_add_u32 s{st}, s{st}, s{sqb}\ns_lshl_b32 s{st}, s{st}, 11\ns_add_u32 s{st}, s{st}, {WS_Q}")
    for i in range(2): k.vm(f"buffer_load_dwordx4 {vr(Q+4*i,4)}, v{vT}, {sr(S_ws,4)}, s{st} offen offset:{1024*i}", "q")
    for j in range(1, R): dma(j)
    S_pf = k.s(4); vp = k.v(); PD = k.v(4, 4); spf = k.s()
    k.srd(S_pf, k.P + P_WO, 2*MB)
    k(f"s_lshl_b32 s{spf}, s2, 13\nv_lshlrev_b32 v{vp}, 4, v0\nv_add_u32 v{vp}, s{spf}, v{vp}")
    if PF: k.vm(f"buffer_load_dwordx4 {vr(PD,4)}, v{vp}, {sr(S_pf,4)}, 0 offen", "pf")
    k(f"s_nop 4")
    k.srd(S_pf, k.P + P_WD, 7*MB)
    S_gu = k.s(4); vg = k.v(); CD = [k.v(4, 4), k.v(4, 4)]; CA = k.v(4, 4); SEL = k.v(4, 4); sgu = k.s(); scol = k.s(); vcw = k.v(); vcr = k.v(); vcs = k.v()
    k(f"s_lshr_b32 s{st}, s2, 3\ns_cmp_ge_u32 s{st}, 14\ns_cselect_b32 s{S_gu}, s{k.P+P_WU}, s{k.P+P_WG}\ns_cselect_b32 s{S_gu+1}, s{k.P+P_WU+1}, s{k.P+P_WG+1}\ns_mov_b32 s{S_gu+2}, {7*MB}\ns_mov_b32 s{S_gu+3}, 0x20000")
    k(f"s_cselect_b32 s{st2}, 14, 0\ns_cselect_b32 s{sgu}, {3584*4}, 0\ns_sub_u32 s{scol}, s{st}, s{st2}\ns_lshl_b32 s{scol}, s{scol}, 5\ns_and_b32 s{st2}, s2, 7\ns_mul_i32 s{st2}, s{st2}, 448\ns_add_u32 s{scol}, s{scol}, s{st2}")
    k(f"s_cmp_ge_u32 s{st}, 28\ns_cselect_b32 s{st}, 0x4000000, 0\ns_add_u32 s{scol}, s{scol}, s{st}")
    k(f"s_mul_i32 s{st}, s{sw}, {128*7168}\ns_lshl_b32 s{st2}, s{scol}, 1\ns_add_u32 s{st}, s{st}, s{st2}\ns_mov_b32 s{st2}, 7168")
    k(f"v_lshrrev_b32 v{vg}, 2, v{lane}\nv_mul_lo_u32 v{vg}, v{vg}, s{st2}\nv_and_b32 v{t}, 3, v{lane}\nv_lshl_add_u32 v{vg}, v{t}, 4, v{vg}\nv_add_u32 v{vg}, s{st}, v{vg}")
    k(f"s_lshl_b32 s{st}, s{sw}, 8\ns_add_u32 s{st}, s{st}, {R*SLOT}\nv_lshl_add_u32 v{vcw}, v{t}, 4, s{st}\nv_lshrrev_b32 v{t2}, 4, v{lane}\nv_lshl_add_u32 v{vcw}, v{t2}, 6, v{vcw}")
    k(f"v_and_b32 v{vcr}, 31, v{lane}\nv_lshlrev_b32 v{vcr}, 2, v{vcr}\nv_lshrrev_b32 v{t2}, 5, v{lane}\nv_lshl_add_u32 v{vcr}, v{t2}, 10, v{vcr}\nv_add_u32 v{vcr}, {R*SLOT}, v{vcr}")
    k(f"v_bfe_u32 v{vcs}, v{lane}, 2, 2\nv_lshl_add_u32 v{vcs}, v{vcs}, 3, v{t}\nv_bfe_u32 v{t2}, v{lane}, 4, 1\nv_lshl_add_u32 v{vcs}, v{t2}, 2, v{vcs}\nv_add_u32 v{vcs}, s{scol}, v{vcs}\nv_lshlrev_b32 v{vcs}, 2, v{vcs}\nv_add_u32 v{vcs}, s{sgu}, v{vcs}")
    k(f"v_and_b32 v{t}, 1, v{lane}\nv_lshlrev_b32 v{t}, 4, v{t}\nv_mov_b32 v{t2}, 0x3f80\nv_lshlrev_b32 v{t2}, v{t}, v{t2}\nv_bfe_u32 v{t}, v{lane}, 1, 3")
    for e in range(4): k(f"v_cmp_eq_u32 vcc, {e}, v{t}\nv_cndmask_b32 v{SEL+e}, 0, v{t2}, vcc")
    k(f"s_mov_b32 s{sgu}, 0")
    def pf(j):
        if 2 <= j < 10:
            k.vm(f"buffer_load_dwordx4 {vr(CD[j%2],4)}, v{vg}, {sr(S_gu,4)}, s{sgu} offen", "pf")
            k(f"s_add_u32 s{sgu}, s{sgu}, {16*7168}")
        elif 10 <= j < 14 and PF:
            k(f"s_mov_b32 s{spf}, {(j-10)*2*MB}")
            k.vm(f"buffer_load_dwordx4 {vr(PD,4)}, v{vp}, {sr(S_pf,4)}, s{spf} offen", "pf")
    FF = k.v(4, 4); sxf = k.s()
    def prefill(j):
        if SPLITK and j == 3:
            k(f"s_lshl_b32 s{sxf}, s2, 15\ns_lshl_b32 s{st}, s{sw}, 12\ns_add_u32 s{sxf}, s{sxf}, s{st}\ns_add_u32 s{sxf}, s{sxf}, {44*MB}")
            for e in range(4): k(f"v_mov_b32 v{FF+e}, -1")
        for q in range(2 if XB16 else 4):
            if SPLITK and j == PFJ + q*PFS:
                k.vm(f"buffer_store_dwordx4 {vr(FF,4)}, v{vT}, {sr(S_ws,4)}, s{sxf} offen offset:{1024*q}{['', ' sc1', ' nt', ' sc0 sc1'][PFM]}", "pf")
    def cs(j):
        prefill(j)
        if 4 <= j < 12: k(f"v_mfma_f32_16x16x32_bf16 {vr(CA,4)}, {vr(SEL,4)}, {vr(CD[j%2],4)}, {vr(CA,4) if j > 4 else '0'}")
    def cs2(j):
        if j == 12:
            for rot in (4, 8):
                for e in range(4): k(f"v_add_f32_dpp v{CA+e}, v{CA+e}, v{CA+e} row_ror:{rot} row_mask:0xf bank_mask:0xf")
            k.ds(f"ds_write_b128 v{vcw}, {vr(CA,4)}", "csw")
        if j == 14:
            for e in range(4): k.ds(f"ds_read_b32 v{CA+e}, v{vcr} offset:{256*e}", "csr")
        if j == 15:
            k.wait(lg="csr")
            k(f"v_add_f32 v{CA}, v{CA}, v{CA+1}\nv_add_f32 v{CA+2}, v{CA+2}, v{CA+3}\nv_add_f32 v{CA}, v{CA}, v{CA+2}\nv_mov_b32 v{CA+1}, v{CA}\nv_permlane32_swap_b32 v{CA}, v{CA+1}\nv_add_f32 v{CA}, v{CA}, v{CA+1}")
            k(f"s_mov_b32 s{sgu}, {25*MB}")
            k.vm(f"buffer_store_dword v{CA}, v{vcs}, {sr(S_ws,4)}, s{sgu} offen")
    k(f"v_lshrrev_b32 v{t}, 2, v{lane}\nv_lshrrev_b32 v{t2}, 4, v{lane}\nv_xor_b32 v{t}, v{t}, v{t2}\nv_and_b32 v{t}, 1, v{t}\nv_cmp_eq_u32 vcc, 0, v{t}")
    k(f"v_mov_b32 v{t2}, 0x3f803f80")
    for e in range(4): k(f"v_cndmask_b32 v{ONE+e}, 0, v{t2}, vcc")
    def kread(T):
        off = ((T // TPS) % R)*SLOT + (T % TPS)*4096
        for i in range(2): k.ds(f"ds_read_b128 {vr(Kb[T%2]+4*i,4)}, v{vT} offset:{off+1024*i}", ("k", T))
    def vread(T):
        off = ((T // TPS) % R)*SLOT + (T % TPS)*4096 + 2048
        for i in range(2): k.ds(f"ds_read_b128 {vr(Vb[T%2]+4*i,4)}, v{vT} offset:{off+1024*i}", ("v", T))
    def qk(T, i, c=None):
        d = vr(S[T%2], 16)
        cc = (vr(NEG, 16) if c is None else c) if i == 0 else d
        k(f"v_mfma_f32_32x32x16_bf16 {d}, {vr(Kb[T%2]+4*i,4)}, {vr(Q+4*i,4)}, {cc}")
    def rowmax16(src, dst):
        k(f"v_max3_f32 v{dst}, v{src}, v{src+1}, v{src+2}")
        for e in range(3, 15, 2): k(f"v_max3_f32 v{dst}, v{dst}, v{src+e}, v{src+e+1}")
        k(f"v_max_f32 v{dst}, v{dst}, v{src+15}")
    stamp(k)
    k.wait(vm="q"); k("s_barrier")
    stamp(k)
    kread(0); kread(1); vread(0)
    k.wait(lg=("k", 0))
    qk(0, 0, "0"); qk(0, 1)
    rowmax16(S[0], t)
    k(f"v_mov_b32 v{t2}, v{t}\nv_permlane32_swap_b32 v{t}, v{t2}\nv_max_f32 v{t}, v{t}, v{t2}")
    for e in range(16): k(f"v_sub_f32 v{NEG+e}, 0, v{t}")
    for e in range(16): k(f"v_sub_f32 v{S[0]+e}, v{S[0]+e}, v{t}")
    base = len(k.L); starts = [base]
    def summ(T, i):
        k(f"v_mfma_f32_16x16x32_bf16 {vr(Lr,4)}, {vr(ONE,4)}, {vr(Pf+4*i,4)}, {vr(Lr,4) if (T or i) else '0'}")
    for T in range(NTILE):
        s = S[T % 2]
        pend = None; jj = None
        if T + 2 < NTILE:
            if (T + 2) % TPS == 0:
                j = (T + 2) // TPS
                starts.append(len(k.L))
                k.wait(vm=("dma", j)); k("s_barrier")
                if j >= 2 and j - 2 + R < NST: pend = j - 2 + R
                jj = j
        if APRIO: k(f"s_setprio {3 - (T + 2) % TPS}")
        if ASCHED == 0:
            if T + 2 < NTILE: kread(T + 2)
            if T + 1 < NTILE:
                vread(T + 1)
                k.wait(lg=("k", T + 1)); qk(T + 1, 0)
            for e in range(8): k(f"v_exp_f32 v{s+e}, v{s+e}")
            if T + 1 < NTILE: qk(T + 1, 1)
            for e in range(4): k(f"v_cvt_pk_bf16_f32 v{Pf+e}, v{s+2*e}, v{s+2*e+1}")
            if jj is not None: cs(jj); cs2(jj)
            if pend is not None: pf(pend + 2 - R); dma(pend)
            for e in range(8, 12): k(f"v_exp_f32 v{s+e}, v{s+e}")
            k.wait(lg=("v", T))
            k(f"v_mfma_f32_32x32x16_bf16 {vr(O,16)}, {vr(Vb[T%2],4)}, {vr(Pf,4)}, {vr(O,16) if T else '0'}")
            for e in range(12, 16): k(f"v_exp_f32 v{s+e}, v{s+e}")
            summ(T, 0)
            for e in range(4, 8): k(f"v_cvt_pk_bf16_f32 v{Pf+e}, v{s+2*e}, v{s+2*e+1}")
            k(f"v_mfma_f32_32x32x16_bf16 {vr(O,16)}, {vr(Vb[T%2]+4,4)}, {vr(Pf+4,4)}, {vr(O,16)}")
            summ(T, 1)
        else:
            E = lambda a, b: [k(f"v_exp_f32 v{s+e}, v{s+e}") for e in range(a, b)]
            C = lambda a, b: [k(f"v_cvt_pk_bf16_f32 v{Pf+e}, v{s+2*e}, v{s+2*e+1}") for e in range(a, b)]
            if T: k(f"v_mfma_f32_32x32x16_bf16 {vr(O,16)}, {vr(Vb[(T-1)%2]+4,4)}, {vr(Pf+4,4)}, {vr(O,16)}")
            E(0, 3)
            if T + 1 < NTILE:
                k.wait(lg=("k", T + 1)); qk(T + 1, 0)
            E(3, 6)
            if T: summ(T - 1, 1)
            if T + 1 < NTILE: vread(T + 1)
            E(6, 8)
            if T + 1 < NTILE: qk(T + 1, 1)
            C(0, 4)
            E(8, 9)
            if T + 2 < NTILE: kread(T + 2)
            k.wait(lg=("v", T))
            k(f"v_mfma_f32_32x32x16_bf16 {vr(O,16)}, {vr(Vb[T%2],4)}, {vr(Pf,4)}, {vr(O,16) if T else '0'}")
            E(9, 12)
            summ(T, 0)
            if jj is not None: cs(jj); cs2(jj)
            if pend is not None: pf(pend + 2 - R); dma(pend)
            E(12, 16)
            C(4, 8)
    if ASCHED:
        T = NTILE
        k(f"v_mfma_f32_32x32x16_bf16 {vr(O,16)}, {vr(Vb[(T-1)%2]+4,4)}, {vr(Pf+4,4)}, {vr(O,16)}")
        summ(T - 1, 1)
    starts.append(len(k.L))
    blocks = [k.L[starts[i]:starts[i+1]] for i in range(len(starts) - 1)]
    del k.L[base:]
    compress_loop(k, blocks, R if not NOLOOP else 99, scnt, name + "_L")
    stamp(k)
    k.label(name + "_CHK")
    k(f"v_max3_f32 v{t}, |v{O}|, |v{O+1}|, |v{O+2}|")
    for e in range(3, 15, 2): k(f"v_max3_f32 v{t}, v{t}, |v{O+e}|, |v{O+e+1}|")
    k(f"v_max_f32 v{t}, v{t}, |v{O+15}|".replace("v_max_f32", "v_max_f32_e64"))
    k(f"s_mov_b32 s{st}, {f32(2.0**100)}\ns_mov_b32 s{st2}, 0x7f7fffff")
    k(f"v_cmp_nle_f32 vcc, v{Lr}, s{st}".replace("v_cmp_nle_f32", "v_cmp_nle_f32_e64"))
    sx = k.s(2)
    k(f"v_cmp_nle_f32_e64 {sr(sx,2)}, v{t}, s{st2}")
    k(f"v_add_f32 v{t2}, v{O}, v{O+1}")
    for e in range(2, 16): k(f"v_add_f32 v{t2}, v{t2}, v{O+e}")
    sy = k.s(2)
    k(f"v_cmp_u_f32_e64 {sr(sy,2)}, v{t2}, v{t2}")
    k(f"s_or_b64 vcc, vcc, {sr(sx,2)}\ns_or_b64 vcc, vcc, {sr(sy,2)}\ns_cbranch_scc1 {name}_SLOW")
    k.label(name + "_OUT")
    k(f"v_rcp_f32 v{t}, v{Lr}")
    k(f"s_lshl_b32 s{st}, s{sqb}, 6\ns_add_u32 s{st}, s{st}, s{shd}\ns_lshl_b32 s{st}, s{st}, 10\ns_add_u32 s{st}, s{st}, {WS_O}")
    k(f"v_and_b32 v{t2}, 15, v{lane}\nv_lshlrev_b32 v{t2}, 4, v{t2}\nv_bfe_u32 v{vD}, v{lane}, 4, 1\nv_lshl_add_u32 v{t2}, v{vD}, 15, v{t2}\nv_lshrrev_b32 v{vD}, 5, v{lane}\nv_lshl_add_u32 v{t2}, v{vD}, 8, v{t2}")
    for e in range(16): k(f"v_mul_f32 v{O+e}, v{O+e}, v{t}")
    for e in range(8): k(f"v_cvt_pk_bf16_f32 v{Pf+e}, v{O+2*e}, v{O+2*e+1}")
    for i in range(2): k.vm(f"buffer_store_dwordx4 {vr(Pf+4*i,4)}, v{t2}, {sr(S_ws,4)}, s{st} offen offset:{512*i}")
    tend(k)
    k("s_endpgm")
    k.vmq = []; k.lgq = []
    k.label(name + "_SLOW")
    mx = k.v()
    k(f"v_mov_b32 v{mx}, 0xff800000\ns_mov_b32 s{sKV}, s{sKV0}\ns_mov_b32 s{scnt}, {NTILE}")
    k.label(name + "_S1")
    for i in range(2): k.vm(f"buffer_load_dwordx4 {vr(Kb[0]+4*i,4)}, v{vT}, {sr(S_ws,4)}, s{sKV} offen offset:{1024*i}")
    k.wait(vm="all")
    qk(0, 0, "0"); qk(0, 1)
    rowmax16(S[0], t)
    k(f"v_max_f32 v{mx}, v{mx}, v{t}")
    k(f"s_add_u32 s{sKV}, s{sKV}, 4096\ns_sub_u32 s{scnt}, s{scnt}, 1\ns_cmp_lg_u32 s{scnt}, 0\ns_cbranch_scc1 {name}_S1")
    k(f"v_mov_b32 v{t2}, v{mx}\nv_permlane32_swap_b32 v{mx}, v{t2}\nv_max_f32 v{mx}, v{mx}, v{t2}")
    for e in range(16): k(f"v_sub_f32 v{NEG+e}, 0, v{mx}")
    for e in range(16): k(f"v_mov_b32 v{O+e}, 0")
    for e in range(4): k(f"v_mov_b32 v{Lr+e}, 0")
    k(f"s_mov_b32 s{sKV}, s{sKV0}\ns_mov_b32 s{scnt}, {NTILE}")
    k.label(name + "_S2")
    for i in range(2): k.vm(f"buffer_load_dwordx4 {vr(Kb[0]+4*i,4)}, v{vT}, {sr(S_ws,4)}, s{sKV} offen offset:{1024*i}")
    for i in range(2): k.vm(f"buffer_load_dwordx4 {vr(Vb[0]+4*i,4)}, v{vT}, {sr(S_ws,4)}, s{sKV} offen offset:{2048+1024*i}")
    k.wait(vm="all")
    qk(0, 0); qk(0, 1)
    s = S[0]
    for e in range(16): k(f"v_exp_f32 v{s+e}, v{s+e}")
    for e in range(8): k(f"v_cvt_pk_bf16_f32 v{Pf+e}, v{s+2*e}, v{s+2*e+1}")
    for i in range(2):
        k(f"v_mfma_f32_32x32x16_bf16 {vr(O,16)}, {vr(Vb[0]+4*i,4)}, {vr(Pf+4*i,4)}, {vr(O,16)}")
        k(f"v_mfma_f32_16x16x32_bf16 {vr(Lr,4)}, {vr(ONE,4)}, {vr(Pf+4*i,4)}, {vr(Lr,4)}")
    k(f"s_add_u32 s{sKV}, s{sKV}, 4096\ns_sub_u32 s{scnt}, s{scnt}, 1\ns_cmp_lg_u32 s{scnt}, 0\ns_cbranch_scc1 {name}_S2")
    k(f"s_nop 15\ns_branch {name}_OUT")
    finish(k, False)
    return k

OPT = {"wo": dict(R=8, DA=8, DW=3), "ffn1": dict(IL=1, PRIO=1, STS=34, PRO=6, WIN=6, CAP=20, TAIL=6), "ffn2o": dict(R=6, DA=6, DW=3), "ffn2": dict(IL=1, PRIO=1, DA=4, LAG=4), "qkv": dict()}
def build(out):
    import g16
    ks = [gen_ln("ln1_kernel", False, 0, WS_XN), gen_qkv("qkv_kernel"), gen_attn("attn_kernel"),
          g16.gen_res16("wo_kernel", 1024, P_WO, WS_O, False, **OPT["wo"]),
          g16.gen_ffn1_16("ffn1_kernel", **OPT["ffn1"]), (g16.gen_ffn2s("ffn2_kernel", **OPT["ffn2"]) if SPLITK else g16.gen_res16("ffn2_kernel", 3584, P_WD, WS_ACT, True, **OPT["ffn2o"]))]
    ref = open("cdna_kernels/" + NAME + ".s.ref").read().split("\n")
    head = [l for l in ref if l.startswith(";") and not l.startswith("; @launch") and not l.startswith("; Override") and not l.startswith("; grid=")]
    txt = "\n".join(head) + "\n"
    for k in ks:
        txt += f"; @launch kernel={k.name} grid=({k.grid[0]},{k.grid[1]},{k.grid[2]}) block=({k.block[0]},{k.block[1]},{k.block[2]}) lds={k.lds}\n"
    txt += '.amdgcn_target "amdgcn-amd-amdhsa--gfx950"\n'
    def emit(sizes):
        t = txt; descs = ""
        for k in ks:
            c, d = k.text(sizes.get(k.name) if sizes else None); t += c; descs += d
            if sizes: print(k.name, "vgpr", k.nv, "lines", c.count("\n"), "lds", k.lds, "stubs", getattr(k, "nstub", 0), file=sys.stderr)
        return t + descs
    import subprocess, re, os
    open("_p1.s", "w").write(emit(None))
    subprocess.run(["clang", "-c", "-x", "assembler", "-target", "amdgcn-amd-amdhsa", "-mcpu=gfx950", "_p1.s", "-o", "_p1.o"], check=True)
    dis = subprocess.run(["llvm-objdump", "-d", "-z", "--mcpu=gfx950", "_p1.o"], capture_output=True, text=True).stdout
    sizes = {}; cur = None
    names = {k.name for k in ks}
    for l in dis.split("\n"):
        m = re.match(r"^[0-9a-f]+ <(.*)>:", l)
        if m:
            if m.group(1) in names: cur = sizes.setdefault(m.group(1), [])
            continue
        m = re.search(r"// [0-9A-F]+: ((?:[0-9A-F]{8} ?)+)", l)
        if m and cur is not None: cur.append((l.split()[0], 4 * len(m.group(1).split())))
    for n in sizes:
        L = sizes[n]; last = max(i for i, x in enumerate(L) if x[0] == "s_endpgm"); sizes[n] = [x[1] for x in L[:last + 1]]
    open(out, "w").write(emit(sizes))

if __name__ == "__main__":
    sys.modules["gen"] = sys.modules["__main__"]
    if "--timing" in sys.argv: TIMING = True; sys.argv.remove("--timing")
    if "--nopf" in sys.argv: PF = False; sys.argv.remove("--nopf")
    for a in list(sys.argv):
        if a.startswith("-D"):
            n, v = a[2:].split("=")
            if "." in n: n1, n2 = n.split("."); OPT[n1][n2] = int(v)
            else: globals()[n] = int(v)
            sys.argv.remove(a)
    if "--dbg" in sys.argv: TIMING = 2; sys.argv.remove("--dbg")
    build(sys.argv[1] if len(sys.argv) > 1 else "cdna_kernels/" + NAME + ".s")
```
